```python
import torch

def _softmax(x, axis=-1):
    return torch.softmax(x, dim=axis)
def _gelu(x):
    return torch.nn.functional.gelu(x, approximate="tanh")
def _silu(x):
    return torch.nn.functional.silu(x)
def _sigmoid(x):
    return torch.sigmoid(x)
def _layernorm(x, axis=-1, eps=1e-5):
    m = x.mean(dim=axis, keepdim=True)
    v = x.var(dim=axis, keepdim=True, unbiased=False)
    return (x - m) / torch.sqrt(v + eps)
def _scatter_add(tgt, idx, src, axis=0):
    return tgt.clone().index_add_(axis, idx, src)
def _segment_sum(src, seg, n):
    out = torch.zeros((n,) + src.shape[1:], dtype=src.dtype)
    return out.index_add_(0, seg, src)
def _pad(x, pw):
    flat = tuple(v for pair in reversed(pw) for v in pair)
    return torch.nn.functional.pad(x, flat)

kernel_name = 'parallel_sum__mha_block__glu_gated_bilinear__prompt'

def setup_inputs():

    _w = (lambda a: (lambda t: t.to(torch.bfloat16) if t.is_floating_point() else t)(torch.as_tensor(a)))
    def _A_setup():
        B, S, D, H = 1, 2048, 1024, 32
        return {
            "x": _w((lambda *s: torch.randn(*s, dtype=torch.bfloat16) * 0.05)(B, S, D)),
            "wqkv": _w((lambda *s: torch.randn(*s, dtype=torch.bfloat16) * 0.05)(D, 3 * D)),
            "wo": _w((lambda *s: torch.randn(*s, dtype=torch.bfloat16) * 0.05)(D, D)),
        }
    _A_in = _A_setup()

    def _B_setup():
        B, S, D, F = 1, 2048, 1024, 3584
        return {
            "x": _w((lambda *s: torch.randn(*s, dtype=torch.bfloat16) * 0.05)(B, S, D)),
            "w_gate": _w((lambda *s: torch.randn(*s, dtype=torch.bfloat16) * 0.8)(D, F) * (D ** -0.5)),
            "w_up": _w((lambda *s: torch.randn(*s, dtype=torch.bfloat16) * 0.8)(D, F) * (D ** -0.5)),
            "w_down": _w((lambda *s: torch.randn(*s, dtype=torch.bfloat16) * 0.8)(F, D) * (F ** -0.5)),
        }
    _B_in = _B_setup()

    return {
        "A_x": _A_in["x"],
        "A_wqkv": _A_in["wqkv"],
        "A_wo": _A_in["wo"],
        "B_x": _B_in["x"],
        "B_w_gate": _B_in["w_gate"],
        "B_w_up": _B_in["w_up"],
        "B_w_down": _B_in["w_down"],
    }

def reference(A_x, A_wqkv, A_wo, B_x, B_w_gate, B_w_up, B_w_down):
    def _A_ref(x, wqkv, wo):
        B, S, D = x.shape
        H = 32
        Dh = D // H
        qkv = (lambda x, *d: x.permute(*d))((x @ wqkv).reshape(B, S, 3, H, Dh), 2, 0, 3, 1, 4)
        q, k, v = qkv[0], qkv[1], qkv[2]
        scores = torch.einsum("bhqd,bhkd->bhqk", q, k) * (Dh ** -0.5)
        p = _softmax(scores, axis=-1)
        o = torch.einsum("bhqk,bhkd->bhqd", p, v)
        return (lambda x, *d: x.permute(*d))(o, 0, 2, 1, 3).reshape(B, S, D) @ wo

    def _B_ref(x, w_gate, w_up, w_down):
        g = torch.einsum("bsd,df->bsf", x, w_gate)
        u = torch.einsum("bsd,df->bsf", x, w_up)
        h = g * u
        return torch.einsum("bsf,fd->bsd", h, w_down)

    x = A_x
    xn = _layernorm(x, axis=-1)
    return x + _A_ref(xn, A_wqkv, A_wo) + _B_ref(xn, B_w_gate, B_w_up, B_w_down)
```

```python
import struct
class Asm:
    def __init__(self): self.L = []
    def __call__(self, s):
        for x in s.split("\n"):
            x = x.strip()
            if x: self.L.append(x)
    def ext(self, lst):
        for x in lst: self(x)
    def text(self):
        out = []
        for x in self.L:
            out.append(x if x.endswith(":") or x.startswith(".") else "    " + x)
        return "\n".join(out)

def vr(i, n=1): return f"v{i}" if n == 1 else f"v[{i}:{i+n-1}]"
def ar(i, n=1): return f"a{i}" if n == 1 else f"a[{i}:{i+n-1}]"
def sr(i, n=1): return f"s{i}" if n == 1 else f"s[{i}:{i+n-1}]"
def f2h(x): return "0x%08x" % struct.unpack("<I", struct.pack("<f", x))[0]

def srd(a, d, base, nbytes, off=None):
    if off is None:
        a(f"s_mov_b32 s{d}, s{base}\ns_mov_b32 s{d+1}, s{base+1}\ns_mov_b32 s{d+2}, {nbytes}")
    else:
        a(f"s_add_u32 s{d}, s{base}, {off}\ns_addc_u32 s{d+1}, s{base+1}, 0\ns_sub_u32 s{d+2}, {nbytes}, {off}" if not isinstance(off, int)
          else f"s_add_u32 s{d}, s{base}, {off}\ns_addc_u32 s{d+1}, s{base+1}, 0\ns_mov_b32 s{d+2}, {nbytes-off}")
    a(f"s_mov_b32 s{d+3}, 0x00020000")

def weave(mf, fill):
    out = list(fill.get(-1, []))
    for i, m in enumerate(mf):
        out.append(m)
        out += fill.get(i, [])
    return out

def kdesc(name, vgpr, accum, sgpr=102):
    return f""".p2align 6
.amdhsa_kernel {name}
  .amdhsa_next_free_vgpr {vgpr}
  .amdhsa_next_free_sgpr {sgpr}
  .amdhsa_accum_offset {accum}
  .amdhsa_group_segment_fixed_size 0
  .amdhsa_kernarg_size 80
  .amdhsa_user_sgpr_count 2
  .amdhsa_user_sgpr_kernarg_segment_ptr 1
  .amdhsa_system_sgpr_workgroup_id_x 1
.end_amdhsa_kernel
"""
def khead(name):
    return f""".globl {name}
.p2align 8
.type {name},@function
{name}:
"""
```

```python
import re, sys
def regs(tok):
    tok = tok.strip()
    m = re.fullmatch(r"(-?\|?)([vas])(\d+)\|?", tok)
    if m: return {(m.group(2), int(m.group(3)))}
    m = re.fullmatch(r"(-?\|?)([vas])\[(\d+):(\d+)\]\|?", tok)
    if m: return {(m.group(2), i) for i in range(int(m.group(3)), int(m.group(4))+1)}
    if tok == "vcc": return {("s", 106), ("s", 107)}
    if tok == "m0": return {("s", 124)}
    if tok == "exec": return {("s", 126), ("s", 127)}
    return set()
TRANS = ("v_exp_", "v_log_", "v_rcp_", "v_rsq_", "v_sqrt_", "v_sin_", "v_cos_")
class I:
    def __init__(s, line, n):
        s.line = line; s.n = n
        p = line.split(None, 1); s.op = p[0]
        ops = [x.strip() for x in p[1].split(",")] if len(p) > 1 else []
        if ops:
            last = ops[-1].split(); ops[-1] = last[0]; s.mods = " ".join(last[1:])
        else: s.mods = ""
        s.ops = ops
        op = s.op
        s.mfma = op.startswith("v_mfma") or op.startswith("v_smfmac")
        s.valu = op.startswith("v_") and not s.mfma
        s.trans = op.startswith(TRANS)
        s.vmem = op.startswith(("buffer_", "global_"))
        s.ds = op.startswith("ds_")
        s.salu = op.startswith("s_")
        s.dpp = "_dpp" in op or "quad_perm" in s.mods or "row_" in s.mods
        s.perml = op.startswith("v_permlane")
        R = [regs(x) for x in ops]
        s.dst = set(); s.src = set(); s.srcC = set(); s.srcAB = set(); s.stdata = set()
        if s.mfma:
            s.dst = R[0]; s.srcAB = R[1] | R[2]
            if op.startswith("v_smfmac"): s.srcC = R[0]; s.srcAB |= R[3]
            else: s.srcC = R[3]
            s.src = s.srcAB | s.srcC
            s.passes = 8 if "32x32" in op else (2 if "4x4x4" in op else 4)
        elif s.valu:
            if op.startswith("v_cmp"):
                s.dst = R[0]; s.src = set().union(*R[1:])
            elif s.perml:
                s.dst = R[0] | R[1]; s.src = R[0] | R[1]
            elif "_co_" in op:
                s.dst = R[0] | R[1]; s.src = set().union(*R[2:])
            else:
                s.dst = R[0]; s.src = set().union(*R[1:]) if len(R) > 1 else set()
                if op.startswith(("v_fmac", "v_mac", "v_pk_fmac", "v_dot2c", "v_writelane")) or s.dpp: s.src |= R[0]
                if op.startswith("v_cndmask") and len(ops) == 3: s.src |= regs("vcc")
        elif s.vmem:
            lds = " lds" in " " + s.mods
            if "load" in op and not lds:
                s.dst = R[0]; s.src = set().union(*R[1:])
            elif "load" in op:
                s.src = set().union(*R) | regs("m0"); s.ldsdma = True
            elif "store" in op or "atomic" in op:
                s.src = set().union(*R)
                d = R[0] if op.startswith("buffer_") else R[1]
                if len(d) >= 3: s.stdata = d
            else: s.src = set()
        elif s.ds:
            if "read" in op or "permute" in op or "swizzle" in op or "_rtn" in op:
                s.dst = R[0]; s.src = set().union(*R[1:])
            else: s.src = set().union(*R)
        elif s.salu:
            if op.startswith(("s_cmp", "s_waitcnt", "s_nop", "s_barrier", "s_branch", "s_cbranch", "s_endpgm", "s_setprio", "s_sleep", "s_bitcmp")):
                s.src = set().union(*R) if R else set()
            else:
                s.dst = R[0]; s.src = set().union(*R[1:]) if len(R) > 1 else set()
        s.ws = int(ops[0], 0) + 1 if op == "s_nop" else 1
def need(p, c):
    n = 0; why = ""
    def up(k, w):
        nonlocal n, why
        if k > n: n, why = k, w
    V = lambda S: {r for r in S if r[0] != "s"}
    S_ = lambda S: {r for r in S if r[0] == "s"}
    if p.mfma:
        t = {2: 5, 4: 8, 8: 12}[p.passes]
        if c.mfma:
            if p.dst & c.srcAB: up(t, "mfma D->AB")
            if p.dst & c.srcC and not (p.dst == c.srcC and p.passes == c.passes): up(t-2, "mfma D->C overlap")
            if p.dst & c.srcC and p.passes == 2: up(2, "mfma chain")
            if p.dst & c.dst and not (p.dst & c.srcC): up(t-2, "mfma WAW (conservative)")
        elif c.valu:
            if p.dst & (c.src | c.dst): up(t, "mfma D->valu")
            if p.srcC & c.dst: up({2: 1, 4: 3, 8: 7}[p.passes], "mfma C WAR")
        elif c.vmem or c.ds:
            if p.dst & (c.src | c.dst): up(t, "mfma D->mem")
    if p.valu:
        if c.mfma and V(p.dst) & c.src: up(2, "valu->mfma")
        if (c.dpp or c.perml) and V(p.dst) & c.src: up(2, "valu->dpp/permlane")
        if p.trans and c.valu and not c.trans and p.dst & c.src: up(1, "trans->valu")
        if c.vmem and S_(p.dst) & c.src: up(5, "valu sgpr->vmem")
        if c.valu and S_(p.dst) & c.src: up(2, "valu sgpr->valu")
        if c.op.startswith(("v_readlane", "v_readfirstlane")) and V(p.dst) & c.src: up(1, "valu->readlane")
        if ("s", 126) in p.dst and (c.mfma or c.perml): up(4, "exec->mfma")
    if p.salu and ("s", 124) in p.dst and getattr(c, "ldsdma", False): up(1, "m0->dma")
    if p.stdata and (p.stdata & c.dst): up(2 if c.valu else 1, "store WAR")
    return n, why
def check(text):
    ins = []; labels = {}
    for n, raw in enumerate(text.split("\n")):
        l = raw.split(";")[0].strip()
        if not l or l.startswith("."): continue
        if l.endswith(":"): labels[l[:-1]] = len(ins); continue
        ins.append(I(l, n+1))
    bad = 0
    def scan(i, seq):
        nonlocal bad
        p = ins[i]; d = 0
        for j in seq:
            c = ins[j]
            k, why = need(p, c)
            if k > d:
                print(f"HAZARD {why}: need {k} have {d}\n   L{p.n}: {p.line}\n   L{c.n}: {c.line}"); bad += 1
            d += c.ws
            if d >= 13: break
    def paths(i, left):
        if left == 0 or i >= len(ins): return [[]]
        x = ins[i]
        if x.op == "s_endpgm": return [[]]
        res = []
        if x.op == "s_branch": nxt = [labels[x.ops[0]]]
        elif x.op.startswith("s_cbranch"): nxt = [i+1, labels[x.ops[0]]]
        else: nxt = [i+1]
        for t in nxt:
            if t >= len(ins): res.append([]); continue
            for r in paths(t, left-1): res.append([t] + r)
        return res
    for i, p in enumerate(ins):
        if not (p.mfma or p.valu or p.stdata or (p.salu and ("s", 124) in p.dst)): continue
        for seq in paths(i, 13): scan(i, seq)
    return bad
if __name__ == "__main__":
    b = check(open(sys.argv[1]).read()); print("hazards:", b)
```

```python
from asmlib import *
import math
WS_BYTES = 268435456
XN_OFF = 0
HO_OFF = 4 << 20
HO_T16 = 144 * 1024
Q_OFF = 24 << 20
K_OFF = 28 << 20
V_OFF = 32 << 20
QSCALE = (32 ** -0.5) * math.log2(math.e)

def wave_allsum(a, regs, tmp):
    for mod in ("quad_perm:[1,0,3,2]", "quad_perm:[2,3,0,1]", "row_half_mirror", "row_mirror"):
        a("s_nop 1")
        for r in regs: a(f"v_add_f32_dpp v{r}, v{r}, v{r} {mod} row_mask:0xf bank_mask:0xf")
    for op in ("v_permlane16_swap_b32", "v_permlane32_swap_b32"):
        for r, t in zip(regs, tmp): a(f"v_mov_b32 v{t}, v{r}")
        a("s_nop 1")
        for r, t in zip(regs, tmp): a(f"{op} v{r}, v{t}")
        for r, t in zip(regs, tmp): a(f"v_add_f32 v{r}, v{r}, v{t}")

def k0_ln(name):
    a = Asm()
    a(f"""s_cmp_ge_u32 s2, 256
    s_cbranch_scc1 {name}_end
    s_load_dwordx2 s[4:5], s[0:1], 0
    s_load_dwordx2 s[6:7], s[0:1], 72
    v_lshrrev_b32 v1, 6, v0
    v_and_b32 v2, 63, v0
    v_readfirstlane_b32 s3, v1
    v_lshlrev_b32 v3, 4, v2
    s_lshl_b32 s16, s2, 3
    s_lshl_b32 s17, s3, 1
    s_add_u32 s16, s16, s17
    s_lshl_b32 s16, s16, 11
    s_waitcnt lgkmcnt(0)""")
    srd(a, 8, 4, 4194304)
    for i in range(4): a(f"buffer_load_dwordx4 v[{4+4*i}:{7+4*i}], v3, s[8:11], s16 offen offset:{1024*i}")
    srd(a, 12, 6, 4194304)
    a(f"""v_and_b32 v20, 7, v2
    v_lshlrev_b32 v21, 1, v1
    v_xor_b32 v21, v21, v20
    v_xor_b32 v22, 1, v21
    v_lshlrev_b32 v23, 7, v2
    v_lshl_add_u32 v21, v21, 4, v23
    v_lshl_add_u32 v22, v22, 4, v23
    v_lshrrev_b32 v24, 3, v0
    v_and_b32 v25, 7, v0
    v_and_b32 v26, 7, v24
    v_xor_b32 v26, v26, v25
    v_lshlrev_b32 v26, 4, v26
    v_lshl_add_u32 v26, v24, 7, v26
    v_lshlrev_b32 v27, 4, v25
    v_lshl_add_u32 v27, v24, 8, v27
    s_lshr_b32 s18, s2, 1
    s_lshl_b32 s18, s18, 15
    s_and_b32 s19, s2, 1
    s_lshl_b32 s19, s19, 7
    s_add_u32 s18, s18, s19
    s_add_u32 s19, s18, 8192
    s_add_u32 s20, s18, 16384
    s_add_u32 s21, s18, 24576
    s_mov_b32 s22, 0xffff0000
    s_mov_b32 s23, {f2h(1.0/1024)}
    s_mov_b32 s24, {f2h(1e-5)}""")
    X = 32
    for row in range(2):
        a(f"s_waitcnt vmcnt({2-2*row})")
        for j in range(8):
            a(f"v_lshlrev_b32 v{X+16*row+2*j}, 16, v{4+8*row+j}")
            a(f"v_and_b32 v{X+16*row+2*j+1}, s22, v{4+8*row+j}")
        T = 64 + 8*row
        for j in range(8): a(f"v_add_f32 v{T+j}, v{X+16*row+j}, v{X+16*row+8+j}")
        for st in (4, 2, 1):
            for j in range(st): a(f"v_add_f32 v{T+j}, v{T+j}, v{T+j+st}")
    wave_allsum(a, [64, 72], [65, 73])
    a("v_mul_f32 v64, s23, v64\nv_mul_f32 v72, s23, v72")
    D = 80
    for row in range(2):
        for j in range(16): a(f"v_sub_f32 v{D+16*row+j}, v{X+16*row+j}, v{64+8*row}")
        for j in range(4): a(f"v_mul_f32 v{66+8*row+j}, v{D+16*row+j}, v{D+16*row+j}")
        for j in range(4, 16): a(f"v_fmac_f32 v{66+8*row+j%4}, v{D+16*row+j}, v{D+16*row+j}")
        a(f"v_add_f32 v{66+8*row}, v{66+8*row}, v{67+8*row}\nv_add_f32 v{68+8*row}, v{68+8*row}, v{69+8*row}\nv_add_f32 v{66+8*row}, v{66+8*row}, v{68+8*row}")
    wave_allsum(a, [66, 74], [67, 75])
    a("""v_mul_f32 v66, s23, v66
    v_mul_f32 v74, s23, v74
    v_cvt_pk_bf16_f32 v64, v64, v72
    v_cvt_pk_bf16_f32 v66, v66, v74
    v_and_b32 v72, s22, v64
    v_lshlrev_b32 v64, 16, v64
    v_and_b32 v74, s22, v66
    v_lshlrev_b32 v66, 16, v66
    v_add_f32 v66, s24, v66
    v_add_f32 v74, s24, v74
    v_cvt_pk_bf16_f32 v66, v66, v74
    v_and_b32 v74, s22, v66
    v_lshlrev_b32 v66, 16, v66
    v_sqrt_f32 v74, v74
    v_sqrt_f32 v66, v66
    s_nop 0
    v_cvt_pk_bf16_f32 v66, v66, v74
    v_and_b32 v74, s22, v66
    v_lshlrev_b32 v66, 16, v66
    v_rcp_f32 v74, v74
    v_rcp_f32 v66, v66""")
    for row in range(2):
        b = X + 16*row
        for j in range(16): a(f"v_sub_f32 v{b+j}, v{b+j}, v{64+8*row}")
        for j in range(8): a(f"v_cvt_pk_bf16_f32 v{D+16*row+j}, v{b+2*j}, v{b+2*j+1}")
        for j in range(8):
            a(f"v_lshlrev_b32 v{b+2*j}, 16, v{D+16*row+j}")
            a(f"v_and_b32 v{b+2*j+1}, s22, v{D+16*row+j}")
        for j in range(16): a(f"v_mul_f32 v{b+j}, v{b+j}, v{66+8*row}")
        for j in range(8): a(f"v_cvt_pk_bf16_f32 v{D+16*row+8+j}, v{b+2*j}, v{b+2*j+1}")
        a(f"ds_write_b128 v{21+row}, v[{D+16*row+8}:{D+16*row+11}]")
        a(f"ds_write_b128 v{21+row}, v[{D+16*row+12}:{D+16*row+15}] offset:8192")
    a("s_waitcnt lgkmcnt(0)\ns_barrier")
    for i in range(4): a(f"ds_read_b128 v[{4+4*i}:{7+4*i}], v26 offset:{4096*i}")
    for i in range(4):
        a(f"s_waitcnt lgkmcnt({3-i})")
        a(f"buffer_store_dwordx4 v[{4+4*i}:{7+4*i}], v27, s[12:15], s{18+i} offen")
    a(f"{name}_end:\ns_endpgm")
    return a, dict(vgpr=128, accum=128, lds=16384, grid=256, block=256)

SLOT = 20480
class G1:
    vXN = 0
    vWF = 64
    vRA = 84
    vXA = 92
    vGU = 96; vQK = 97
    vT = 100
    vACC = 192
def acc(i, n=4):
    return ar(i, n) if i < 256 else vr(G1.vACC + i - 256, n)

def g1_reads(s, f):
    slot = s % 4; p = f // 4; cb = f % 4
    va = G1.vRA + cb + (4 if slot >= 2 else 0)
    off = (slot % 2) * SLOT + p * 4096
    d = G1.vWF + 4 * (f % 5)
    return [f"ds_read_b64_tr_b16 v[{d}:{d+1}], v{va} offset:{off}", f"ds_read_b64_tr_b16 v[{d+2}:{d+3}], v{va} offset:{off+512}"]
def g1_dma(typ, s, p):
    isq = p == 4 or (typ == "C" and p >= 2)
    return (f"s_add_u32 m0, s31, {(s % 4) * SLOT + p * 4096}",
            f"buffer_load_dwordx4 v{G1.vQK if isq else G1.vGU}, s[{4+4*p}:{7+4*p}], s{29 if isq else 28} offen lds")
def g1_xn(s, tt, off):
    d = G1.vXN + 16 * (s % 4) + 4 * tt
    return f"buffer_load_dwordx4 v[{d}:{d+3}], v{G1.vXA+tt}, s[24:27], s30 offen offset:{off}"
G1_ADV = ["s_add_u32 s28, s28, %d" % (32*7168), "s_add_u32 s29, s29, %d" % (32*6144)]

def g1_step(typ, s, pre, vm, bar=True, last=False, extra=None):
    mf = []; fill = {}
    for f in range(20):
        w = G1.vWF + 4 * (f % 5)
        for tt in range(4):
            x = G1.vXN + 16 * (s % 4) + 4 * tt
            c = acc((f * 4 + tt) * 4)
            if typ == "C" and 8 <= f < 16: mf.append(f"v_mfma_f32_16x16x32_bf16 {c}, v[{x}:{x+3}], v[{w}:{w+3}], {c}")
            else: mf.append(f"v_mfma_f32_16x16x32_bf16 {c}, v[{w}:{w+3}], v[{x}:{x+3}], {c}")
        g = 4 * f
        nf = f + 4
        if nf < 20: r = g1_reads(s, nf)
        elif not last: r = g1_reads(s + 1, nf - 20)
        else: r = []
        for i, x in enumerate(r): fill.setdefault(g + i, []).append(x)
        if f < 19:
            outstanding = 6 if (not last or f + 4 < 20) else max(0, 2 * (19 - (f + 1)))
            fill.setdefault(g + 3, []).append(f"s_waitcnt lgkmcnt({outstanding})")
    fill[-1] = [f"s_waitcnt vmcnt({vm}) lgkmcnt(6)"] + (["s_barrier"] if bar else [])
    if pre:
        for p in range(5):
            m, ld = g1_dma(typ, s + 3, p)
            fill.setdefault(4 * p + 2, []).append(m)
            fill[4 * p + 3].insert(0, ld)
        for tt in range(4):
            fill.setdefault(4 * (5 + tt) + 2, []).append(g1_xn(s + 3, tt, (s % 4) * 1024))
        fill.setdefault(4 * 10 + 2, []).extend(G1_ADV)
    if extra:
        for k, v in extra.items(): fill.setdefault(k, []).extend(v)
    return weave(mf, fill)

def g1_pack_store(a, srcs, mul, tmp, voff, soff, off):
    def get(i, t):
        if i < 256:
            a(f"v_accvgpr_read_b32 v{t}, a{i}"); return t
        return G1.vACC + i - 256
    if mul == "gu":
        g = [get(i, tmp + j) for j, i in enumerate(srcs[:8])]
        u = [get(i, tmp + 8 + j) for j, i in enumerate(srcs[8:])]
        for j in range(8): a(f"v_mul_f32 v{tmp+j}, v{g[j]}, v{u[j]}")
        g = [tmp + j for j in range(8)]
    else:
        g = [get(i, tmp + j) for j, i in enumerate(srcs)]
        if mul:
            for j in range(8): a(f"v_mul_f32 v{tmp+j}, {mul}, v{g[j]}")
            g = [tmp + j for j in range(8)]
    for j in range(4): a(f"v_cvt_pk_bf16_f32 v{tmp+16+j}, v{g[2*j]}, v{g[2*j+1]}")
    a(f"buffer_store_dwordx4 v[{tmp+16}:{tmp+19}], v{voff}, s[24:27], {soff} offen offset:{off}")

def k1_gemm1(name):
    a = Asm(); G = G1
    a(f"""s_cmp_ge_u32 s2, 256
    s_cbranch_scc1 {name}_end
    s_load_dwordx2 s[40:41], s[0:1], 8
    s_load_dwordx4 s[44:47], s[0:1], 32
    s_load_dwordx2 s[48:49], s[0:1], 72
    v_lshrrev_b32 v1, 6, v0
    v_and_b32 v2, 63, v0
    v_readfirstlane_b32 s3, v1
    s_and_b32 s33, s2, 7
    s_lshr_b32 s34, s2, 3
    s_and_b32 s35, s34, 3
    s_lshr_b32 s34, s34, 2
    s_mul_i32 s36, s33, 7
    s_lshl_b32 s37, s35, 1
    s_add_u32 s36, s36, s37
    s_lshl_b32 s37, s36, 7
    s_add_u32 s38, s37, 128
    s_lshl_b32 s39, s33, 8
    s_lshl_b32 s31, s3, 10""")
    a(f"""v_lshrrev_b32 v3, 3, v2
    v_lshl_add_u32 v3, v1, 3, v3
    v_bfe_u32 v4, v2, 4, 1
    v_and_b32 v5, 1, v1
    v_lshl_or_b32 v4, v5, 1, v4
    v_lshlrev_b32 v4, 1, v4
    v_and_b32 v5, 7, v2
    v_xor_b32 v4, v4, v5
    v_lshlrev_b32 v4, 4, v4
    s_movk_i32 s50, 7168
    s_movk_i32 s51, 6144
    v_mad_u32_u24 v{G.vGU}, v3, s50, v4
    v_mad_u32_u24 v{G.vQK}, v3, s51, v4""")
    a(f"""s_lshl_b32 s52, s34, 4
    s_lshl_b32 s53, s3, 2
    s_add_u32 s52, s52, s53
    s_lshl_b32 s53, s52, 15
    v_lshlrev_b32 v{G.vT}, 4, v2
    v_add_u32 v{G.vXA}, s53, v{G.vT}
    v_add_u32 v{G.vXA+1}, 0x8000, v{G.vXA}
    v_add_u32 v{G.vXA+2}, 0x10000, v{G.vXA}
    v_add_u32 v{G.vXA+3}, 0x18000, v{G.vXA}""")
    a(f"""v_lshrrev_b32 v3, 4, v2
    v_bfe_u32 v4, v2, 2, 2
    v_lshl_add_u32 v5, v3, 3, v4
    v_lshlrev_b32 v5, 7, v5
    v_and_b32 v6, 3, v2
    v_lshl_add_u32 v5, v6, 3, v5
    v_bfe_u32 v6, v2, 3, 2""")
    for cb in range(4):
        a(f"v_xor_b32 v7, {cb}, v6\nv_lshl_add_u32 v{G.vRA+cb}, v7, 5, v5\nv_add_u32 v{G.vRA+4+cb}, {2*SLOT}, v{G.vRA+cb}")
    a(f"""v_and_b32 v4, 15, v2
    v_lshlrev_b32 v5, 9, v3
    v_lshl_add_u32 v{G.vT+1}, v4, 4, v5
    v_and_b32 v6, 7, v2
    v_lshl_add_u32 v5, v6, 4, v5
    v_bfe_u32 v6, v2, 3, 1
    v_lshl_add_u32 v{G.vT+2}, v6, 8, v5
    s_mov_b32 s28, 0
    s_mov_b32 s29, 0
    s_mov_b32 s30, 0
    s_waitcnt lgkmcnt(0)""")
    srd(a, 24, 48, WS_BYTES)
    srd(a, 4, 44, 1024*7168, "s37")
    srd(a, 8, 46, 1024*7168, "s37")
    a(f"s_cmp_eq_u32 s35, 3\ns_cbranch_scc1 {name}_C")
    for typ in "AC":
        if typ == "A":
            srd(a, 12, 44, 1024*7168, "s38")
            srd(a, 16, 46, 1024*7168, "s38")
            a("""s_lshl_b32 s54, s35, 7
            s_cmp_eq_u32 s35, 2
            s_cselect_b32 s54, 2176, s54
            s_add_u32 s54, s54, s39""")
            srd(a, 20, 40, 1024*6144, "s54")
        else:
            a(f"{name}_C:")
            a("s_add_u32 s54, s39, 4096"); srd(a, 12, 40, 1024*6144, "s54")
            a("s_add_u32 s54, s39, 4224"); srd(a, 16, 40, 1024*6144, "s54")
            a("s_add_u32 s54, s39, 2048"); srd(a, 20, 40, 1024*6144, "s54")
        for s in range(3):
            for p in range(5):
                m, ld = g1_dma(typ, s, p); a(m); a("s_nop 0"); a(ld)
            for tt in range(4): a(g1_xn(s, tt, s * 1024))
            a.ext(G1_ADV)
        a("s_movk_i32 s30, 3072\ns_mov_b32 s32, 7")
        for i in range(256): a(f"v_accvgpr_write_b32 a{i}, 0")
        for i in range(64): a(f"v_mov_b32 v{G.vACC+i}, 0")
        a("s_waitcnt vmcnt(22)\ns_barrier")
        for f in range(4): a.ext(g1_reads(0, f))
        a(f".p2align 6\n{name}_loop{typ}:")
        for u in range(4):
            ex = {46: ["s_add_u32 s30, s30, 4096", "s_sub_u32 s32, s32, 1"], 50: ["s_cmp_lg_u32 s32, 0"]} if u == 3 else None
            a.ext(g1_step(typ, u, True, 13, extra=ex))
        a(f"s_cbranch_scc1 {name}_loop{typ}")
        a.ext(g1_step(typ, 0, True, 13))
        a.ext(g1_step(typ, 1, False, 13))
        a.ext(g1_step(typ, 2, False, 4))
        a.ext(g1_step(typ, 3, False, 0, bar=False, last=True))
        a(f"""s_mul_i32 s56, s52, {HO_T16}
        s_lshl_b32 s57, s36, 11
        s_add_u32 s56, s56, s57
        s_add_u32 s56, s56, {HO_OFF}
        s_lshl_b32 s57, s52, 10
        s_lshl_b32 s58, s33, 19
        s_add_u32 s57, s57, s58""")
        n = 0
        def tmp():
            nonlocal n; n += 1
            return 0 + 20 * (n % 4)
        for tt in range(4):
            for pp in range(2 if typ == "A" else 1):
                for j in range(2):
                    f = 8 * pp + 2 * j
                    gs = [((f + e) * 4 + tt) * 4 + r for e in range(2) for r in range(4)]
                    us = [((f + 4 + e) * 4 + tt) * 4 + r for e in range(2) for r in range(4)]
                    g1_pack_store(a, gs + us, "gu", tmp(), G.vT, "s56", (2 * pp + j) * 1024)
            if tt < 3: a(f"s_add_u32 s56, s56, {HO_T16}")
        if typ == "C":
            for hh in range(4):
                a(f"s_add_u32 s58, s57, {V_OFF + hh * 131072}")
                for e in range(2):
                    f = 8 + 2 * hh + e
                    for t2 in range(2):
                        src = [(f * 4 + 2 * t2 + b) * 4 + r for b in range(2) for r in range(4)]
                        g1_pack_store(a, src, None, tmp(), G.vT + 1, "s58", t2 * 2048 + e * 256)
            a(f"s_add_u32 s58, s57, {K_OFF}")
        else:
            a(f"""s_lshl_b32 s59, s35, 18
            s_add_u32 s59, s59, {Q_OFF}
            s_cmp_eq_u32 s35, 2
            s_cselect_b32 s59, {K_OFF + 2*131072}, s59
            s_add_u32 s58, s57, s59
            s_cmp_eq_u32 s35, 2
            s_cbranch_scc1 {name}_kst
            s_mov_b32 s60, {f2h(QSCALE)}""")
            for j in range(2):
                for tt in range(4):
                    src = [((16 + 2 * j + e) * 4 + tt) * 4 + r for e in range(2) for r in range(4)]
                    g1_pack_store(a, src, "s60", tmp(), G.vT + 1, "s58", (tt // 2) * 2048 + (tt % 2) * 256)
                if j == 0: a("s_add_u32 s58, s58, 131072")
            a("s_endpgm")
    a(f"{name}_kst:")
    for j in range(2):
        for tt in range(4):
            src = [((16 + 2 * j + e) * 4 + tt) * 4 + r for e in range(2) for r in range(4)]
            g1_pack_store(a, src, None, tmp(), G.vT + 2, "s58", (tt // 2) * 2048 + (tt % 2) * 128)
        if j == 0: a("s_add_u32 s58, s58, 131072")
    a(f"{name}_end:\ns_endpgm")
    return a, dict(vgpr=512, accum=256, lds=4*SLOT, grid=256, block=256)
```

```python
from asmlib import *
from k01 import *

class AT:
    vQ = 0
    vO = 32
    vL = 96
    vS = 112
    vP = 144
    vK = 160
    vV = 192
    vSEL = 224
    vA = 228
    vT = 229
def M32(d, x, y, c): return f"v_mfma_f32_32x32x16_bf16 v[{d}:{d+15}], v[{x}:{x+3}], v[{y}:{y+3}], " + (f"v[{c}:{c+15}]" if c is not None else "0")
def M16(d, x, y, c): return f"v_mfma_f32_16x16x32_bf16 v[{d}:{d+3}], v[{x}:{x+3}], v[{y}:{y+3}], " + (f"v[{c}:{c+3}]" if c is not None else "0")

def at_qk(t):
    A = AT; s = A.vS + 16 * (t % 2); k = A.vK + 8 * ((t // 4) % 4); q = A.vQ + 8 * (t % 4)
    return [M32(s, k, q, None), M32(s, k + 4, q + 4, s)]
def at_pv(t):
    A = AT; p = A.vP + 8 * (t % 2); v = A.vV + 8 * ((t // 4) % 4); o = A.vO + 16 * (t % 4); l = A.vL + 4 * (t % 4)
    return [M32(o, v, p, o), M32(o, v + 4, p + 4, o), M16(l, A.vSEL, p, l), M16(l, A.vSEL, p + 4, l)]
def at_ld(kt, which, kk, srdK=8, srdV=12, soff="s20"):
    A = AT; d = (A.vK if which == "K" else A.vV) + 8 * (kt % 4) + 4 * kk
    r = srdK if which == "K" else srdV
    return f"buffer_load_dwordx4 v[{d}:{d+3}], v{A.vA}, s[{r}:{r+3}], {soff} offen offset:{kk*1024}"

def at_period(t, qk=True, pv=True, mem=None, pre=None):
    A = AT; s = A.vS + 16 * (t % 2); p = A.vP + 8 * (t % 2)
    E = [f"v_exp_f32 v{s+i}, v{s+i}" for i in range(16)]
    C = [f"v_cvt_pk_bf16_f32 v{p+i}, v{s+2*i}, v{s+2*i+1}" for i in range(8)]
    q = at_qk(t + 1) if qk else [None, None]
    v = at_pv(t - 1) if pv else [None] * 4
    mem = mem or []
    L = list(pre or [])
    L += [q[0]] + mem[:1] + E[0:4]
    L += [q[1]] + mem[1:2] + [E[4], C[0], E[5], C[1], E[6]]
    L += [v[0]] + mem[2:3] + [E[7], C[2], E[8], E[9], C[3]]
    L += [v[2], E[10], E[11], C[4]]
    L += [v[1], E[12], E[13], C[5], E[14], E[15]]
    L += [v[3], C[6], C[7]]
    return [x for x in L if x]

def k2_attn(name):
    a = Asm(); A = AT
    a(f"""s_cmp_ge_u32 s2, 256
    s_cbranch_scc1 {name}_end
    s_load_dwordx2 s[4:5], s[0:1], 72
    v_lshrrev_b32 v1, 6, v0
    v_and_b32 v2, 63, v0
    v_readfirstlane_b32 s3, v1
    v_lshlrev_b32 v{A.vA}, 4, v2
    s_and_b32 s33, s2, 7
    s_lshr_b32 s34, s2, 3
    s_and_b32 s35, s34, 3
    s_lshr_b32 s34, s34, 2
    s_lshl_b32 s33, s33, 2
    s_add_u32 s33, s33, s35
    s_and_b32 s36, s3, 1
    s_lshr_b32 s37, s3, 1
    s_lshl_b32 s38, s33, 17
    s_add_u32 s39, s38, {K_OFF}
    s_add_u32 s40, s38, {V_OFF}
    s_lshl_b32 s41, s34, 1
    s_add_u32 s41, s41, s36
    s_lshl_b32 s42, s41, 13
    s_add_u32 s42, s42, s38
    s_add_u32 s42, s42, {Q_OFF}
    s_add_u32 s43, s42, 4096
    s_lshl_b32 s20, s37, 16""")
    a(f"""v_bfe_u32 v3, v2, 2, 1
    v_bfe_u32 v4, v2, 4, 1
    v_xor_b32 v3, v3, v4
    v_and_b32 v4, 3, v2
    v_or_b32 v3, v3, v4
    v_mov_b32 v4, 0x3f803f80
    v_cmp_eq_u32 vcc, 0, v3
    v_and_b32 v5, 15, v2
    v_bfe_u32 v6, v2, 4, 1
    v_cndmask_b32 v{A.vSEL}, 0, v4, vcc
    v_cndmask_b32 v{A.vSEL+1}, 0, v4, vcc
    v_cndmask_b32 v{A.vSEL+2}, 0, v4, vcc
    v_cndmask_b32 v{A.vSEL+3}, 0, v4, vcc
    s_mov_b32 s44, {HO_T16}
    v_lshrrev_b32 v7, 5, v2
    v_lshlrev_b32 v5, 4, v5
    v_lshl_add_u32 v5, v7, 8, v5
    v_mad_u32_u24 v{A.vT}, v6, s44, v5
    s_waitcnt lgkmcnt(0)""")
    a("s_add_u32 s8, s4, s39\ns_addc_u32 s9, s5, 0\ns_mov_b32 s10, 131072\ns_mov_b32 s11, 0x00020000")
    a("s_add_u32 s12, s4, s40\ns_addc_u32 s13, s5, 0\ns_mov_b32 s14, 131072\ns_mov_b32 s15, 0x00020000")
    srd(a, 16, 4, WS_BYTES)
    a(at_ld(0, "K", 0)); a(at_ld(0, "K", 1))
    for i in range(8): a(f"buffer_load_dwordx4 v[{A.vQ+4*i}:{A.vQ+4*i+3}], v{A.vA}, s[16:19], s{42+i//4} offen offset:{(i%4)*1024}")
    a(at_ld(0, "V", 0)); a(at_ld(0, "V", 1))
    for kt in (1, 2):
        a("s_add_u32 s20, s20, 2048")
        for w in "KV":
            a(at_ld(kt, w, 0)); a(at_ld(kt, w, 1))
    a("s_add_u32 s20, s20, 2048")
    for i in range(64 + 16): a(f"v_mov_b32 v{A.vO+i}, 0")
    for i in range(8): a(f"v_mov_b32 v{A.vP+8+i}, 0")
    for i in range(8): a(f"v_mov_b32 v{A.vV+24+i}, 0")
    a("s_mov_b32 s21, 8\ns_waitcnt vmcnt(8)")
    a.ext(at_qk(0))
    a("s_nop 7\ns_nop 3")
    a(f".p2align 6\n{name}_loop:")
    for t in range(16):
        kt, qt = t // 4, t % 4
        mem = []; pre = []
        if qt == 0: mem = [at_ld(kt + 3, "K", 0)]
        if qt == 1: mem = [at_ld(kt + 3, "K", 1)]
        if qt == 2: mem = [at_ld(kt + 3, "V", 0)]
        if qt == 3:
            pre = ["s_waitcnt vmcnt(7)"]
            mem = [at_ld(kt + 3, "V", 1), "s_add_u32 s20, s20, 2048"]
        if t == 14: mem.append("s_sub_u32 s21, s21, 1")
        if t == 15: mem.append("s_cmp_lg_u32 s21, 0")
        a.ext(at_period(t, mem=mem, pre=pre))
    a(f"s_cbranch_scc1 {name}_loop")
    a("s_nop 1")
    a.ext(at_pv(15))
    a(f"""s_lshl_b32 s22, s3, 13
    s_lshl_b32 s23, s3, 9
    s_add_u32 s23, s23, 32768
    s_xor_b32 s24, s22, 16384
    s_xor_b32 s25, s23, 1024
    v_add_u32 v{A.vT+1}, s22, v{A.vA}
    v_add_u32 v{A.vT+2}, s24, v{A.vA}
    v_lshrrev_b32 v{A.vT+3}, 1, v{A.vA}
    v_add_u32 v{A.vT+4}, s25, v{A.vT+3}
    v_add_u32 v{A.vT+3}, s23, v{A.vT+3}
    s_waitcnt vmcnt(0)
    s_cmp_eq_u32 s37, 0
    s_cbranch_scc1 {name}_x0""")
    def send(base):
        a("s_nop 4")
        for i in range(8): a(f"ds_write_b128 v{A.vT+1}, v[{A.vO+16*base+4*i}:{A.vO+16*base+4*i+3}] offset:{1024*i}")
        a(f"v_mov_b32 v{A.vL+4*base+1}, v{A.vL+4*base+4}")
        a(f"ds_write_b64 v{A.vT+3}, v[{A.vL+4*base}:{A.vL+4*base+1}]")
    send(0)
    a("s_waitcnt lgkmcnt(0)")
    for i in range(32): a(f"v_mov_b32 v{A.vO+i}, v{A.vO+32+i}")
    for i in range(16): a(f"v_mov_b32 v{A.vQ+i}, v{A.vQ+16+i}")
    a(f"v_mov_b32 v{A.vL}, v{A.vL+8}\nv_mov_b32 v{A.vL+4}, v{A.vL+12}")
    a(f"s_branch {name}_x1\n{name}_x0:")
    send(2)
    a(f"s_waitcnt lgkmcnt(0)\n{name}_x1:\ns_barrier")
    a(f"ds_read_b64 v[{A.vL+8}:{A.vL+9}], v{A.vT+4}")
    for i in range(8): a(f"ds_read_b128 v[{A.vO+32+4*i}:{A.vO+32+4*i+3}], v{A.vT+2} offset:{1024*i}")
    a(f"""s_mov_b32 s26, {f2h(2.0**-64)}
    s_mov_b32 s27, {f2h(2.0**64)}
    s_waitcnt lgkmcnt(8)
    v_add_f32 v{A.vL}, v{A.vL}, v{A.vL+8}
    v_add_f32 v{A.vL+4}, v{A.vL+4}, v{A.vL+9}
    v_cmp_le_f32 s[28:29], s26, v{A.vL}
    v_cmp_le_f32 s[30:31], s26, v{A.vL+4}
    v_cmp_ge_f32 s[46:47], s27, v{A.vL}
    v_cmp_ge_f32 s[48:49], s27, v{A.vL+4}
    s_and_b64 s[28:29], s[28:29], s[30:31]
    s_and_b64 s[46:47], s[46:47], s[48:49]
    s_and_b64 s[28:29], s[28:29], s[46:47]""")
    for i in range(8):
        a(f"s_waitcnt lgkmcnt({7-i})")
        for r in range(4): a(f"v_add_f32 v{A.vO+4*i+r}, v{A.vO+4*i+r}, v{A.vO+32+4*i+r}")
    a(f"""s_cmp_eq_u64 s[28:29], -1
    s_cbranch_scc0 {name}_slow
    {name}_fin:
    v_rcp_f32 v{A.vL}, v{A.vL}
    v_rcp_f32 v{A.vL+4}, v{A.vL+4}
    s_lshl_b32 s22, s41, 3
    s_lshl_b32 s23, s37, 2
    s_add_u32 s22, s22, s23
    s_mul_i32 s22, s22, {HO_T16}
    s_lshl_b32 s23, s33, 10
    s_add_u32 s22, s22, s23
    s_add_u32 s22, s22, {HO_OFF + 112*1024}""")
    for qt in range(2):
        o = A.vO + 16 * qt
        for i in range(16): a(f"v_mul_f32 v{o+i}, v{o+i}, v{A.vL+4*qt}")
        for h in range(2):
            d = A.vS + 8 * qt + 4 * h
            idx = [4*h, 4*h+1, 4*h+2, 4*h+3, 8+4*h, 9+4*h, 10+4*h, 11+4*h]
            for j in range(4): a(f"v_cvt_pk_bf16_f32 v{d+j}, v{o+idx[2*j]}, v{o+idx[2*j+1]}")
            a(f"buffer_store_dwordx4 v[{d}:{d+3}], v{A.vT}, s[16:19], s22 offen offset:{512*h}")
        if qt == 0: a(f"s_add_u32 s22, s22, {2*HO_T16}")
    a(f"{name}_end:\ns_endpgm")
    M = A.vT + 5
    a(f"{name}_slow:")
    a(f"v_mov_b32 v{M}, 0xff800000\nv_mov_b32 v{M+1}, 0xff800000\ns_mov_b32 s20, 0")
    a(f"{name}_slow1:")
    a(at_ld(0, "K", 0)); a(at_ld(0, "K", 1))
    a("s_add_u32 s20, s20, 2048\ns_waitcnt vmcnt(0)")
    a.ext(at_qk(0)); a.ext(at_qk(1)); a("s_nop 7\ns_nop 3")
    for qt in range(2):
        for i in range(0, 16, 2): a(f"v_max3_f32 v{M+qt}, v{M+qt}, v{A.vS+16*qt+i}, v{A.vS+16*qt+i+1}")
    a(f"s_cmp_lt_u32 s20, 131072\ns_cbranch_scc1 {name}_slow1")
    a(f"""v_mov_b32 v{M+2}, v{M}
    v_mov_b32 v{M+3}, v{M+1}
    s_nop 1
    v_permlane32_swap_b32 v{M}, v{M+2}
    v_permlane32_swap_b32 v{M+1}, v{M+3}
    v_max_f32 v{M}, v{M}, v{M+2}
    v_max_f32 v{M+1}, v{M+1}, v{M+3}
    s_mov_b32 s20, 0""")
    for i in range(32): a(f"v_mov_b32 v{A.vO+i}, 0")
    for i in range(8): a(f"v_mov_b32 v{A.vL+i}, 0")
    a(f"{name}_slow2:")
    a(at_ld(0, "K", 0)); a(at_ld(0, "K", 1)); a(at_ld(0, "V", 0)); a(at_ld(0, "V", 1))
    a("s_add_u32 s20, s20, 2048\ns_waitcnt vmcnt(0)")
    a.ext(at_qk(0)); a.ext(at_qk(1)); a("s_nop 7\ns_nop 3")
    for qt in range(2):
        s = A.vS + 16 * qt; p = A.vP + 8 * qt
        for i in range(16): a(f"v_sub_f32 v{s+i}, v{s+i}, v{M+qt}")
        for i in range(16): a(f"v_exp_f32 v{s+i}, v{s+i}")
        a("s_nop 0")
        for i in range(8): a(f"v_cvt_pk_bf16_f32 v{p+i}, v{s+2*i}, v{s+2*i+1}")
    a("s_nop 1")
    a.ext(at_pv(0)); a.ext(at_pv(1))
    a(f"s_cmp_lt_u32 s20, 131072\ns_cbranch_scc1 {name}_slow2")
    a(f"s_nop 7\ns_nop 3\ns_branch {name}_fin")
    return a, dict(vgpr=256, accum=256, lds=32768 + 2048, grid=256, block=256)

class G2:
    vACC = 0
    vX = 128
    vW = 192
    vXA = 224
    vDA = 228
    vRA = 229
    vL16 = 231
    vOA = 232
    vR = 236
REG2 = 24576
def g2_act(s, kk, tt, off):
    d = G2.vX + 32 * (s % 2) + (kk * 4 + tt) * 4
    return f"buffer_load_dwordx4 v[{d}:{d+3}], v{G2.vXA+tt}, s[8:11], s20 offen offset:{off + kk*512}"
def g2_dma(s, i):
    return (f"s_add_u32 m0, s22, {(s % 4) * 4096 + i * 1024}", f"buffer_load_dwordx4 v{G2.vDA}, s[12:15], s{24+i} offen lds")
def g2_rd(s, kk, nt):
    d = G2.vW + 16 * (s % 2) + (kk * 2 + nt) * 4
    off = (s % 4) * 4096 + kk * 1024
    return [f"ds_read_b64_tr_b16 v[{d}:{d+1}], v{G2.vRA+nt} offset:{off}", f"ds_read_b64_tr_b16 v[{d+2}:{d+3}], v{G2.vRA+nt} offset:{off+2048}"]
G2_ADV = [f"s_add_u32 s{24+i}, s{24+i}, 65536" for i in range(4)]

def g2_step(s, dma, act, rd, vms, extra=None):
    G = G2; mf = []; fill = {}
    for kk in range(2):
        for tt in range(4):
            for nt in range(2):
                c = G.vACC + (tt * 2 + nt) * 16
                mf.append(M32(c, G.vW + 16 * (s % 2) + (kk * 2 + nt) * 4, G.vX + 32 * (s % 2) + (kk * 4 + tt) * 4, c))
    fill[-1] = [f"s_waitcnt vmcnt({vms[0]}) lgkmcnt(0)"]
    for i in range(16): fill[i] = []
    if dma:
        for i in range(4):
            m, ld = g2_dma(s + 3, i)
            fill[2 * i].append(m); fill[2 * i].append("s_nop 0"); fill[2 * i].append(ld)
        fill[8] += G2_ADV
    if act:
        for kk in range(2):
            for tt in range(4): fill[kk * 8 + tt * 2 + 1].append(g2_act(s + 2, kk, tt, (s % 4) * 1024))
    fill[7].append(f"s_waitcnt vmcnt({vms[1]})")
    if rd:
        r = sum([g2_rd(s + 1, kk, nt) for kk in range(2) for nt in range(2)], [])
        for i, x in enumerate(r): fill[6 + i].append(x)
    if extra:
        for k, v in extra.items(): fill[k] += v
    return weave(mf, fill)

def k3_gemm2(name):
    a = Asm(); G = G2
    a(f"""s_cmp_ge_u32 s2, 256
    s_cbranch_scc1 {name}_end
    s_load_dwordx2 s[40:41], s[0:1], 0
    s_load_dwordx2 s[42:43], s[0:1], 16
    s_load_dwordx4 s[44:47], s[0:1], 48
    s_load_dwordx2 s[48:49], s[0:1], 72
    v_lshrrev_b32 v1, 6, v0
    v_and_b32 v2, 63, v0
    v_readfirstlane_b32 s3, v1
    s_and_b32 s33, s2, 7
    s_lshr_b32 s34, s2, 3
    s_lshr_b32 s35, s33, 1
    s_lshl_b32 s35, s35, 2
    s_lshr_b32 s36, s34, 3
    s_add_u32 s35, s35, s36
    s_and_b32 s36, s33, 1
    s_lshl_b32 s36, s36, 3
    s_and_b32 s37, s34, 7
    s_add_u32 s36, s36, s37
    s_lshl_b32 s37, s36, 7
    s_mul_i32 s38, s35, {8*HO_T16}
    s_add_u32 s38, s38, {HO_OFF}
    s_mul_i32 s22, s3, {REG2}
    s_mov_b32 s50, {HO_T16}""")
    a(f"""v_and_b32 v3, 15, v2
    v_bfe_u32 v4, v2, 4, 1
    v_lshrrev_b32 v5, 5, v2
    v_lshlrev_b32 v6, 4, v3
    v_lshl_add_u32 v6, v5, 8, v6
    v_mad_u32_u24 v{G.vXA}, v4, s50, v6
    v_add_u32 v{G.vXA+1}, {2*HO_T16}, v{G.vXA}
    v_add_u32 v{G.vXA+2}, {4*HO_T16}, v{G.vXA}
    v_add_u32 v{G.vXA+3}, {6*HO_T16}, v{G.vXA}
    v_lshrrev_b32 v6, 3, v2
    v_and_b32 v7, 7, v2
    v_lshlrev_b32 v8, 2, v4
    v_xor_b32 v7, v7, v8
    v_lshlrev_b32 v7, 4, v7
    v_lshl_add_u32 v{G.vDA}, v6, 11, v7
    v_bfe_u32 v6, v2, 2, 2
    v_lshl_add_u32 v6, v5, 2, v6
    v_lshlrev_b32 v6, 7, v6
    v_and_b32 v7, 3, v2
    v_lshl_add_u32 v6, v7, 3, v6
    v_lshl_add_u32 v6, v4, 5, v6
    v_add_u32 v6, s22, v6
    v_bfe_u32 v7, v2, 3, 1
    v_lshl_add_u32 v{G.vRA}, v7, 6, v6
    v_xor_b32 v7, 1, v7
    v_lshl_add_u32 v{G.vRA+1}, v7, 6, v6
    v_lshlrev_b32 v{G.vL16}, 4, v2
    v_and_b32 v6, 31, v2
    v_lshlrev_b32 v6, 11, v6
    v_lshl_add_u32 v{G.vOA}, v5, 4, v6
    s_mul_i32 s20, s3, {28*1024}
    s_mul_i32 s24, s3, {28*65536}
    s_add_u32 s25, s24, 16384
    s_add_u32 s26, s24, 32768
    s_add_u32 s27, s24, 49152
    s_lshl_b32 s39, s35, 2
    s_add_u32 s39, s39, s3
    s_lshl_b32 s39, s39, 16
    s_add_u32 s39, s39, s37
    s_waitcnt lgkmcnt(0)""")
    srd(a, 8, 48, WS_BYTES, "s38")
    srd(a, 12, 44, 3584*2048, "s37")
    srd(a, 16, 40, 4194304)
    srd(a, 28, 46, 4194304)
    a("s_add_u32 s42, s42, s37\ns_addc_u32 s43, s43, 0\ns_sub_u32 s51, 2097152, s37")
    def dma(s):
        for i in range(4):
            m, ld = g2_dma(s, i); a(m); a("s_nop 0"); a(ld)
        a.ext(G2_ADV)
    def act(s):
        for kk in range(2):
            for tt in range(4): a(g2_act(s, kk, tt, s * 1024))
    dma(0); dma(1); act(0); dma(2); act(1)
    for i in range(4): a(f"buffer_load_dwordx4 v[{G.vR+4*i}:{G.vR+4*i+3}], v{G.vOA}, s[16:19], s39 offen offset:{32*i}")
    a("s_add_u32 s20, s20, 2048\ns_mov_b32 s21, 0")
    for i in range(128): a(f"v_mov_b32 v{G.vACC+i}, 0")
    a("s_waitcnt vmcnt(0)")
    for kk in range(2):
        for nt in range(2): a.ext(g2_rd(0, kk, nt))
    for i in range(4):
        a(f"v_permlane32_swap_b32 v{G.vR+4*i}, v{G.vR+4*i+2}\nv_permlane32_swap_b32 v{G.vR+4*i+1}, v{G.vR+4*i+3}")
    a(f".p2align 6\n{name}_loop:")
    for u in range(4):
        ex = {}
        if u == 0:
            ex = {9: ["s_cmp_eq_u32 s21, 6", "s_cselect_b32 s12, s42, s12", "s_cselect_b32 s13, s43, s13"],
                  10: ["s_cselect_b32 s14, s51, s14", "s_cselect_b32 s24, s52, s24", "s_cselect_b32 s25, s53, s25"],
                  11: ["s_cselect_b32 s26, s54, s26", "s_cselect_b32 s27, s55, s27"]}
        if u == 1:
            ex = {15: ["s_cmp_eq_u32 s21, 6", "s_cselect_b32 s20, s56, s20"]}
        if u == 3:
            ex = {15: ["s_add_u32 s20, s20, 4096", "s_add_u32 s21, s21, 1", "s_cmp_lg_u32 s21, 8"]}
        a.ext(g2_step(u, True, True, True, (16, 20), ex))
    a(f"s_cbranch_scc1 {name}_loop")
    a.ext(g2_step(0, True, True, True, (16, 20)))
    a.ext(g2_step(1, False, True, True, (16, 16)))
    a.ext(g2_step(2, False, False, True, (8, 8)))
    a.ext(g2_step(3, False, False, False, (4, 0)))
    a(f"v_add_u32 v{G.vXA}, s22, v{G.vL16}\ns_nop 7")
    for w in range(4):
        a(f"s_cmp_eq_u32 s3, {w}\ns_cbranch_scc0 {name}_r{w}")
        for d in range(1, 4):
            tt = (w + d) % 4
            for i in range(8): a(f"ds_write_b128 v{G.vXA}, v[{tt*32+4*i}:{tt*32+4*i+3}] offset:{(d-1)*8192 + i*1024}")
        a("s_waitcnt lgkmcnt(0)\ns_barrier")
        for d in range(1, 4):
            src = (w - d) % 4
            base = src * REG2 + (d - 1) * 8192
            a(f"v_add_u32 v{G.vXA+d}, {base}, v{G.vL16}")
            for i in range(8): a(f"ds_read_b128 v[{128+(d-1)*32+4*i}:{128+(d-1)*32+4*i+3}], v{G.vXA+d} offset:{i*1024}")
            if d >= 2:
                a("s_waitcnt lgkmcnt(8)")
                for i in range(32): a(f"v_add_f32 v{w*32+i}, v{w*32+i}, v{128+(d-2)*32+i}")
        a("s_waitcnt lgkmcnt(0)")
        for i in range(32): a(f"v_add_f32 v{128+i}, v{w*32+i}, v{192+i}")
        a(f"s_branch {name}_fin\n{name}_r{w}:")
    a(f"{name}_fin:\ns_mov_b32 s23, 0xffff0000")
    for i in range(4):
        b = 128 + 8 * i
        for j in range(4):
            a(f"v_lshlrev_b32 v{2*j}, 16, v{G.vR+4*i+j}\nv_and_b32 v{2*j+1}, s23, v{G.vR+4*i+j}")
        for j in range(8): a(f"v_add_f32 v{b+j}, v{b+j}, v{j}")
        for j in range(4): a(f"v_cvt_pk_bf16_f32 v{16+4*i+j}, v{b+2*j}, v{b+2*j+1}")
        a(f"s_nop 1\nv_permlane32_swap_b32 v{16+4*i}, v{16+4*i+2}\nv_permlane32_swap_b32 v{16+4*i+1}, v{16+4*i+3}")
        a(f"buffer_store_dwordx4 v[{16+4*i}:{19+4*i}], v{G.vOA}, s[28:31], s39 offen offset:{32*i}")
    a(f"{name}_end:\ns_endpgm")
    k = a.L.index("s_add_u32 s20, s20, 2048")
    a.L[k:k] = ["s_lshl_b32 s52, s3, 19", "s_add_u32 s53, s52, 16384", "s_add_u32 s54, s52, 32768", "s_add_u32 s55, s52, 49152",
                "s_lshl_b32 s56, s3, 13", f"s_add_u32 s56, s56, {112*1024 - 2048}"]
    return a, dict(vgpr=256, accum=256, lds=4*REG2, grid=256, block=256)
```

```python
import sys
from asmlib import *
import k01, k23, hazard
NAME = "parallel_sum__mha_block__glu_gated_bilinear__prompt"
def build(ks):
    ref = open(f"cdna_kernels/{NAME}.s.ref").read().split("\n")
    head = [l for l in ref if l.startswith(";") and "@launch" not in l]
    out = head[:]
    for n, (a, m) in ks: out.append(f"; @launch kernel={n} grid=({m['grid']},1,1) block=({m['block']},1,1) lds={m['lds']}")
    out += ['.amdgcn_target "amdgcn-amd-amdhsa--gfx950"', ".text"]
    for n, (a, m) in ks:
        out.append(khead(n) + a.text())
    out.append('.section .rodata,"a"')
    for n, (a, m) in ks: out.append(kdesc(n, m["vgpr"], m["accum"]))
    return "\n".join(out)
if __name__ == "__main__":
    ks = [("ln_kernel", k01.k0_ln("ln")), ("gemm1_kernel", k01.k1_gemm1("g1")), ("attn_kernel", k23.k2_attn("at")), ("gemm2_kernel", k23.k3_gemm2("g2"))]
    t = build(ks)
    dst = sys.argv[1] if len(sys.argv) > 1 else f"cdna_kernels/{NAME}.s"
    open(dst, "w").write(t)
    print("hazards:", hazard.check(t), "bytes", len(t))
```

```python
from asmlib import *
import math, os
WS_BYTES = 268435456
XN_OFF = 0
HO_OFF = 4 << 20
HO_T16 = 144 * 1024
Q_OFF = 24 << 20
K_OFF = 28 << 20
V_OFF = 32 << 20
QSCALE = (32 ** -0.5) * math.log2(math.e)

def wave_allsum(a, regs, tmp):
    for mod in ("quad_perm:[1,0,3,2]", "quad_perm:[2,3,0,1]", "row_half_mirror", "row_mirror"):
        a("s_nop 1")
        for r in regs: a(f"v_add_f32_dpp v{r}, v{r}, v{r} {mod} row_mask:0xf bank_mask:0xf")
    for op in ("v_permlane16_swap_b32", "v_permlane32_swap_b32"):
        for r, t in zip(regs, tmp): a(f"v_mov_b32 v{t}, v{r}")
        a("s_nop 1")
        for r, t in zip(regs, tmp): a(f"{op} v{r}, v{t}")
        for r, t in zip(regs, tmp): a(f"v_add_f32 v{r}, v{r}, v{t}")

def k0_ln(name):
    a = Asm()
    a(f"""s_cmp_ge_u32 s2, 256
    s_cbranch_scc1 {name}_end
    s_load_dwordx2 s[4:5], s[0:1], 0
    s_load_dwordx2 s[6:7], s[0:1], 72
    v_lshrrev_b32 v1, 6, v0
    v_and_b32 v2, 63, v0
    v_readfirstlane_b32 s3, v1
    v_lshlrev_b32 v3, 4, v2
    s_lshl_b32 s16, s2, 3
    s_lshl_b32 s17, s3, 1
    s_add_u32 s16, s16, s17
    s_lshl_b32 s16, s16, 11
    s_waitcnt lgkmcnt(0)""")
    srd(a, 8, 4, 4194304)
    for i in range(4): a(f"buffer_load_dwordx4 v[{4+4*i}:{7+4*i}], v3, s[8:11], s16 offen offset:{1024*i}")
    srd(a, 12, 6, 4194304)
    a(f"""v_and_b32 v20, 7, v2
    v_lshlrev_b32 v21, 1, v1
    v_xor_b32 v21, v21, v20
    v_xor_b32 v22, 1, v21
    v_lshlrev_b32 v23, 7, v2
    v_lshl_add_u32 v21, v21, 4, v23
    v_lshl_add_u32 v22, v22, 4, v23
    v_lshrrev_b32 v24, 3, v0
    v_and_b32 v25, 7, v0
    v_and_b32 v26, 7, v24
    v_xor_b32 v26, v26, v25
    v_lshlrev_b32 v26, 4, v26
    v_lshl_add_u32 v26, v24, 7, v26
    v_lshlrev_b32 v27, 4, v25
    v_lshl_add_u32 v27, v24, 8, v27
    s_lshr_b32 s18, s2, 1
    s_lshl_b32 s18, s18, 15
    s_and_b32 s19, s2, 1
    s_lshl_b32 s19, s19, 7
    s_add_u32 s18, s18, s19
    s_add_u32 s19, s18, 8192
    s_add_u32 s20, s18, 16384
    s_add_u32 s21, s18, 24576
    s_mov_b32 s22, 0xffff0000
    s_mov_b32 s23, {f2h(1.0/1024)}
    s_mov_b32 s24, {f2h(1e-5)}""")
    srd(a, 28, 6, WS_BYTES)
    a(f"""s_lshl_b32 s25, s2, 2
    s_add_u32 s25, s25, s3
    s_lshl_b32 s25, s25, 2
    s_add_u32 s25, s25, {40 << 20}
    v_mov_b32 v28, 0""")
    X = 32
    a(";stamp 0")
    for row in range(2):
        a(f"s_waitcnt vmcnt({2-2*row})")
        for j in range(8):
            a(f"v_lshlrev_b32 v{X+16*row+2*j}, 16, v{4+8*row+j}")
            a(f"v_and_b32 v{X+16*row+2*j+1}, s22, v{4+8*row+j}")
        T = 64 + 8*row
        for j in range(8): a(f"v_add_f32 v{T+j}, v{X+16*row+j}, v{X+16*row+8+j}")
        for st in (4, 2, 1):
            for j in range(st): a(f"v_add_f32 v{T+j}, v{T+j}, v{T+j+st}")
    a(";stamp 1")
    wave_allsum(a, [64, 72], [65, 73])
    a("v_mul_f32 v64, s23, v64\nv_mul_f32 v72, s23, v72")
    D = 80
    for row in range(2):
        for j in range(16): a(f"v_sub_f32 v{D+16*row+j}, v{X+16*row+j}, v{64+8*row}")
        for j in range(4): a(f"v_mul_f32 v{66+8*row+j}, v{D+16*row+j}, v{D+16*row+j}")
        for j in range(4, 16): a(f"v_fmac_f32 v{66+8*row+j%4}, v{D+16*row+j}, v{D+16*row+j}")
        a(f"v_add_f32 v{66+8*row}, v{66+8*row}, v{67+8*row}\nv_add_f32 v{68+8*row}, v{68+8*row}, v{69+8*row}\nv_add_f32 v{66+8*row}, v{66+8*row}, v{68+8*row}")
    wave_allsum(a, [66, 74], [67, 75])
    a("""v_mul_f32 v66, s23, v66
    v_mul_f32 v74, s23, v74
    v_cvt_pk_bf16_f32 v64, v64, v72
    v_cvt_pk_bf16_f32 v66, v66, v74
    v_and_b32 v72, s22, v64
    v_lshlrev_b32 v64, 16, v64
    v_and_b32 v74, s22, v66
    v_lshlrev_b32 v66, 16, v66
    v_add_f32 v66, s24, v66
    v_add_f32 v74, s24, v74
    v_cvt_pk_bf16_f32 v66, v66, v74
    v_and_b32 v74, s22, v66
    v_lshlrev_b32 v66, 16, v66
    v_sqrt_f32 v74, v74
    v_sqrt_f32 v66, v66
    s_nop 0
    v_cvt_pk_bf16_f32 v66, v66, v74
    v_and_b32 v74, s22, v66
    v_lshlrev_b32 v66, 16, v66
    v_rcp_f32 v74, v74
    v_rcp_f32 v66, v66""")
    for row in range(2):
        b = X + 16*row
        for j in range(16): a(f"v_sub_f32 v{b+j}, v{b+j}, v{64+8*row}")
        for j in range(8): a(f"v_cvt_pk_bf16_f32 v{D+16*row+j}, v{b+2*j}, v{b+2*j+1}")
        for j in range(8):
            a(f"v_lshlrev_b32 v{b+2*j}, 16, v{D+16*row+j}")
            a(f"v_and_b32 v{b+2*j+1}, s22, v{D+16*row+j}")
        for j in range(16): a(f"v_mul_f32 v{b+j}, v{b+j}, v{66+8*row}")
        for j in range(8): a(f"v_cvt_pk_bf16_f32 v{D+16*row+8+j}, v{b+2*j}, v{b+2*j+1}")
        a(f"ds_write_b128 v{21+row}, v[{D+16*row+8}:{D+16*row+11}]")
        a(f"ds_write_b128 v{21+row}, v[{D+16*row+12}:{D+16*row+15}] offset:8192")
    a("buffer_store_dword v28, v28, s[28:31], s25 offen")
    a("s_waitcnt lgkmcnt(0)\ns_barrier\n;stamp 2")
    for i in range(4): a(f"ds_read_b128 v[{4+4*i}:{7+4*i}], v26 offset:{4096*i}")
    for i in range(4):
        a(f"s_waitcnt lgkmcnt({3-i})")
        a(f"buffer_store_dwordx4 v[{4+4*i}:{7+4*i}], v27, s[12:15], s{18+i} offen")
    a(f"{name}_end:\ns_endpgm")
    return a, dict(nm=name, vgpr=128, accum=128, lds=16384, grid=256, block=256)

SLOT = 20480
class G1:
    vXN = 0
    vWF = 64
    vRA = 84
    vXA = 92
    vGU = 96; vQK = 97
    vT = 100
    vACC = 192
def acc(i, n=4):
    return ar(i, n) if i < 256 else vr(G1.vACC + i - 256, n)

def g1_reads(s, f):
    slot = s % 4; p = f // 4; cb = f % 4
    va = G1.vRA + cb + (4 if slot >= 2 else 0)
    off = (slot % 2) * SLOT + p * 4096
    d = G1.vWF + 4 * (f % 5)
    return [f"ds_read_b64_tr_b16 v[{d}:{d+1}], v{va} offset:{off}", f"ds_read_b64_tr_b16 v[{d+2}:{d+3}], v{va} offset:{off+512}"]
def g1_dma(typ, s, p):
    isq = p == 4 or (typ == "C" and p >= 2)
    return (f"s_add_u32 m0, s31, {(s % 4) * SLOT + p * 4096}",
            f"buffer_load_dwordx4 v{G1.vQK if isq else G1.vGU}, s[{4+4*p}:{7+4*p}], s{29 if isq else 28} offen lds")
def g1_xn(s, tt, off):
    d = G1.vXN + 16 * (s % 4) + 4 * tt
    return f"buffer_load_dwordx4 v[{d}:{d+3}], v{G1.vXA+tt}, s[24:27], s30 offen offset:{off}"
G1_ADV = ["s_add_u32 s28, s28, %d" % (32*7168), "s_add_u32 s29, s29, %d" % (32*6144)]

def g1_step(typ, s, pre, vm, bar=True, last=False, extra=None):
    mf = []; fill = {}
    for f in range(20):
        w = G1.vWF + 4 * (f % 5)
        for tt in range(4):
            x = G1.vXN + 16 * (s % 4) + 4 * tt
            c = acc((f * 4 + tt) * 4)
            if typ == "C" and 8 <= f < 16: mf.append(f"v_mfma_f32_16x16x32_bf16 {c}, v[{x}:{x+3}], v[{w}:{w+3}], {c}")
            else: mf.append(f"v_mfma_f32_16x16x32_bf16 {c}, v[{w}:{w+3}], v[{x}:{x+3}], {c}")
        g = 4 * f
        nf = f + 4
        if nf < 20: r = g1_reads(s, nf)
        elif not last: r = g1_reads(s + 1, nf - 20)
        else: r = []
        for i, x in enumerate(r): fill.setdefault(g + i, []).append(x)
        if f < 19:
            outstanding = 6 if (not last or f + 4 < 20) else max(0, 2 * (19 - (f + 1)))
            fill.setdefault(g + 3, []).append(f"s_waitcnt lgkmcnt({outstanding})")
    fill[-1] = [f"s_waitcnt vmcnt({vm}) lgkmcnt(6)"] + (["s_barrier"] if bar else [])
    if pre:
        for p in range(5):
            m, ld = g1_dma(typ, s + 3, p)
            fill.setdefault(4 * p + 2, []).append(m)
            fill[4 * p + 3].insert(0, ld)
        for tt in range(4):
            fill.setdefault(4 * (5 + tt) + 2, []).append(g1_xn(s + 3, tt, (s % 4) * 1024))
        fill.setdefault(4 * 10 + 2, []).extend(G1_ADV)
    if extra:
        for k, v in extra.items(): fill.setdefault(k, []).extend(v)
    return weave(mf, fill)

def g1_pack_store(a, srcs, mul, tmp, voff, soff, off):
    def get(i, t):
        if i < 256:
            a(f"v_accvgpr_read_b32 v{t}, a{i}"); return t
        return G1.vACC + i - 256
    if mul == "gu":
        g = [get(i, tmp + j) for j, i in enumerate(srcs[:8])]
        u = [get(i, tmp + 8 + j) for j, i in enumerate(srcs[8:])]
        for j in range(8): a(f"v_mul_f32 v{tmp+j}, v{g[j]}, v{u[j]}")
        g = [tmp + j for j in range(8)]
    else:
        g = [get(i, tmp + j) for j, i in enumerate(srcs)]
        if mul:
            for j in range(8): a(f"v_mul_f32 v{tmp+j}, {mul}, v{g[j]}")
            g = [tmp + j for j in range(8)]
    for j in range(4): a(f"v_cvt_pk_bf16_f32 v{tmp+16+j}, v{g[2*j]}, v{g[2*j+1]}")
    a(f"buffer_store_dwordx4 v[{tmp+16}:{tmp+19}], v{voff}, s[24:27], {soff} offen offset:{off}" + os.environ.get("STM", ""))

def k1_gemm1(name):
    a = Asm(); G = G1
    a(f"""s_cmp_ge_u32 s2, 256
    s_cbranch_scc1 {name}_end
    s_load_dwordx2 s[40:41], s[0:1], 8
    s_load_dwordx4 s[44:47], s[0:1], 32
    s_load_dwordx2 s[48:49], s[0:1], 72
    s_load_dwordx2 s[64:65], s[0:1], 48
    s_load_dwordx2 s[68:69], s[0:1], 16
    v_lshrrev_b32 v1, 6, v0
    v_and_b32 v2, 63, v0
    v_readfirstlane_b32 s3, v1
    s_and_b32 s33, s2, 7
    s_lshr_b32 s34, s2, 3
    s_and_b32 s35, s34, 3
    s_lshr_b32 s34, s34, 2
    s_mul_i32 s36, s33, 7
    s_lshl_b32 s37, s35, 1
    s_add_u32 s36, s36, s37
    s_lshl_b32 s37, s36, 7
    s_add_u32 s38, s37, 128
    s_lshl_b32 s39, s33, 8
    s_lshl_b32 s31, s3, 10""")
    a(f"""v_lshrrev_b32 v3, 3, v2
    v_lshl_add_u32 v3, v1, 3, v3
    v_bfe_u32 v4, v2, 4, 1
    v_and_b32 v5, 1, v1
    v_lshl_or_b32 v4, v5, 1, v4
    v_lshlrev_b32 v4, 1, v4
    v_and_b32 v5, 7, v2
    v_xor_b32 v4, v4, v5
    v_lshlrev_b32 v4, 4, v4
    s_movk_i32 s50, 7168
    s_movk_i32 s51, 6144
    v_mad_u32_u24 v{G.vGU}, v3, s50, v4
    v_mad_u32_u24 v{G.vQK}, v3, s51, v4""")
    a(f"""s_lshl_b32 s52, s34, 4
    s_lshl_b32 s53, s3, 2
    s_add_u32 s52, s52, s53
    s_lshl_b32 s53, s52, 15
    v_lshlrev_b32 v{G.vT}, 4, v2
    v_add_u32 v{G.vXA}, s53, v{G.vT}
    v_add_u32 v{G.vXA+1}, 0x8000, v{G.vXA}
    v_add_u32 v{G.vXA+2}, 0x10000, v{G.vXA}
    v_add_u32 v{G.vXA+3}, 0x18000, v{G.vXA}""")
    a(f"""v_lshrrev_b32 v3, 4, v2
    v_bfe_u32 v4, v2, 2, 2
    v_lshl_add_u32 v5, v3, 3, v4
    v_lshlrev_b32 v5, 7, v5
    v_and_b32 v6, 3, v2
    v_lshl_add_u32 v5, v6, 3, v5
    v_bfe_u32 v6, v2, 3, 2""")
    for cb in range(4):
        a(f"v_xor_b32 v7, {cb}, v6\nv_lshl_add_u32 v{G.vRA+cb}, v7, 5, v5\nv_add_u32 v{G.vRA+4+cb}, {2*SLOT}, v{G.vRA+cb}")
    a(f"""v_and_b32 v4, 15, v2
    v_lshlrev_b32 v5, 9, v3
    v_lshl_add_u32 v{G.vT+1}, v4, 4, v5
    v_and_b32 v6, 7, v2
    v_lshl_add_u32 v5, v6, 4, v5
    v_bfe_u32 v6, v2, 3, 1
    v_lshl_add_u32 v{G.vT+2}, v6, 8, v5
    s_mov_b32 s28, 0
    s_mov_b32 s29, 0
    s_mov_b32 s30, 0
    s_waitcnt lgkmcnt(0)""")
    srd(a, 24, 48, WS_BYTES)
    a(f"""s_mov_b32 s66, {3584*2048}
    s_mov_b32 s67, 0x00020000
    s_mov_b32 s70, {1024*2048}
    s_mov_b32 s71, 0x00020000
    s_lshl_b32 s61, s2, 2
    s_add_u32 s61, s61, s3
    s_lshl_b32 s61, s61, 13
    v_lshlrev_b32 v{G.vT+3}, 7, v2""")
    srd(a, 4, 44, 1024*7168, "s37")
    srd(a, 8, 46, 1024*7168, "s37")
    a(f"s_cmp_eq_u32 s35, 3\ns_cbranch_scc1 {name}_C")
    for typ in "AC":
        if typ == "A":
            srd(a, 12, 44, 1024*7168, "s38")
            srd(a, 16, 46, 1024*7168, "s38")
            a("""s_lshl_b32 s54, s35, 7
            s_cmp_eq_u32 s35, 2
            s_cselect_b32 s54, 2176, s54
            s_add_u32 s54, s54, s39""")
            srd(a, 20, 40, 1024*6144, "s54")
        else:
            a(f"{name}_C:")
            a("s_add_u32 s54, s39, 4096"); srd(a, 12, 40, 1024*6144, "s54")
            a("s_add_u32 s54, s39, 4224"); srd(a, 16, 40, 1024*6144, "s54")
            a("s_add_u32 s54, s39, 2048"); srd(a, 20, 40, 1024*6144, "s54")
        for s in range(3):
            for p in range(5):
                m, ld = g1_dma(typ, s, p); a(m); a("s_nop 0"); a(ld)
            for tt in range(4): a(g1_xn(s, tt, s * 1024))
            a.ext(G1_ADV)
        a("s_movk_i32 s30, 3072\ns_mov_b32 s32, 7")
        for i in range(256): a(f"v_accvgpr_write_b32 a{i}, 0")
        for i in range(64): a(f"v_mov_b32 v{G.vACC+i}, 0")
        a(";stamp 0\ns_waitcnt vmcnt(22)\ns_barrier\n;stamp 1")
        for f in range(4): a.ext(g1_reads(0, f))
        a(f".p2align 6\n{name}_loop{typ}:")
        for u in range(4):
            ex = {46: ["s_add_u32 s30, s30, 4096", "s_sub_u32 s32, s32, 1"], 50: ["s_cmp_lg_u32 s32, 0"]} if u == 3 else None
            a.ext(g1_step(typ, u, True, 13, extra=ex))
        a(f"s_cbranch_scc1 {name}_loop{typ}")
        a.ext(g1_step(typ, 0, True, 13))
        pf = {2: [f"buffer_load_dword v{G.vT+4}, v{G.vT+3}, s[64:67], s61 offen"], 6: [f"buffer_load_dword v{G.vT+5}, v{G.vT+3}, s[68:71], s61 offen"]}
        a.ext(g1_step(typ, 1, False, 13, extra=pf))
        a.ext(g1_step(typ, 2, False, 6))
        a.ext(g1_step(typ, 3, False, 2, bar=False, last=True))
        a(";stamp 2")
        a(f"""s_mul_i32 s56, s52, {HO_T16}
        s_lshl_b32 s57, s36, 11
        s_add_u32 s56, s56, s57
        s_add_u32 s56, s56, {HO_OFF}
        s_lshl_b32 s57, s52, 10
        s_lshl_b32 s58, s33, 19
        s_add_u32 s57, s57, s58""")
        n = 0
        def tmp():
            nonlocal n; n += 1
            return 0 + 20 * (n % 4)
        for tt in range(4):
            for pp in range(2 if typ == "A" else 1):
                for j in range(2):
                    f = 8 * pp + 2 * j
                    gs = [((f + e) * 4 + tt) * 4 + r for e in range(2) for r in range(4)]
                    us = [((f + 4 + e) * 4 + tt) * 4 + r for e in range(2) for r in range(4)]
                    g1_pack_store(a, gs + us, "gu", tmp(), G.vT, "s56", (2 * pp + j) * 1024)
            if tt < 3: a(f"s_add_u32 s56, s56, {HO_T16}")
        if typ == "C":
            for hh in range(4):
                a(f"s_add_u32 s58, s57, {V_OFF + hh * 131072}")
                for e in range(2):
                    f = 8 + 2 * hh + e
                    for t2 in range(2):
                        src = [(f * 4 + 2 * t2 + b) * 4 + r for b in range(2) for r in range(4)]
                        g1_pack_store(a, src, None, tmp(), G.vT + 1, "s58", t2 * 2048 + e * 256)
            a(f"s_add_u32 s58, s57, {K_OFF}")
        else:
            a(f"""s_lshl_b32 s59, s35, 18
            s_add_u32 s59, s59, {Q_OFF}
            s_cmp_eq_u32 s35, 2
            s_cselect_b32 s59, {K_OFF + 2*131072}, s59
            s_add_u32 s58, s57, s59
            s_cmp_eq_u32 s35, 2
            s_cbranch_scc1 {name}_kst
            s_mov_b32 s60, {f2h(QSCALE)}""")
            for j in range(2):
                for tt in range(4):
                    src = [((16 + 2 * j + e) * 4 + tt) * 4 + r for e in range(2) for r in range(4)]
                    g1_pack_store(a, src, "s60", tmp(), G.vT + 1, "s58", (tt // 2) * 2048 + (tt % 2) * 256)
                if j == 0: a("s_add_u32 s58, s58, 131072")
            a("s_endpgm")
    a(f"{name}_kst:")
    for j in range(2):
        for tt in range(4):
            src = [((16 + 2 * j + e) * 4 + tt) * 4 + r for e in range(2) for r in range(4)]
            g1_pack_store(a, src, None, tmp(), G.vT + 2, "s58", (tt // 2) * 2048 + (tt % 2) * 128)
        if j == 0: a("s_add_u32 s58, s58, 131072")
    a(f"{name}_end:\ns_endpgm")
    return a, dict(nm=name, vgpr=512, accum=256, lds=4*SLOT, grid=256, block=256)
```

```python
from asmlib import *
from k01 import *

class AT:
    vQ = 0
    vO = 32
    vL = 96
    vS = 112
    vP = 144
    vK = 160
    vV = 192
    vSEL = 224
    vA = 228
    vT = 229
def M32(d, x, y, c): return f"v_mfma_f32_32x32x16_bf16 v[{d}:{d+15}], v[{x}:{x+3}], v[{y}:{y+3}], " + (f"v[{c}:{c+15}]" if c is not None else "0")
def M16(d, x, y, c): return f"v_mfma_f32_16x16x32_bf16 v[{d}:{d+3}], v[{x}:{x+3}], v[{y}:{y+3}], " + (f"v[{c}:{c+3}]" if c is not None else "0")

def at_qk(t):
    A = AT; s = A.vS + 16 * (t % 2); k = A.vK + 8 * ((t // 4) % 4); q = A.vQ + 8 * (t % 4)
    return [M32(s, k, q, None), M32(s, k + 4, q + 4, s)]
def at_pv(t):
    A = AT; p = A.vP + 8 * (t % 2); v = A.vV + 8 * ((t // 4) % 4); o = A.vO + 16 * (t % 4); l = A.vL + 4 * (t % 4)
    return [M32(o, v, p, o), M32(o, v + 4, p + 4, o), M16(l, A.vSEL, p, l), M16(l, A.vSEL, p + 4, l)]
def at_ld(kt, which, kk, srdK=8, srdV=12, soff="s20"):
    A = AT; d = (A.vK if which == "K" else A.vV) + 8 * (kt % 4) + 4 * kk
    r = srdK if which == "K" else srdV
    return f"buffer_load_dwordx4 v[{d}:{d+3}], v{A.vA}, s[{r}:{r+3}], {soff} offen offset:{kk*1024}"

def at_period(t, qk=True, pv=True, mem=None, pre=None):
    A = AT; s = A.vS + 16 * (t % 2); p = A.vP + 8 * (t % 2)
    E = [f"v_exp_f32 v{s+i}, v{s+i}" for i in range(16)]
    C = [f"v_cvt_pk_bf16_f32 v{p+i}, v{s+2*i}, v{s+2*i+1}" for i in range(8)]
    q = at_qk(t + 1) if qk else [None, None]
    v = at_pv(t - 1) if pv else [None] * 4
    mem = mem or []
    L = list(pre or [])
    L += [q[0]] + mem[:1] + E[0:4]
    L += [q[1]] + mem[1:2] + [E[4], C[0], E[5], C[1], E[6]]
    L += [v[0]] + mem[2:3] + [E[7], C[2], E[8], E[9], C[3]]
    L += [v[2], E[10], E[11], C[4]]
    L += [v[1], E[12], E[13], C[5], E[14], E[15]]
    L += [v[3], C[6], C[7]]
    return [x for x in L if x]

FLAG_OFF = 40 << 20
def k2_attn(name):
    a = Asm()
    a(f"""s_cmp_ge_u32 s2, 256
    s_cbranch_scc1 {name}_end
    v_lshrrev_b32 v1, 6, v0
    v_and_b32 v2, 63, v0
    v_readfirstlane_b32 s3, v1""")
    attn_body(a, name, False, 0)
    return a, dict(nm=name, vgpr=256, accum=256, lds=32768 + 2048, grid=256, block=256)

def k2_fused(name, prioA, prioG):
    a = Asm()
    XB = 4 * REG2
    a(f"""s_cmp_ge_u32 s2, 256
    s_cbranch_scc1 {name}_end
    v_lshrrev_b32 v1, 6, v0
    v_and_b32 v2, 63, v0
    v_readfirstlane_b32 s3, v1
    v_mov_b32 v3, {XB + 32768 + 2048}
    v_lshl_add_u32 v3, v1, 2, v3
    v_mov_b32 v4, 0
    ds_write_b32 v3, v4
    s_cmp_ge_u32 s3, 4
    s_cbranch_scc1 {name}_gemm
    s_setprio {prioA}""")
    attn_body(a, name, True, XB)
    a(f"{name}_gemm:\ns_setprio {prioG}")
    gemm2_body(a, name + "g", True)
    return a, dict(nm=name, vgpr=256, accum=256, lds=XB + 32768 + 2048 + 64, grid=256, block=512)

def attn_body(a, name, fused, XB):
    A = AT
    a(f"""s_load_dwordx2 s[4:5], s[0:1], 72
    v_lshlrev_b32 v{A.vA}, 4, v2
    s_and_b32 s33, s2, 7
    s_lshr_b32 s34, s2, 3
    s_and_b32 s35, s34, 3
    s_lshr_b32 s34, s34, 2
    s_lshl_b32 s33, s33, 2
    s_add_u32 s33, s33, s35
    s_and_b32 s36, s3, 1
    s_lshr_b32 s37, s3, 1
    s_lshl_b32 s38, s33, 17
    s_add_u32 s39, s38, {K_OFF}
    s_add_u32 s40, s38, {V_OFF}
    s_lshl_b32 s41, s34, 1
    s_add_u32 s41, s41, s36
    s_lshl_b32 s42, s41, 13
    s_add_u32 s42, s42, s38
    s_add_u32 s42, s42, {Q_OFF}
    s_add_u32 s43, s42, 4096
    s_lshl_b32 s20, s37, 16""")
    a(f"""v_bfe_u32 v3, v2, 2, 1
    v_bfe_u32 v4, v2, 4, 1
    v_xor_b32 v3, v3, v4
    v_and_b32 v4, 3, v2
    v_or_b32 v3, v3, v4
    v_mov_b32 v4, 0x3f803f80
    v_cmp_eq_u32 vcc, 0, v3
    v_and_b32 v5, 15, v2
    v_bfe_u32 v6, v2, 4, 1
    v_cndmask_b32 v{A.vSEL}, 0, v4, vcc
    v_cndmask_b32 v{A.vSEL+1}, 0, v4, vcc
    v_cndmask_b32 v{A.vSEL+2}, 0, v4, vcc
    v_cndmask_b32 v{A.vSEL+3}, 0, v4, vcc
    s_mov_b32 s44, {HO_T16}
    v_lshrrev_b32 v7, 5, v2
    v_lshlrev_b32 v5, 4, v5
    v_lshl_add_u32 v5, v7, 8, v5
    v_mad_u32_u24 v{A.vT}, v6, s44, v5
    s_waitcnt lgkmcnt(0)""")
    a("s_add_u32 s8, s4, s39\ns_addc_u32 s9, s5, 0\ns_mov_b32 s10, 131072\ns_mov_b32 s11, 0x00020000")
    a("s_add_u32 s12, s4, s40\ns_addc_u32 s13, s5, 0\ns_mov_b32 s14, 131072\ns_mov_b32 s15, 0x00020000")
    srd(a, 16, 4, WS_BYTES)
    a(at_ld(0, "K", 0)); a(at_ld(0, "K", 1))
    for i in range(8): a(f"buffer_load_dwordx4 v[{A.vQ+4*i}:{A.vQ+4*i+3}], v{A.vA}, s[16:19], s{42+i//4} offen offset:{(i%4)*1024}")
    a(at_ld(0, "V", 0)); a(at_ld(0, "V", 1))
    for kt in (1, 2):
        a("s_add_u32 s20, s20, 2048")
        for w in "KV":
            a(at_ld(kt, w, 0)); a(at_ld(kt, w, 1))
    a("s_add_u32 s20, s20, 2048")
    for i in range(64 + 16): a(f"v_mov_b32 v{A.vO+i}, 0")
    for i in range(8): a(f"v_mov_b32 v{A.vP+8+i}, 0")
    for i in range(8): a(f"v_mov_b32 v{A.vV+24+i}, 0")
    if fused: a("s_barrier")
    a("s_mov_b32 s21, 8\n;stamp 0\ns_waitcnt vmcnt(8)\n;stamp 1")
    a.ext(at_qk(0))
    a("s_nop 7\ns_nop 3")
    a(f".p2align 6\n{name}_loop:")
    for t in range(16):
        kt, qt = t // 4, t % 4
        mem = []; pre = []
        if qt == 0: mem = [at_ld(kt + 3, "K", 0)]
        if qt == 1: mem = [at_ld(kt + 3, "K", 1)]
        if qt == 2: mem = [at_ld(kt + 3, "V", 0)]
        if qt == 3:
            pre = ["s_waitcnt vmcnt(7)"]
            mem = [at_ld(kt + 3, "V", 1), "s_add_u32 s20, s20, 2048"]
        if t == 14: mem.append("s_sub_u32 s21, s21, 1")
        if t == 15: mem.append("s_cmp_lg_u32 s21, 0")
        a.ext(at_period(t, mem=mem, pre=pre))
    a(f"s_cbranch_scc1 {name}_loop")
    a("s_nop 1")
    a.ext(at_pv(15))
    a(";stamp 2")
    a(f"""s_lshl_b32 s22, s3, 13
    s_lshl_b32 s23, s3, 9
    s_add_u32 s23, s23, 32768
    s_xor_b32 s24, s22, 16384
    s_xor_b32 s25, s23, 1024
    s_add_u32 s22, s22, {XB}
    s_add_u32 s23, s23, {XB}
    s_add_u32 s24, s24, {XB}
    s_add_u32 s25, s25, {XB}
    v_add_u32 v{A.vT+1}, s22, v{A.vA}
    v_add_u32 v{A.vT+2}, s24, v{A.vA}
    v_lshrrev_b32 v{A.vT+3}, 1, v{A.vA}
    v_add_u32 v{A.vT+4}, s25, v{A.vT+3}
    v_add_u32 v{A.vT+3}, s23, v{A.vT+3}
    s_waitcnt vmcnt(0)
    s_cmp_eq_u32 s37, 0
    s_cbranch_scc1 {name}_x0""")
    def send(base):
        a("s_nop 4")
        for i in range(8): a(f"ds_write_b128 v{A.vT+1}, v[{A.vO+16*base+4*i}:{A.vO+16*base+4*i+3}] offset:{1024*i}")
        a(f"v_mov_b32 v{A.vL+4*base+1}, v{A.vL+4*base+4}")
        a(f"ds_write_b64 v{A.vT+3}, v[{A.vL+4*base}:{A.vL+4*base+1}]")
    send(0)
    a("s_waitcnt lgkmcnt(0)")
    for i in range(32): a(f"v_mov_b32 v{A.vO+i}, v{A.vO+32+i}")
    for i in range(16): a(f"v_mov_b32 v{A.vQ+i}, v{A.vQ+16+i}")
    a(f"v_mov_b32 v{A.vL}, v{A.vL+8}\nv_mov_b32 v{A.vL+4}, v{A.vL+12}")
    a(f"s_branch {name}_x1\n{name}_x0:")
    send(2)
    a(f"s_waitcnt lgkmcnt(0)\n{name}_x1:")
    if not fused: a("s_barrier")
    else:
        a(f"""s_lshl_b32 s22, s3, 2
        s_add_u32 s22, s22, {XB + 32768 + 2048}
        s_xor_b32 s23, s22, 8
        v_mov_b32 v{A.vT+9}, s22
        v_mov_b32 v{A.vT+10}, s23
        v_mov_b32 v{A.vT+11}, 1
        ds_write_b32 v{A.vT+9}, v{A.vT+11}
        {name}_spin:
        ds_read_b32 v{A.vT+11}, v{A.vT+10}
        s_waitcnt lgkmcnt(0)
        v_readfirstlane_b32 s22, v{A.vT+11}
        s_cmp_eq_u32 s22, 0
        s_cbranch_scc1 {name}_spin""")
    a(f"ds_read_b64 v[{A.vL+8}:{A.vL+9}], v{A.vT+4}")
    for i in range(8): a(f"ds_read_b128 v[{A.vO+32+4*i}:{A.vO+32+4*i+3}], v{A.vT+2} offset:{1024*i}")
    a(f"""s_mov_b32 s26, {f2h(2.0**-64)}
    s_mov_b32 s27, {f2h(2.0**64)}
    s_waitcnt lgkmcnt(8)
    v_add_f32 v{A.vL}, v{A.vL}, v{A.vL+8}
    v_add_f32 v{A.vL+4}, v{A.vL+4}, v{A.vL+9}
    v_cmp_le_f32 s[28:29], s26, v{A.vL}
    v_cmp_le_f32 s[30:31], s26, v{A.vL+4}
    v_cmp_ge_f32 s[46:47], s27, v{A.vL}
    v_cmp_ge_f32 s[48:49], s27, v{A.vL+4}
    s_and_b64 s[28:29], s[28:29], s[30:31]
    s_and_b64 s[46:47], s[46:47], s[48:49]
    s_and_b64 s[28:29], s[28:29], s[46:47]""")
    for i in range(8):
        a(f"s_waitcnt lgkmcnt({7-i})")
        for r in range(4): a(f"v_add_f32 v{A.vO+4*i+r}, v{A.vO+4*i+r}, v{A.vO+32+4*i+r}")
    a(f"""s_cmp_eq_u64 s[28:29], -1
    s_cbranch_scc0 {name}_slow
    {name}_fin:
    v_rcp_f32 v{A.vL}, v{A.vL}
    v_rcp_f32 v{A.vL+4}, v{A.vL+4}
    s_lshl_b32 s22, s41, 3
    s_lshl_b32 s23, s37, 2
    s_add_u32 s22, s22, s23
    s_mul_i32 s22, s22, {HO_T16}
    s_lshl_b32 s23, s33, 10
    s_add_u32 s22, s22, s23
    s_add_u32 s22, s22, {HO_OFF + 112*1024}""")
    for qt in range(2):
        o = A.vO + 16 * qt
        for i in range(16): a(f"v_mul_f32 v{o+i}, v{o+i}, v{A.vL+4*qt}")
        for h in range(2):
            d = A.vS + 8 * qt + 4 * h
            idx = [4*h, 4*h+1, 4*h+2, 4*h+3, 8+4*h, 9+4*h, 10+4*h, 11+4*h]
            for j in range(4): a(f"v_cvt_pk_bf16_f32 v{d+j}, v{o+idx[2*j]}, v{o+idx[2*j+1]}")
            a(f"buffer_store_dwordx4 v[{d}:{d+3}], v{A.vT}, s[16:19], s22 offen offset:{512*h}" + (" sc1" if fused else ""))
        if qt == 0: a(f"s_add_u32 s22, s22, {2*HO_T16}")
    if fused:
        a(f"""s_lshl_b32 s22, s41, 8
        s_lshl_b32 s23, s33, 3
        s_add_u32 s22, s22, s23
        s_lshl_b32 s23, s37, 2
        s_add_u32 s22, s22, s23
        s_add_u32 s22, s22, {FLAG_OFF}
        v_mov_b32 v0, 1
        v_mov_b32 v1, 0
        s_mov_b64 exec, 1
        s_waitcnt vmcnt(0)
        buffer_store_dword v0, v1, s[16:19], s22 offen sc1""")
    a(f"{name}_end:\ns_endpgm")
    M = A.vT + 5
    a(f"{name}_slow:")
    a(f"v_mov_b32 v{M}, 0xff800000\nv_mov_b32 v{M+1}, 0xff800000\ns_mov_b32 s20, 0")
    a(f"{name}_slow1:")
    a(at_ld(0, "K", 0)); a(at_ld(0, "K", 1))
    a("s_add_u32 s20, s20, 2048\ns_waitcnt vmcnt(0)")
    a.ext(at_qk(0)); a.ext(at_qk(1)); a("s_nop 7\ns_nop 3")
    for qt in range(2):
        for i in range(0, 16, 2): a(f"v_max3_f32 v{M+qt}, v{M+qt}, v{A.vS+16*qt+i}, v{A.vS+16*qt+i+1}")
    a(f"s_cmp_lt_u32 s20, 131072\ns_cbranch_scc1 {name}_slow1")
    a(f"""v_mov_b32 v{M+2}, v{M}
    v_mov_b32 v{M+3}, v{M+1}
    s_nop 1
    v_permlane32_swap_b32 v{M}, v{M+2}
    v_permlane32_swap_b32 v{M+1}, v{M+3}
    v_max_f32 v{M}, v{M}, v{M+2}
    v_max_f32 v{M+1}, v{M+1}, v{M+3}
    s_mov_b32 s20, 0""")
    for i in range(32): a(f"v_mov_b32 v{A.vO+i}, 0")
    for i in range(8): a(f"v_mov_b32 v{A.vL+i}, 0")
    a(f"{name}_slow2:")
    a(at_ld(0, "K", 0)); a(at_ld(0, "K", 1)); a(at_ld(0, "V", 0)); a(at_ld(0, "V", 1))
    a("s_add_u32 s20, s20, 2048\ns_waitcnt vmcnt(0)")
    a.ext(at_qk(0)); a.ext(at_qk(1)); a("s_nop 7\ns_nop 3")
    for qt in range(2):
        s = A.vS + 16 * qt; p = A.vP + 8 * qt
        for i in range(16): a(f"v_sub_f32 v{s+i}, v{s+i}, v{M+qt}")
        for i in range(16): a(f"v_exp_f32 v{s+i}, v{s+i}")
        a("s_nop 0")
        for i in range(8): a(f"v_cvt_pk_bf16_f32 v{p+i}, v{s+2*i}, v{s+2*i+1}")
    a("s_nop 1")
    a.ext(at_pv(0)); a.ext(at_pv(1))
    a(f"s_cmp_lt_u32 s20, 131072\ns_cbranch_scc1 {name}_slow2")
    a(f"s_nop 7\ns_nop 3\ns_branch {name}_fin")

class G2:
    vACC = 0
    vX = 128
    vW = 192
    vXA = 224
    vDA = 228
    vRA = 229
    vL16 = 231
    vOA = 232
    vF = 233; vFA = 234
    vR = 236
REG2 = 24576
def g2_act(s, kk, tt, off):
    d = G2.vX + 32 * (s % 2) + (kk * 4 + tt) * 4
    return f"buffer_load_dwordx4 v[{d}:{d+3}], v{G2.vXA+tt}, s[8:11], s20 offen offset:{off + kk*512} sc1"
def g2_dma(s, i):
    return (f"s_add_u32 m0, s22, {(s % 4) * 4096 + i * 1024}", f"buffer_load_dwordx4 v{G2.vDA}, s[12:15], s{24+i} offen lds")
def g2_rd(s, kk, nt):
    d = G2.vW + 16 * (s % 2) + (kk * 2 + nt) * 4
    off = (s % 4) * 4096 + kk * 1024
    return [f"ds_read_b64_tr_b16 v[{d}:{d+1}], v{G2.vRA+nt} offset:{off}", f"ds_read_b64_tr_b16 v[{d+2}:{d+3}], v{G2.vRA+nt} offset:{off+2048}"]
G2_ADV = [f"s_add_u32 s{24+i}, s{24+i}, 65536" for i in range(4)]

def g2_step(s, dma, act, rd, vms, extra=None):
    G = G2; mf = []; fill = {}
    for kk in range(2):
        for tt in range(4):
            for nt in range(2):
                c = G.vACC + (tt * 2 + nt) * 16
                mf.append(M32(c, G.vW + 16 * (s % 2) + (kk * 2 + nt) * 4, G.vX + 32 * (s % 2) + (kk * 4 + tt) * 4, c))
    fill[-1] = [f"s_waitcnt vmcnt({vms[0]}) lgkmcnt(0)"]
    for i in range(16): fill[i] = []
    if dma:
        for i in range(4):
            m, ld = g2_dma(s + 3, i)
            fill[2 * i].append(m); fill[2 * i].append("s_nop 0"); fill[2 * i].append(ld)
        fill[8] += G2_ADV
    if act:
        for kk in range(2):
            for tt in range(4): fill[kk * 8 + tt * 2 + 1].append(g2_act(s + 2, kk, tt, (s % 4) * 1024))
    fill[7].append(f"s_waitcnt vmcnt({vms[1]})")
    if rd:
        r = sum([g2_rd(s + 1, kk, nt) for kk in range(2) for nt in range(2)], [])
        for i, x in enumerate(r): fill[6 + i].append(x)
    if extra:
        for k, v in extra.items(): fill[k] += v
    return weave(mf, fill)

def k3_gemm2(name):
    a = Asm()
    a(f"""s_cmp_ge_u32 s2, 256
    s_cbranch_scc1 {name}_end
    v_lshrrev_b32 v1, 6, v0
    v_and_b32 v2, 63, v0
    v_readfirstlane_b32 s3, v1""")
    gemm2_body(a, name, False)
    return a, dict(nm=name, vgpr=256, accum=256, lds=4*REG2, grid=256, block=256)

def gemm2_body(a, name, fused):
    G = G2
    a(f"""s_and_b32 s57, s3, 3
    s_load_dwordx2 s[40:41], s[0:1], 0
    s_load_dwordx2 s[42:43], s[0:1], 16
    s_load_dwordx4 s[44:47], s[0:1], 48
    s_load_dwordx2 s[48:49], s[0:1], 72
    s_and_b32 s33, s2, 7
    s_lshr_b32 s34, s2, 3
    s_lshr_b32 s35, s33, 1
    s_lshl_b32 s35, s35, 2
    s_lshr_b32 s36, s34, 3
    s_add_u32 s35, s35, s36
    s_and_b32 s36, s33, 1
    s_lshl_b32 s36, s36, 3
    s_and_b32 s37, s34, 7
    s_add_u32 s36, s36, s37
    s_lshl_b32 s37, s36, 7
    s_mul_i32 s38, s35, {8*HO_T16}
    s_add_u32 s38, s38, {HO_OFF}
    s_mul_i32 s22, s57, {REG2}
    s_mov_b32 s50, {HO_T16}""")
    a(f"""v_and_b32 v3, 15, v2
    v_bfe_u32 v4, v2, 4, 1
    v_lshrrev_b32 v5, 5, v2
    v_lshlrev_b32 v6, 4, v3
    v_lshl_add_u32 v6, v5, 8, v6
    v_mad_u32_u24 v{G.vXA}, v4, s50, v6
    v_add_u32 v{G.vXA+1}, {2*HO_T16}, v{G.vXA}
    v_add_u32 v{G.vXA+2}, {4*HO_T16}, v{G.vXA}
    v_add_u32 v{G.vXA+3}, {6*HO_T16}, v{G.vXA}
    v_lshrrev_b32 v6, 3, v2
    v_and_b32 v7, 7, v2
    v_lshlrev_b32 v8, 2, v4
    v_xor_b32 v7, v7, v8
    v_lshlrev_b32 v7, 4, v7
    v_lshl_add_u32 v{G.vDA}, v6, 11, v7
    v_bfe_u32 v6, v2, 2, 2
    v_lshl_add_u32 v6, v5, 2, v6
    v_lshlrev_b32 v6, 7, v6
    v_and_b32 v7, 3, v2
    v_lshl_add_u32 v6, v7, 3, v6
    v_lshl_add_u32 v6, v4, 5, v6
    v_add_u32 v6, s22, v6
    v_bfe_u32 v7, v2, 3, 1
    v_lshl_add_u32 v{G.vRA}, v7, 6, v6
    v_xor_b32 v7, 1, v7
    v_lshl_add_u32 v{G.vRA+1}, v7, 6, v6
    v_lshlrev_b32 v{G.vL16}, 4, v2
    v_and_b32 v6, 31, v2
    v_lshlrev_b32 v6, 11, v6
    v_lshl_add_u32 v{G.vOA}, v5, 4, v6
    s_mul_i32 s20, s57, {28*1024}
    s_mul_i32 s24, s57, {28*65536}
    s_add_u32 s25, s24, 16384
    s_add_u32 s26, s24, 32768
    s_add_u32 s27, s24, 49152
    s_lshl_b32 s39, s35, 2
    s_add_u32 s39, s39, s57
    s_lshl_b32 s39, s39, 16
    s_add_u32 s39, s39, s37
    s_waitcnt lgkmcnt(0)""")
    srd(a, 8, 48, WS_BYTES, "s38")
    srd(a, 12, 44, 3584*2048, "s37")
    srd(a, 16, 40, 4194304)
    srd(a, 28, 46, 4194304)
    a("s_add_u32 s42, s42, s37\ns_addc_u32 s43, s43, 0\ns_sub_u32 s51, 2097152, s37")
    def dma(s):
        for i in range(4):
            m, ld = g2_dma(s, i); a(m); a("s_nop 0"); a(ld)
        a.ext(G2_ADV)
    def act(s):
        for kk in range(2):
            for tt in range(4): a(g2_act(s, kk, tt, s * 1024))
    dma(0); dma(1); act(0); dma(2); act(1)
    for i in range(4): a(f"buffer_load_dwordx4 v[{G.vR+4*i}:{G.vR+4*i+3}], v{G.vOA}, s[16:19], s39 offen offset:{32*i}")
    a.ext(["s_lshl_b32 s52, s57, 19", "s_add_u32 s53, s52, 16384", "s_add_u32 s54, s52, 32768", "s_add_u32 s55, s52, 49152",
                "s_lshl_b32 s56, s57, 13", f"s_add_u32 s56, s56, {112*1024 - 2048}"])
    a("s_add_u32 s20, s20, 2048\ns_mov_b32 s21, 0")
    if fused:
        srd(a, 60, 48, WS_BYTES)
        a(f"s_lshl_b32 s58, s35, 8\ns_add_u32 s58, s58, {FLAG_OFF}\nv_lshrrev_b32 v{G.vFA}, 2, v{G.vL16}\ns_barrier")
    for i in range(128): a(f"v_mov_b32 v{G.vACC+i}, 0")
    a(";stamp 0\ns_waitcnt vmcnt(0)\n;stamp 1")
    for kk in range(2):
        for nt in range(2): a.ext(g2_rd(0, kk, nt))
    for i in range(4):
        a(f"v_permlane32_swap_b32 v{G.vR+4*i}, v{G.vR+4*i+2}\nv_permlane32_swap_b32 v{G.vR+4*i+1}, v{G.vR+4*i+3}")
    a(f".p2align 6\n{name}_loop:")
    for u in range(4):
        ex = {}
        if u == 0:
            ex = {9: ["s_cmp_eq_u32 s21, 6", "s_cselect_b32 s12, s42, s12", "s_cselect_b32 s13, s43, s13"],
                  10: ["s_cselect_b32 s14, s51, s14", "s_cselect_b32 s24, s52, s24", "s_cselect_b32 s25, s53, s25"],
                  11: ["s_cselect_b32 s26, s54, s26", "s_cselect_b32 s27, s55, s27"]}
        if u == 1:
            ex = {15: ["s_cmp_eq_u32 s21, 6", "s_cselect_b32 s20, s56, s20"]}
        if u == 3:
            ex = {15: ["s_add_u32 s20, s20, 4096", "s_add_u32 s21, s21, 1", "s_cmp_lg_u32 s21, 8"]}
        a.ext(g2_step(u, True, True, True, (16, 20), ex))
        if u == 1 and fused: a(f"s_cbranch_scc1 {name}_poll\n{name}_back:")
    a(f"s_cbranch_scc1 {name}_loop")
    a.ext(g2_step(0, True, True, True, (16, 20)))
    a.ext(g2_step(1, False, True, True, (16, 16)))
    a.ext(g2_step(2, False, False, True, (8, 8)))
    a.ext(g2_step(3, False, False, False, (4, 0)))
    a(";stamp 2")
    a(f"v_add_u32 v{G.vXA}, s22, v{G.vL16}\ns_nop 7")
    for w in range(4):
        a(f"s_cmp_eq_u32 s57, {w}\ns_cbranch_scc0 {name}_r{w}")
        for d in range(1, 4):
            tt = (w + d) % 4
            for i in range(8): a(f"ds_write_b128 v{G.vXA}, v[{tt*32+4*i}:{tt*32+4*i+3}] offset:{(d-1)*8192 + i*1024}")
        a("s_waitcnt lgkmcnt(0)\ns_barrier")
        for d in range(1, 4):
            src = (w - d) % 4
            base = src * REG2 + (d - 1) * 8192
            a(f"v_add_u32 v{G.vXA+d}, {base}, v{G.vL16}")
            for i in range(8): a(f"ds_read_b128 v[{128+(d-1)*32+4*i}:{128+(d-1)*32+4*i+3}], v{G.vXA+d} offset:{i*1024}")
            if d >= 2:
                a("s_waitcnt lgkmcnt(8)")
                for i in range(32): a(f"v_add_f32 v{w*32+i}, v{w*32+i}, v{128+(d-2)*32+i}")
        a("s_waitcnt lgkmcnt(0)")
        for i in range(32): a(f"v_add_f32 v{128+i}, v{w*32+i}, v{192+i}")
        a(f"s_branch {name}_fin\n{name}_r{w}:")
    a(f"{name}_fin:\ns_mov_b32 s23, 0xffff0000")
    for i in range(4):
        b = 128 + 8 * i
        for j in range(4):
            a(f"v_lshlrev_b32 v{2*j}, 16, v{G.vR+4*i+j}\nv_and_b32 v{2*j+1}, s23, v{G.vR+4*i+j}")
        for j in range(8): a(f"v_add_f32 v{b+j}, v{b+j}, v{j}")
        for j in range(4): a(f"v_cvt_pk_bf16_f32 v{16+4*i+j}, v{b+2*j}, v{b+2*j+1}")
        a(f"s_nop 1\nv_permlane32_swap_b32 v{16+4*i}, v{16+4*i+2}\nv_permlane32_swap_b32 v{16+4*i+1}, v{16+4*i+3}")
        a(f"buffer_store_dwordx4 v[{16+4*i}:{19+4*i}], v{G.vOA}, s[28:31], s39 offen offset:{32*i}")
    a(f"{name}_end:\ns_endpgm")
    if fused:
        a(f"""{name}_poll:
        ;stamp 3
        s_mov_b32 s59, 0
        {name}_poll1:
        buffer_load_dword v{G.vF}, v{G.vFA}, s[60:63], s58 offen sc1
        s_add_u32 s59, s59, 1
        s_waitcnt vmcnt(0)
        v_cmp_ne_u32 vcc, 1, v{G.vF}
        s_cmp_lt_u32 s59, 0x10000
        s_cbranch_scc0 {name}_poll2
        s_cbranch_vccnz {name}_poll1
        {name}_poll2:
        ;stamp 4
        s_branch {name}_back""")
```

```python
import sys
from asmlib import *
import k01, k23, hazard
NAME = "parallel_sum__mha_block__glu_gated_bilinear__prompt"
def instrument(a, idx, nm):
    L = []
    for i, x in enumerate(a.L):
        if x.startswith(";stamp"):
            k = int(x.split()[1]); L.append(f"s_memrealtime s[{84+2*k}:{85+2*k}]"); continue
        if x == "s_endpgm": L.append(f"s_branch {nm}_stamp"); continue
        if x == f"s_cbranch_scc1 {nm}_end" and i < 3:
            L += [f"s_cbranch_scc1 {nm}_exit", "s_memrealtime s[80:81]", "s_memtime s[96:97]"] + [f"s_mov_b32 s{84+2*k}, 0" for k in range(6)]; continue
        L.append(x)
    L += [f"{nm}_stamp:", "s_memrealtime s[94:95]", "s_waitcnt vmcnt(0)", "s_memrealtime s[82:83]", "s_memtime s[98:99]", "s_load_dwordx2 s[72:73], s[0:1], 72", "s_getreg_b32 s79, hwreg(HW_REG_XCC_ID)", "s_waitcnt lgkmcnt(0)",
          "s_mov_b32 s74, 0x10000000", "s_mov_b32 s75, 0x00020000", "s_lshl_b32 s76, s2, 3", "s_add_u32 s76, s76, s3", "s_lshl_b32 s76, s76, 6",
          f"s_add_u32 s76, s76, {(64<<20) + idx*131072}", "s_sub_u32 s98, s98, s96", "s_nop 7", "s_nop 7"]
    for j, r in enumerate([80, 82, 98, 79, 84, 86, 88, 90, 92, 94]): L.append(f"v_mov_b32 v{j}, s{r}")
    L += ["v_mov_b32 v12, 0", "buffer_store_dwordx4 v[0:3], v12, s[72:75], s76 offen", "buffer_store_dwordx4 v[4:7], v12, s[72:75], s76 offen offset:16",
          "buffer_store_dwordx2 v[8:9], v12, s[72:75], s76 offen offset:32", f"{nm}_exit:", "s_endpgm"]
    a.L = L
def build(ks):
    ref = open(f"cdna_kernels/{NAME}.s.ref").read().split("\n")
    head = [l for l in ref if l.startswith(";") and "@launch" not in l]
    out = head[:]
    for n, (a, m) in ks: out.append(f"; @launch kernel={n} grid=({m['grid']},1,1) block=({m['block']},1,1) lds={m['lds']}")
    out += ['.amdgcn_target "amdgcn-amd-amdhsa--gfx950"', ".text"]
    for n, (a, m) in ks:
        out.append(khead(n) + a.text())
    out.append('.section .rodata,"a"')
    for n, (a, m) in ks: out.append(kdesc(n, m["vgpr"], m["accum"]))
    return "\n".join(out)
if __name__ == "__main__":
    ks = [("ln_kernel", k01.k0_ln("ln")), ("gemm1_kernel", k01.k1_gemm1("g1")), ("attn_kernel", k23.k2_attn("at")), ("gemm2_kernel", k23.k3_gemm2("g2"))]
    import os
    if os.environ.get("FUSE", "1") == "1":
        ks = ks[:2] + [("att2_kernel", k23.k2_fused("f2", int(os.environ.get("PA", "0")), int(os.environ.get("PG", "0"))))]
    if len(sys.argv) > 2 and sys.argv[2] == "stamp":
        for i, (n, (a, m)) in enumerate(ks): instrument(a, i, m["nm"])
    t = build(ks)
    dst = sys.argv[1] if len(sys.argv) > 1 else f"cdna_kernels/{NAME}.s"
    open(dst, "w").write(t)
    print("hazards:", hazard.check(t), "bytes", len(t))
```

```python
from asmlib import *
from k01 import *

class AT:
    vQ = 0
    vO = 32
    vL = 96
    vS = 112
    vP = 144
    vK = 160
    vV = 192
    vSEL = 224
    vA = 228
    vT = 229
def M32(d, x, y, c): return f"v_mfma_f32_32x32x16_bf16 v[{d}:{d+15}], v[{x}:{x+3}], v[{y}:{y+3}], " + (f"v[{c}:{c+15}]" if c is not None else "0")
def M16(d, x, y, c): return f"v_mfma_f32_16x16x32_bf16 v[{d}:{d+3}], v[{x}:{x+3}], v[{y}:{y+3}], " + (f"v[{c}:{c+3}]" if c is not None else "0")

def at_qk(t):
    A = AT; s = A.vS + 16 * (t % 2); k = A.vK + 8 * ((t // 4) % 4); q = A.vQ + 8 * (t % 4)
    return [M32(s, k, q, None), M32(s, k + 4, q + 4, s)]
def at_pv(t):
    A = AT; p = A.vP + 8 * (t % 2); v = A.vV + 8 * ((t // 4) % 4); o = A.vO + 16 * (t % 4); l = A.vL + 4 * (t % 4)
    return [M32(o, v, p, o), M32(o, v + 4, p + 4, o), M16(l, A.vSEL, p, l), M16(l, A.vSEL, p + 4, l)]
def at_ld(kt, which, kk, srdK=8, srdV=12, soff="s20"):
    A = AT; d = (A.vK if which == "K" else A.vV) + 8 * (kt % 4) + 4 * kk
    r = srdK if which == "K" else srdV
    return f"buffer_load_dwordx4 v[{d}:{d+3}], v{A.vA}, s[{r}:{r+3}], {soff} offen offset:{kk*1024}"

def at_period(t, qk=True, pv=True, mem=None, pre=None):
    A = AT; s = A.vS + 16 * (t % 2); p = A.vP + 8 * (t % 2)
    E = [f"v_exp_f32 v{s+i}, v{s+i}" for i in range(16)]
    C = [f"v_cvt_pk_bf16_f32 v{p+i}, v{s+2*i}, v{s+2*i+1}" for i in range(8)]
    q = at_qk(t + 1) if qk else [None, None]
    v = at_pv(t - 1) if pv else [None] * 4
    mem = mem or []
    L = list(pre or [])
    L += [q[0]] + mem[:1] + E[0:4]
    L += [q[1]] + mem[1:2] + [E[4], C[0], E[5], C[1], E[6]]
    L += [v[0]] + mem[2:3] + [E[7], C[2], E[8], E[9], C[3]]
    L += [v[2], E[10], E[11], C[4]]
    L += [v[1], E[12], E[13], C[5], E[14], E[15]]
    L += [v[3], C[6], C[7]]
    return [x for x in L if x]

FLAG_OFF = 40 << 20
def k2_attn(name):
    a = Asm()
    a(f"""s_cmp_ge_u32 s2, 256
    s_cbranch_scc1 {name}_end
    v_lshrrev_b32 v1, 6, v0
    v_and_b32 v2, 63, v0
    v_readfirstlane_b32 s3, v1""")
    attn_body(a, name, False, 0)
    return a, dict(nm=name, vgpr=256, accum=256, lds=32768 + 2048, grid=256, block=256)

def k2_fused(name, prioA, prioG):
    a = Asm()
    XB = 4 * REG2
    a(f"""s_cmp_ge_u32 s2, 256
    s_cbranch_scc1 {name}_end
    v_lshrrev_b32 v1, 6, v0
    v_and_b32 v2, 63, v0
    v_readfirstlane_b32 s3, v1
    v_mov_b32 v3, {XB + 32768 + 2048}
    v_lshl_add_u32 v3, v1, 2, v3
    v_mov_b32 v4, 0
    ds_write_b32 v3, v4
    s_cmp_ge_u32 s3, 4
    s_cbranch_scc1 {name}_gemm
    s_setprio {prioA}""")
    attn_body(a, name, True, XB)
    a(f"{name}_gemm:\ns_setprio {prioG}")
    gemm2_body(a, name + "g", True)
    return a, dict(nm=name, vgpr=256, accum=256, lds=XB + 32768 + 2048 + 64, grid=256, block=512)

def attn_body(a, name, fused, XB):
    A = AT
    a(f"""s_load_dwordx2 s[4:5], s[0:1], 72
    v_lshlrev_b32 v{A.vA}, 4, v2
    s_and_b32 s33, s2, 7
    s_lshr_b32 s34, s2, 3
    s_and_b32 s35, s34, 3
    s_lshr_b32 s34, s34, 2
    s_lshl_b32 s33, s33, 2
    s_add_u32 s33, s33, s35
    s_and_b32 s36, s3, 1
    s_lshr_b32 s37, s3, 1
    s_lshl_b32 s38, s33, 17
    s_add_u32 s39, s38, {K_OFF}
    s_add_u32 s40, s38, {V_OFF}
    s_lshl_b32 s41, s34, 1
    s_add_u32 s41, s41, s36
    s_lshl_b32 s42, s41, 13
    s_add_u32 s42, s42, s38
    s_add_u32 s42, s42, {Q_OFF}
    s_add_u32 s43, s42, 4096
    s_lshl_b32 s20, s37, 16""")
    a(f"""v_bfe_u32 v3, v2, 2, 1
    v_bfe_u32 v4, v2, 4, 1
    v_xor_b32 v3, v3, v4
    v_and_b32 v4, 3, v2
    v_or_b32 v3, v3, v4
    v_mov_b32 v4, 0x3f803f80
    v_cmp_eq_u32 vcc, 0, v3
    v_and_b32 v5, 15, v2
    v_bfe_u32 v6, v2, 4, 1
    v_cndmask_b32 v{A.vSEL}, 0, v4, vcc
    v_cndmask_b32 v{A.vSEL+1}, 0, v4, vcc
    v_cndmask_b32 v{A.vSEL+2}, 0, v4, vcc
    v_cndmask_b32 v{A.vSEL+3}, 0, v4, vcc
    s_mov_b32 s44, {HO_T16}
    v_lshrrev_b32 v7, 5, v2
    v_lshlrev_b32 v5, 4, v5
    v_lshl_add_u32 v5, v7, 8, v5
    v_mad_u32_u24 v{A.vT}, v6, s44, v5
    s_waitcnt lgkmcnt(0)""")
    a("s_add_u32 s8, s4, s39\ns_addc_u32 s9, s5, 0\ns_mov_b32 s10, 131072\ns_mov_b32 s11, 0x00020000")
    a("s_add_u32 s12, s4, s40\ns_addc_u32 s13, s5, 0\ns_mov_b32 s14, 131072\ns_mov_b32 s15, 0x00020000")
    srd(a, 16, 4, WS_BYTES)
    a(at_ld(0, "K", 0)); a(at_ld(0, "K", 1))
    for i in range(8): a(f"buffer_load_dwordx4 v[{A.vQ+4*i}:{A.vQ+4*i+3}], v{A.vA}, s[16:19], s{42+i//4} offen offset:{(i%4)*1024}")
    a(at_ld(0, "V", 0)); a(at_ld(0, "V", 1))
    for kt in (1, 2):
        a("s_add_u32 s20, s20, 2048")
        for w in "KV":
            a(at_ld(kt, w, 0)); a(at_ld(kt, w, 1))
    a("s_add_u32 s20, s20, 2048")
    for i in range(64 + 16): a(f"v_mov_b32 v{A.vO+i}, 0")
    for i in range(8): a(f"v_mov_b32 v{A.vP+8+i}, 0")
    for i in range(8): a(f"v_mov_b32 v{A.vV+24+i}, 0")
    if fused: a("s_barrier")
    a("s_mov_b32 s21, 8\n;stamp 0\ns_waitcnt vmcnt(8)\n;stamp 1")
    a.ext(at_qk(0))
    a("s_nop 7\ns_nop 3")
    a(f".p2align 6\n{name}_loop:")
    import os
    UNR = int(os.environ.get("UNR", "1"))
    for t in range(16 * UNR):
        kt, qt = t // 4, t % 4
        mem = []; pre = []
        if qt == 0: mem = [at_ld(kt + 3, "K", 0)]
        if qt == 1: mem = [at_ld(kt + 3, "K", 1)]
        if qt == 2: mem = [at_ld(kt + 3, "V", 0)]
        if qt == 3:
            pre = ["s_waitcnt vmcnt(7)"]
            mem = [at_ld(kt + 3, "V", 1), "s_add_u32 s20, s20, 2048"]
        if t % 16 == 14: mem.append("s_sub_u32 s21, s21, 1")
        if t % 16 == 15: mem.append("s_cmp_lg_u32 s21, 0")
        a.ext(at_period(t, mem=mem, pre=pre))
    a(f"s_cbranch_scc1 {name}_loop")
    a("s_nop 1")
    a.ext(at_pv(15))
    a(";stamp 2")
    a(f"""s_lshl_b32 s22, s3, 13
    s_lshl_b32 s23, s3, 9
    s_add_u32 s23, s23, 32768
    s_xor_b32 s24, s22, 16384
    s_xor_b32 s25, s23, 1024
    s_add_u32 s22, s22, {XB}
    s_add_u32 s23, s23, {XB}
    s_add_u32 s24, s24, {XB}
    s_add_u32 s25, s25, {XB}
    v_add_u32 v{A.vT+1}, s22, v{A.vA}
    v_add_u32 v{A.vT+2}, s24, v{A.vA}
    v_lshrrev_b32 v{A.vT+3}, 1, v{A.vA}
    v_add_u32 v{A.vT+4}, s25, v{A.vT+3}
    v_add_u32 v{A.vT+3}, s23, v{A.vT+3}
    s_waitcnt vmcnt(0)
    s_cmp_eq_u32 s37, 0
    s_cbranch_scc1 {name}_x0""")
    def send(base):
        a("s_nop 4")
        for i in range(8): a(f"ds_write_b128 v{A.vT+1}, v[{A.vO+16*base+4*i}:{A.vO+16*base+4*i+3}] offset:{1024*i}")
        a(f"v_mov_b32 v{A.vL+4*base+1}, v{A.vL+4*base+4}")
        a(f"ds_write_b64 v{A.vT+3}, v[{A.vL+4*base}:{A.vL+4*base+1}]")
    send(0)
    a("s_waitcnt lgkmcnt(0)")
    for i in range(32): a(f"v_mov_b32 v{A.vO+i}, v{A.vO+32+i}")
    for i in range(16): a(f"v_mov_b32 v{A.vQ+i}, v{A.vQ+16+i}")
    a(f"v_mov_b32 v{A.vL}, v{A.vL+8}\nv_mov_b32 v{A.vL+4}, v{A.vL+12}")
    a(f"s_branch {name}_x1\n{name}_x0:")
    send(2)
    a(f"s_waitcnt lgkmcnt(0)\n{name}_x1:")
    if not fused: a("s_barrier")
    else:
        a(f"""s_lshl_b32 s22, s3, 2
        s_add_u32 s22, s22, {XB + 32768 + 2048}
        s_xor_b32 s23, s22, 8
        v_mov_b32 v{A.vT+9}, s22
        v_mov_b32 v{A.vT+10}, s23
        v_mov_b32 v{A.vT+11}, 1
        ds_write_b32 v{A.vT+9}, v{A.vT+11}
        {name}_spin:
        ds_read_b32 v{A.vT+11}, v{A.vT+10}
        s_waitcnt lgkmcnt(0)
        v_readfirstlane_b32 s22, v{A.vT+11}
        s_cmp_eq_u32 s22, 0
        s_cbranch_scc1 {name}_spin""")
    a(f"ds_read_b64 v[{A.vL+8}:{A.vL+9}], v{A.vT+4}")
    for i in range(8): a(f"ds_read_b128 v[{A.vO+32+4*i}:{A.vO+32+4*i+3}], v{A.vT+2} offset:{1024*i}")
    a(f"""s_mov_b32 s26, {f2h(2.0**-64)}
    s_mov_b32 s27, {f2h(2.0**64)}
    s_waitcnt lgkmcnt(8)
    v_add_f32 v{A.vL}, v{A.vL}, v{A.vL+8}
    v_add_f32 v{A.vL+4}, v{A.vL+4}, v{A.vL+9}
    v_cmp_le_f32 s[28:29], s26, v{A.vL}
    v_cmp_le_f32 s[30:31], s26, v{A.vL+4}
    v_cmp_ge_f32 s[46:47], s27, v{A.vL}
    v_cmp_ge_f32 s[48:49], s27, v{A.vL+4}
    s_and_b64 s[28:29], s[28:29], s[30:31]
    s_and_b64 s[46:47], s[46:47], s[48:49]
    s_and_b64 s[28:29], s[28:29], s[46:47]""")
    for i in range(8):
        a(f"s_waitcnt lgkmcnt({7-i})")
        for r in range(4): a(f"v_add_f32 v{A.vO+4*i+r}, v{A.vO+4*i+r}, v{A.vO+32+4*i+r}")
    a(f"""s_cmp_eq_u64 s[28:29], -1
    s_cbranch_scc0 {name}_slow
    {name}_fin:
    v_rcp_f32 v{A.vL}, v{A.vL}
    v_rcp_f32 v{A.vL+4}, v{A.vL+4}
    s_lshl_b32 s22, s41, 3
    s_lshl_b32 s23, s37, 2
    s_add_u32 s22, s22, s23
    s_mul_i32 s22, s22, {HO_T16}
    s_lshl_b32 s23, s33, 10
    s_add_u32 s22, s22, s23
    s_add_u32 s22, s22, {HO_OFF + 112*1024}""")
    for qt in range(2):
        o = A.vO + 16 * qt
        for i in range(16): a(f"v_mul_f32 v{o+i}, v{o+i}, v{A.vL+4*qt}")
        for h in range(2):
            d = A.vS + 8 * qt + 4 * h
            idx = [4*h, 4*h+1, 4*h+2, 4*h+3, 8+4*h, 9+4*h, 10+4*h, 11+4*h]
            for j in range(4): a(f"v_cvt_pk_bf16_f32 v{d+j}, v{o+idx[2*j]}, v{o+idx[2*j+1]}")
            a(f"buffer_store_dwordx4 v[{d}:{d+3}], v{A.vT}, s[16:19], s22 offen offset:{512*h}" + (" sc1" if fused else ""))
        if qt == 0: a(f"s_add_u32 s22, s22, {2*HO_T16}")
    if fused:
        a(f"""s_lshl_b32 s22, s41, 8
        s_lshl_b32 s23, s33, 3
        s_add_u32 s22, s22, s23
        s_lshl_b32 s23, s37, 2
        s_add_u32 s22, s22, s23
        s_add_u32 s22, s22, {FLAG_OFF}
        v_mov_b32 v0, 1
        v_mov_b32 v1, 0
        s_mov_b64 exec, 1
        s_waitcnt vmcnt(0)
        buffer_store_dword v0, v1, s[16:19], s22 offen sc1""")
    a(f"{name}_end:\ns_endpgm")
    M = A.vT + 5
    a(f"{name}_slow:")
    a(f"v_mov_b32 v{M}, 0xff800000\nv_mov_b32 v{M+1}, 0xff800000\ns_mov_b32 s20, 0")
    a(f"{name}_slow1:")
    a(at_ld(0, "K", 0)); a(at_ld(0, "K", 1))
    a("s_add_u32 s20, s20, 2048\ns_waitcnt vmcnt(0)")
    a.ext(at_qk(0)); a.ext(at_qk(1)); a("s_nop 7\ns_nop 3")
    for qt in range(2):
        for i in range(0, 16, 2): a(f"v_max3_f32 v{M+qt}, v{M+qt}, v{A.vS+16*qt+i}, v{A.vS+16*qt+i+1}")
    a(f"s_cmp_lt_u32 s20, 131072\ns_cbranch_scc1 {name}_slow1")
    a(f"""v_mov_b32 v{M+2}, v{M}
    v_mov_b32 v{M+3}, v{M+1}
    s_nop 1
    v_permlane32_swap_b32 v{M}, v{M+2}
    v_permlane32_swap_b32 v{M+1}, v{M+3}
    v_max_f32 v{M}, v{M}, v{M+2}
    v_max_f32 v{M+1}, v{M+1}, v{M+3}
    s_mov_b32 s20, 0""")
    for i in range(32): a(f"v_mov_b32 v{A.vO+i}, 0")
    for i in range(8): a(f"v_mov_b32 v{A.vL+i}, 0")
    a(f"{name}_slow2:")
    a(at_ld(0, "K", 0)); a(at_ld(0, "K", 1)); a(at_ld(0, "V", 0)); a(at_ld(0, "V", 1))
    a("s_add_u32 s20, s20, 2048\ns_waitcnt vmcnt(0)")
    a.ext(at_qk(0)); a.ext(at_qk(1)); a("s_nop 7\ns_nop 3")
    for qt in range(2):
        s = A.vS + 16 * qt; p = A.vP + 8 * qt
        for i in range(16): a(f"v_sub_f32 v{s+i}, v{s+i}, v{M+qt}")
        for i in range(16): a(f"v_exp_f32 v{s+i}, v{s+i}")
        a("s_nop 0")
        for i in range(8): a(f"v_cvt_pk_bf16_f32 v{p+i}, v{s+2*i}, v{s+2*i+1}")
    a("s_nop 1")
    a.ext(at_pv(0)); a.ext(at_pv(1))
    a(f"s_cmp_lt_u32 s20, 131072\ns_cbranch_scc1 {name}_slow2")
    a(f"s_nop 7\ns_nop 3\ns_branch {name}_fin")

class G2:
    vACC = 0
    vX = 128
    vW = 192
    vXA = 224
    vDA = 228
    vRA = 229
    vL16 = 231
    vOA = 232
    vF = 233; vFA = 234
    vR = 236
REG2 = 24576
def g2_act(s, kk, tt, off):
    d = G2.vX + 32 * (s % 2) + (kk * 4 + tt) * 4
    return f"buffer_load_dwordx4 v[{d}:{d+3}], v{G2.vXA+tt}, s[8:11], s20 offen offset:{off + kk*512} sc1"
def g2_dma(s, i):
    return (f"s_add_u32 m0, s22, {(s % 4) * 4096 + i * 1024}", f"buffer_load_dwordx4 v{G2.vDA}, s[12:15], s{24+i} offen lds")
def g2_rd(s, kk, nt):
    d = G2.vW + 16 * (s % 2) + (kk * 2 + nt) * 4
    off = (s % 4) * 4096 + kk * 1024
    return [f"ds_read_b64_tr_b16 v[{d}:{d+1}], v{G2.vRA+nt} offset:{off}", f"ds_read_b64_tr_b16 v[{d+2}:{d+3}], v{G2.vRA+nt} offset:{off+2048}"]
G2_ADV = [f"s_add_u32 s{24+i}, s{24+i}, 65536" for i in range(4)]

def g2_step(s, dma, act, rd, vms, extra=None):
    G = G2; mf = []; fill = {}
    for kk in range(2):
        for tt in range(4):
            for nt in range(2):
                c = G.vACC + (tt * 2 + nt) * 16
                mf.append(M32(c, G.vW + 16 * (s % 2) + (kk * 2 + nt) * 4, G.vX + 32 * (s % 2) + (kk * 4 + tt) * 4, c))
    fill[-1] = [f"s_waitcnt vmcnt({vms[0]}) lgkmcnt(0)"]
    for i in range(16): fill[i] = []
    if dma:
        for i in range(4):
            m, ld = g2_dma(s + 3, i)
            fill[2 * i].append(m); fill[2 * i].append("s_nop 0"); fill[2 * i].append(ld)
        fill[8] += G2_ADV
    if act:
        for kk in range(2):
            for tt in range(4): fill[kk * 8 + tt * 2 + 1].append(g2_act(s + 2, kk, tt, (s % 4) * 1024))
    fill[7].append(f"s_waitcnt vmcnt({vms[1]})")
    if rd:
        r = sum([g2_rd(s + 1, kk, nt) for kk in range(2) for nt in range(2)], [])
        for i, x in enumerate(r): fill[6 + i].append(x)
    if extra:
        for k, v in extra.items(): fill[k] += v
    return weave(mf, fill)

def k3_gemm2(name):
    a = Asm()
    a(f"""s_cmp_ge_u32 s2, 256
    s_cbranch_scc1 {name}_end
    v_lshrrev_b32 v1, 6, v0
    v_and_b32 v2, 63, v0
    v_readfirstlane_b32 s3, v1""")
    gemm2_body(a, name, False)
    return a, dict(nm=name, vgpr=256, accum=256, lds=4*REG2, grid=256, block=256)

def gemm2_body(a, name, fused):
    G = G2
    a(f"""s_and_b32 s57, s3, 3
    s_load_dwordx2 s[40:41], s[0:1], 0
    s_load_dwordx2 s[42:43], s[0:1], 16
    s_load_dwordx4 s[44:47], s[0:1], 48
    s_load_dwordx2 s[48:49], s[0:1], 72
    s_and_b32 s33, s2, 7
    s_lshr_b32 s34, s2, 3
    s_lshr_b32 s35, s33, 1
    s_lshl_b32 s35, s35, 2
    s_lshr_b32 s36, s34, 3
    s_add_u32 s35, s35, s36
    s_and_b32 s36, s33, 1
    s_lshl_b32 s36, s36, 3
    s_and_b32 s37, s34, 7
    s_add_u32 s36, s36, s37
    s_lshl_b32 s37, s36, 7
    s_mul_i32 s38, s35, {8*HO_T16}
    s_add_u32 s38, s38, {HO_OFF}
    s_mul_i32 s22, s57, {REG2}
    s_mov_b32 s50, {HO_T16}""")
    a(f"""v_and_b32 v3, 15, v2
    v_bfe_u32 v4, v2, 4, 1
    v_lshrrev_b32 v5, 5, v2
    v_lshlrev_b32 v6, 4, v3
    v_lshl_add_u32 v6, v5, 8, v6
    v_mad_u32_u24 v{G.vXA}, v4, s50, v6
    v_add_u32 v{G.vXA+1}, {2*HO_T16}, v{G.vXA}
    v_add_u32 v{G.vXA+2}, {4*HO_T16}, v{G.vXA}
    v_add_u32 v{G.vXA+3}, {6*HO_T16}, v{G.vXA}
    v_lshrrev_b32 v6, 3, v2
    v_and_b32 v7, 7, v2
    v_lshlrev_b32 v8, 2, v4
    v_xor_b32 v7, v7, v8
    v_lshlrev_b32 v7, 4, v7
    v_lshl_add_u32 v{G.vDA}, v6, 11, v7
    v_bfe_u32 v6, v2, 2, 2
    v_lshl_add_u32 v6, v5, 2, v6
    v_lshlrev_b32 v6, 7, v6
    v_and_b32 v7, 3, v2
    v_lshl_add_u32 v6, v7, 3, v6
    v_lshl_add_u32 v6, v4, 5, v6
    v_add_u32 v6, s22, v6
    v_bfe_u32 v7, v2, 3, 1
    v_lshl_add_u32 v{G.vRA}, v7, 6, v6
    v_xor_b32 v7, 1, v7
    v_lshl_add_u32 v{G.vRA+1}, v7, 6, v6
    v_lshlrev_b32 v{G.vL16}, 4, v2
    v_and_b32 v6, 31, v2
    v_lshlrev_b32 v6, 11, v6
    v_lshl_add_u32 v{G.vOA}, v5, 4, v6
    s_mul_i32 s20, s57, {28*1024}
    s_mul_i32 s24, s57, {28*65536}
    s_add_u32 s25, s24, 16384
    s_add_u32 s26, s24, 32768
    s_add_u32 s27, s24, 49152
    s_lshl_b32 s39, s35, 2
    s_add_u32 s39, s39, s57
    s_lshl_b32 s39, s39, 16
    s_add_u32 s39, s39, s37
    s_waitcnt lgkmcnt(0)""")
    srd(a, 8, 48, WS_BYTES, "s38")
    srd(a, 12, 44, 3584*2048, "s37")
    srd(a, 16, 40, 4194304)
    srd(a, 28, 46, 4194304)
    a("s_add_u32 s42, s42, s37\ns_addc_u32 s43, s43, 0\ns_sub_u32 s51, 2097152, s37")
    def dma(s):
        for i in range(4):
            m, ld = g2_dma(s, i); a(m); a("s_nop 0"); a(ld)
        a.ext(G2_ADV)
    def act(s):
        for kk in range(2):
            for tt in range(4): a(g2_act(s, kk, tt, s * 1024))
    dma(0); dma(1); act(0); dma(2); act(1)
    for i in range(4): a(f"buffer_load_dwordx4 v[{G.vR+4*i}:{G.vR+4*i+3}], v{G.vOA}, s[16:19], s39 offen offset:{32*i}")
    a.ext(["s_lshl_b32 s52, s57, 19", "s_add_u32 s53, s52, 16384", "s_add_u32 s54, s52, 32768", "s_add_u32 s55, s52, 49152",
                "s_lshl_b32 s56, s57, 13", f"s_add_u32 s56, s56, {112*1024 - 2048}"])
    a("s_add_u32 s20, s20, 2048\ns_mov_b32 s21, 0")
    if fused:
        srd(a, 60, 48, WS_BYTES)
        a(f"s_lshl_b32 s58, s35, 8\ns_add_u32 s58, s58, {FLAG_OFF}\nv_lshrrev_b32 v{G.vFA}, 2, v{G.vL16}\ns_barrier")
    for i in range(128): a(f"v_mov_b32 v{G.vACC+i}, 0")
    a(";stamp 0\ns_waitcnt vmcnt(0)\n;stamp 1")
    for kk in range(2):
        for nt in range(2): a.ext(g2_rd(0, kk, nt))
    for i in range(4):
        a(f"v_permlane32_swap_b32 v{G.vR+4*i}, v{G.vR+4*i+2}\nv_permlane32_swap_b32 v{G.vR+4*i+1}, v{G.vR+4*i+3}")
    a(f".p2align 6\n{name}_loop:")
    for u in range(4):
        ex = {}
        if u == 0:
            ex = {9: ["s_cmp_eq_u32 s21, 6", "s_cselect_b32 s12, s42, s12", "s_cselect_b32 s13, s43, s13"],
                  10: ["s_cselect_b32 s14, s51, s14", "s_cselect_b32 s24, s52, s24", "s_cselect_b32 s25, s53, s25"],
                  11: ["s_cselect_b32 s26, s54, s26", "s_cselect_b32 s27, s55, s27"]}
        if u == 1:
            ex = {15: ["s_cmp_eq_u32 s21, 6", "s_cselect_b32 s20, s56, s20"]}
        if u == 3:
            ex = {15: ["s_add_u32 s20, s20, 4096", "s_add_u32 s21, s21, 1", "s_cmp_lg_u32 s21, 8"]}
        a.ext(g2_step(u, True, True, True, (16, 20), ex))
        if u == 1 and fused: a(f"s_cbranch_scc1 {name}_poll\n{name}_back:")
    a(f"s_cbranch_scc1 {name}_loop")
    a.ext(g2_step(0, True, True, True, (16, 20)))
    a.ext(g2_step(1, False, True, True, (16, 16)))
    a.ext(g2_step(2, False, False, True, (8, 8)))
    a.ext(g2_step(3, False, False, False, (4, 0)))
    a(";stamp 2")
    a(f"v_add_u32 v{G.vXA}, s22, v{G.vL16}\ns_nop 7")
    for w in range(4):
        a(f"s_cmp_eq_u32 s57, {w}\ns_cbranch_scc0 {name}_r{w}")
        for d in range(1, 4):
            tt = (w + d) % 4
            for i in range(8): a(f"ds_write_b128 v{G.vXA}, v[{tt*32+4*i}:{tt*32+4*i+3}] offset:{(d-1)*8192 + i*1024}")
        a("s_waitcnt lgkmcnt(0)\ns_barrier")
        for d in range(1, 4):
            src = (w - d) % 4
            base = src * REG2 + (d - 1) * 8192
            a(f"v_add_u32 v{G.vXA+d}, {base}, v{G.vL16}")
            for i in range(8): a(f"ds_read_b128 v[{128+(d-1)*32+4*i}:{128+(d-1)*32+4*i+3}], v{G.vXA+d} offset:{i*1024}")
            if d >= 2:
                a("s_waitcnt lgkmcnt(8)")
                for i in range(32): a(f"v_add_f32 v{w*32+i}, v{w*32+i}, v{128+(d-2)*32+i}")
        a("s_waitcnt lgkmcnt(0)")
        for i in range(32): a(f"v_add_f32 v{128+i}, v{w*32+i}, v{192+i}")
        a(f"s_branch {name}_fin\n{name}_r{w}:")
    a(f"{name}_fin:\ns_mov_b32 s23, 0xffff0000")
    for i in range(4):
        b = 128 + 8 * i
        for j in range(4):
            a(f"v_lshlrev_b32 v{2*j}, 16, v{G.vR+4*i+j}\nv_and_b32 v{2*j+1}, s23, v{G.vR+4*i+j}")
        for j in range(8): a(f"v_add_f32 v{b+j}, v{b+j}, v{j}")
        for j in range(4): a(f"v_cvt_pk_bf16_f32 v{16+4*i+j}, v{b+2*j}, v{b+2*j+1}")
        a(f"s_nop 1\nv_permlane32_swap_b32 v{16+4*i}, v{16+4*i+2}\nv_permlane32_swap_b32 v{16+4*i+1}, v{16+4*i+3}")
        a(f"buffer_store_dwordx4 v[{16+4*i}:{19+4*i}], v{G.vOA}, s[28:31], s39 offen offset:{32*i}")
    a(f"{name}_end:\ns_endpgm")
    if fused:
        a(f"""{name}_poll:
        ;stamp 3
        s_mov_b32 s59, 0
        {name}_poll1:
        buffer_load_dword v{G.vF}, v{G.vFA}, s[60:63], s58 offen sc1
        s_add_u32 s59, s59, 1
        s_waitcnt vmcnt(0)
        v_cmp_ne_u32 vcc, 1, v{G.vF}
        s_cmp_lt_u32 s59, 0x10000
        s_cbranch_scc0 {name}_poll2
        s_cbranch_vccnz {name}_poll1
        {name}_poll2:
        ;stamp 4
        s_branch {name}_back""")
```

```python
from asmlib import *
import math, os
WS_BYTES = 268435456
XN_OFF = 0
HO_OFF = 4 << 20
HO_T16 = 144 * 1024
Q_OFF = 24 << 20
K_OFF = 28 << 20
V_OFF = 32 << 20
QSCALE = (32 ** -0.5) * math.log2(math.e)

def wave_allsum(a, regs, tmp):
    for mod in ("quad_perm:[1,0,3,2]", "quad_perm:[2,3,0,1]", "row_half_mirror", "row_mirror"):
        a("s_nop 1")
        for r in regs: a(f"v_add_f32_dpp v{r}, v{r}, v{r} {mod} row_mask:0xf bank_mask:0xf")
    for op in ("v_permlane16_swap_b32", "v_permlane32_swap_b32"):
        for r, t in zip(regs, tmp): a(f"v_mov_b32 v{t}, v{r}")
        a("s_nop 1")
        for r, t in zip(regs, tmp): a(f"{op} v{r}, v{t}")
        for r, t in zip(regs, tmp): a(f"v_add_f32 v{r}, v{r}, v{t}")

def k0_ln(name):
    a = Asm()
    a(f"""s_cmp_ge_u32 s2, 256
    s_cbranch_scc1 {name}_end
    s_load_dwordx2 s[4:5], s[0:1], 0
    s_load_dwordx2 s[6:7], s[0:1], 72
    v_lshrrev_b32 v1, 6, v0
    v_and_b32 v2, 63, v0
    v_readfirstlane_b32 s3, v1
    v_lshlrev_b32 v3, 4, v2
    s_lshl_b32 s16, s2, 3
    s_lshl_b32 s17, s3, 1
    s_add_u32 s16, s16, s17
    s_lshl_b32 s16, s16, 11
    s_waitcnt lgkmcnt(0)""")
    srd(a, 8, 4, 4194304)
    for i in range(4): a(f"buffer_load_dwordx4 v[{4+4*i}:{7+4*i}], v3, s[8:11], s16 offen offset:{1024*i}")
    srd(a, 12, 6, 4194304)
    a(f"""v_and_b32 v20, 7, v2
    v_lshlrev_b32 v21, 1, v1
    v_xor_b32 v21, v21, v20
    v_xor_b32 v22, 1, v21
    v_lshlrev_b32 v23, 7, v2
    v_lshl_add_u32 v21, v21, 4, v23
    v_lshl_add_u32 v22, v22, 4, v23
    v_lshrrev_b32 v24, 3, v0
    v_and_b32 v25, 7, v0
    v_and_b32 v26, 7, v24
    v_xor_b32 v26, v26, v25
    v_lshlrev_b32 v26, 4, v26
    v_lshl_add_u32 v26, v24, 7, v26
    v_lshlrev_b32 v27, 4, v25
    v_lshl_add_u32 v27, v24, 8, v27
    s_lshr_b32 s18, s2, 1
    s_lshl_b32 s18, s18, 15
    s_and_b32 s19, s2, 1
    s_lshl_b32 s19, s19, 7
    s_add_u32 s18, s18, s19
    s_add_u32 s19, s18, 8192
    s_add_u32 s20, s18, 16384
    s_add_u32 s21, s18, 24576
    s_mov_b32 s22, 0xffff0000
    s_mov_b32 s23, {f2h(1.0/1024)}
    s_mov_b32 s24, {f2h(1e-5)}""")
    srd(a, 28, 6, WS_BYTES)
    a(f"""s_lshl_b32 s25, s2, 2
    s_add_u32 s25, s25, s3
    s_lshl_b32 s25, s25, 4
    s_add_u32 s25, s25, {40 << 20}
    v_mov_b32 v28, 0
    v_mov_b32 v29, 0
    v_mov_b32 v30, 0
    v_mov_b32 v31, 0""")
    X = 32
    a(";stamp 0")
    for row in range(2):
        a(f"s_waitcnt vmcnt({2-2*row})")
        for j in range(8):
            a(f"v_lshlrev_b32 v{X+16*row+2*j}, 16, v{4+8*row+j}")
            a(f"v_and_b32 v{X+16*row+2*j+1}, s22, v{4+8*row+j}")
        T = 64 + 8*row
        for j in range(8): a(f"v_add_f32 v{T+j}, v{X+16*row+j}, v{X+16*row+8+j}")
        for st in (4, 2, 1):
            for j in range(st): a(f"v_add_f32 v{T+j}, v{T+j}, v{T+j+st}")
    a(";stamp 1")
    wave_allsum(a, [64, 72], [65, 73])
    a("v_mul_f32 v64, s23, v64\nv_mul_f32 v72, s23, v72")
    D = 80
    for row in range(2):
        for j in range(16): a(f"v_sub_f32 v{D+16*row+j}, v{X+16*row+j}, v{64+8*row}")
        for j in range(4): a(f"v_mul_f32 v{66+8*row+j}, v{D+16*row+j}, v{D+16*row+j}")
        for j in range(4, 16): a(f"v_fmac_f32 v{66+8*row+j%4}, v{D+16*row+j}, v{D+16*row+j}")
        a(f"v_add_f32 v{66+8*row}, v{66+8*row}, v{67+8*row}\nv_add_f32 v{68+8*row}, v{68+8*row}, v{69+8*row}\nv_add_f32 v{66+8*row}, v{66+8*row}, v{68+8*row}")
    wave_allsum(a, [66, 74], [67, 75])
    a("""v_mul_f32 v66, s23, v66
    v_mul_f32 v74, s23, v74
    v_cvt_pk_bf16_f32 v64, v64, v72
    v_cvt_pk_bf16_f32 v66, v66, v74
    v_and_b32 v72, s22, v64
    v_lshlrev_b32 v64, 16, v64
    v_and_b32 v74, s22, v66
    v_lshlrev_b32 v66, 16, v66
    v_add_f32 v66, s24, v66
    v_add_f32 v74, s24, v74
    v_cvt_pk_bf16_f32 v66, v66, v74
    v_and_b32 v74, s22, v66
    v_lshlrev_b32 v66, 16, v66
    v_sqrt_f32 v74, v74
    v_sqrt_f32 v66, v66
    s_nop 0
    v_cvt_pk_bf16_f32 v66, v66, v74
    v_and_b32 v74, s22, v66
    v_lshlrev_b32 v66, 16, v66
    v_rcp_f32 v74, v74
    v_rcp_f32 v66, v66""")
    for row in range(2):
        b = X + 16*row
        for j in range(16): a(f"v_sub_f32 v{b+j}, v{b+j}, v{64+8*row}")
        for j in range(8): a(f"v_cvt_pk_bf16_f32 v{D+16*row+j}, v{b+2*j}, v{b+2*j+1}")
        for j in range(8):
            a(f"v_lshlrev_b32 v{b+2*j}, 16, v{D+16*row+j}")
            a(f"v_and_b32 v{b+2*j+1}, s22, v{D+16*row+j}")
        for j in range(16): a(f"v_mul_f32 v{b+j}, v{b+j}, v{66+8*row}")
        for j in range(8): a(f"v_cvt_pk_bf16_f32 v{D+16*row+8+j}, v{b+2*j}, v{b+2*j+1}")
        a(f"ds_write_b128 v{21+row}, v[{D+16*row+8}:{D+16*row+11}]")
        a(f"ds_write_b128 v{21+row}, v[{D+16*row+12}:{D+16*row+15}] offset:8192")
    a("buffer_store_dwordx4 v[28:31], v28, s[28:31], s25 offen")
    a("s_waitcnt lgkmcnt(0)\ns_barrier\n;stamp 2")
    for i in range(4): a(f"ds_read_b128 v[{4+4*i}:{7+4*i}], v26 offset:{4096*i}")
    for i in range(4):
        a(f"s_waitcnt lgkmcnt({3-i})")
        a(f"buffer_store_dwordx4 v[{4+4*i}:{7+4*i}], v27, s[12:15], s{18+i} offen")
    a(f"{name}_end:\ns_endpgm")
    return a, dict(nm=name, vgpr=128, accum=128, lds=16384, grid=256, block=256)

SLOT = 20480
class G1:
    vXN = 0
    vWF = 64
    vRA = 84
    vXA = 92
    vGU = 96; vQK = 97
    vT = 100
    vACC = 192
def acc(i, n=4):
    return ar(i, n) if i < 256 else vr(G1.vACC + i - 256, n)

def g1_reads(s, f):
    slot = s % 4; p = f // 4; cb = f % 4
    va = G1.vRA + cb + (4 if slot >= 2 else 0)
    off = (slot % 2) * SLOT + p * 4096
    d = G1.vWF + 4 * (f % 5)
    return [f"ds_read_b64_tr_b16 v[{d}:{d+1}], v{va} offset:{off}", f"ds_read_b64_tr_b16 v[{d+2}:{d+3}], v{va} offset:{off+512}"]
def g1_dma(typ, s, p):
    isq = p == 4 or (typ == "C" and p >= 2)
    return (f"s_add_u32 m0, s31, {(s % 4) * SLOT + p * 4096}",
            f"buffer_load_dwordx4 v{G1.vQK if isq else G1.vGU}, s[{4+4*p}:{7+4*p}], s{29 if isq else 28} offen lds")
def g1_xn(s, tt, off):
    d = G1.vXN + 16 * (s % 4) + 4 * tt
    return f"buffer_load_dwordx4 v[{d}:{d+3}], v{G1.vXA+tt}, s[24:27], s30 offen offset:{off}"
G1_ADV = ["s_add_u32 s28, s28, %d" % (32*7168), "s_add_u32 s29, s29, %d" % (32*6144)]

def g1_step(typ, s, pre, vm, bar=True, last=False, extra=None):
    mf = []; fill = {}
    for f in range(20):
        w = G1.vWF + 4 * (f % 5)
        for tt in range(4):
            x = G1.vXN + 16 * (s % 4) + 4 * tt
            c = acc((f * 4 + tt) * 4)
            if typ == "C" and 8 <= f < 16: mf.append(f"v_mfma_f32_16x16x32_bf16 {c}, v[{x}:{x+3}], v[{w}:{w+3}], {c}")
            else: mf.append(f"v_mfma_f32_16x16x32_bf16 {c}, v[{w}:{w+3}], v[{x}:{x+3}], {c}")
        g = 4 * f
        nf = f + 4
        if nf < 20: r = g1_reads(s, nf)
        elif not last: r = g1_reads(s + 1, nf - 20)
        else: r = []
        for i, x in enumerate(r): fill.setdefault(g + i, []).append(x)
        if f < 19:
            outstanding = 6 if (not last or f + 4 < 20) else max(0, 2 * (19 - (f + 1)))
            fill.setdefault(g + 3, []).append(f"s_waitcnt lgkmcnt({outstanding})")
    fill[-1] = [f"s_waitcnt vmcnt({vm}) lgkmcnt(6)"] + (["s_barrier"] if bar else [])
    if pre:
        for p in range(5):
            m, ld = g1_dma(typ, s + 3, p)
            fill.setdefault(4 * p + 2, []).append(m)
            fill[4 * p + 3].insert(0, ld)
        for tt in range(4):
            fill.setdefault(4 * (5 + tt) + 2, []).append(g1_xn(s + 3, tt, (s % 4) * 1024))
        fill.setdefault(4 * 10 + 2, []).extend(G1_ADV)
    if extra:
        for k, v in extra.items(): fill.setdefault(k, []).extend(v)
    return weave(mf, fill)

def g1_pack_store(a, srcs, mul, tmp, voff, soff, off):
    def get(i, t):
        if i < 256:
            a(f"v_accvgpr_read_b32 v{t}, a{i}"); return t
        return G1.vACC + i - 256
    if mul == "gu":
        g = [get(i, tmp + j) for j, i in enumerate(srcs[:8])]
        u = [get(i, tmp + 8 + j) for j, i in enumerate(srcs[8:])]
        for j in range(8): a(f"v_mul_f32 v{tmp+j}, v{g[j]}, v{u[j]}")
        g = [tmp + j for j in range(8)]
    else:
        g = [get(i, tmp + j) for j, i in enumerate(srcs)]
        if mul:
            for j in range(8): a(f"v_mul_f32 v{tmp+j}, {mul}, v{g[j]}")
            g = [tmp + j for j in range(8)]
    for j in range(4): a(f"v_cvt_pk_bf16_f32 v{tmp+16+j}, v{g[2*j]}, v{g[2*j+1]}")
    a(f"buffer_store_dwordx4 v[{tmp+16}:{tmp+19}], v{voff}, s[24:27], {soff} offen offset:{off}" + os.environ.get("STM", ""))

def k1_gemm1(name):
    a = Asm(); G = G1
    a(f"""s_cmp_ge_u32 s2, 256
    s_cbranch_scc1 {name}_end
    s_load_dwordx2 s[40:41], s[0:1], 8
    s_load_dwordx4 s[44:47], s[0:1], 32
    s_load_dwordx2 s[48:49], s[0:1], 72
    s_load_dwordx2 s[64:65], s[0:1], 48
    s_load_dwordx2 s[68:69], s[0:1], 16
    v_lshrrev_b32 v1, 6, v0
    v_and_b32 v2, 63, v0
    v_readfirstlane_b32 s3, v1
    s_and_b32 s33, s2, 7
    s_lshr_b32 s34, s2, 3
    s_and_b32 s35, s34, 3
    s_lshr_b32 s34, s34, 2
    s_mul_i32 s36, s33, 7
    s_lshl_b32 s37, s35, 1
    s_add_u32 s36, s36, s37
    s_lshl_b32 s37, s36, 7
    s_add_u32 s38, s37, 128
    s_lshl_b32 s39, s33, 8
    s_lshl_b32 s31, s3, 10""")
    a(f"""v_lshrrev_b32 v3, 3, v2
    v_lshl_add_u32 v3, v1, 3, v3
    v_bfe_u32 v4, v2, 4, 1
    v_and_b32 v5, 1, v1
    v_lshl_or_b32 v4, v5, 1, v4
    v_lshlrev_b32 v4, 1, v4
    v_and_b32 v5, 7, v2
    v_xor_b32 v4, v4, v5
    v_lshlrev_b32 v4, 4, v4
    s_movk_i32 s50, 7168
    s_movk_i32 s51, 6144
    v_mad_u32_u24 v{G.vGU}, v3, s50, v4
    v_mad_u32_u24 v{G.vQK}, v3, s51, v4""")
    a(f"""s_lshl_b32 s52, s34, 4
    s_lshl_b32 s53, s3, 2
    s_add_u32 s52, s52, s53
    s_lshl_b32 s53, s52, 15
    v_lshlrev_b32 v{G.vT}, 4, v2
    v_add_u32 v{G.vXA}, s53, v{G.vT}
    v_add_u32 v{G.vXA+1}, 0x8000, v{G.vXA}
    v_add_u32 v{G.vXA+2}, 0x10000, v{G.vXA}
    v_add_u32 v{G.vXA+3}, 0x18000, v{G.vXA}""")
    a(f"""v_lshrrev_b32 v3, 4, v2
    v_bfe_u32 v4, v2, 2, 2
    v_lshl_add_u32 v5, v3, 3, v4
    v_lshlrev_b32 v5, 7, v5
    v_and_b32 v6, 3, v2
    v_lshl_add_u32 v5, v6, 3, v5
    v_bfe_u32 v6, v2, 3, 2""")
    for cb in range(4):
        a(f"v_xor_b32 v7, {cb}, v6\nv_lshl_add_u32 v{G.vRA+cb}, v7, 5, v5\nv_add_u32 v{G.vRA+4+cb}, {2*SLOT}, v{G.vRA+cb}")
    a(f"""v_and_b32 v4, 15, v2
    v_lshlrev_b32 v5, 9, v3
    v_lshl_add_u32 v{G.vT+1}, v4, 4, v5
    v_and_b32 v6, 7, v2
    v_lshl_add_u32 v5, v6, 4, v5
    v_bfe_u32 v6, v2, 3, 1
    v_lshl_add_u32 v{G.vT+2}, v6, 8, v5
    s_mov_b32 s28, 0
    s_mov_b32 s29, 0
    s_mov_b32 s30, 0
    s_waitcnt lgkmcnt(0)""")
    srd(a, 24, 48, WS_BYTES)
    a(f"""s_mov_b32 s66, {3584*2048}
    s_mov_b32 s67, 0x00020000
    s_mov_b32 s70, {1024*2048}
    s_mov_b32 s71, 0x00020000
    s_lshl_b32 s61, s2, 2
    s_add_u32 s61, s61, s3
    s_lshl_b32 s61, s61, 13
    v_lshlrev_b32 v{G.vT+3}, 7, v2""")
    srd(a, 4, 44, 1024*7168, "s37")
    srd(a, 8, 46, 1024*7168, "s37")
    a(f"s_cmp_eq_u32 s35, 3\ns_cbranch_scc1 {name}_C")
    for typ in "AC":
        if typ == "A":
            srd(a, 12, 44, 1024*7168, "s38")
            srd(a, 16, 46, 1024*7168, "s38")
            a("""s_lshl_b32 s54, s35, 7
            s_cmp_eq_u32 s35, 2
            s_cselect_b32 s54, 2176, s54
            s_add_u32 s54, s54, s39""")
            srd(a, 20, 40, 1024*6144, "s54")
        else:
            a(f"{name}_C:")
            a("s_add_u32 s54, s39, 4096"); srd(a, 12, 40, 1024*6144, "s54")
            a("s_add_u32 s54, s39, 4224"); srd(a, 16, 40, 1024*6144, "s54")
            a("s_add_u32 s54, s39, 2048"); srd(a, 20, 40, 1024*6144, "s54")
        for s in range(3):
            for p in range(5):
                m, ld = g1_dma(typ, s, p); a(m); a("s_nop 0"); a(ld)
            for tt in range(4): a(g1_xn(s, tt, s * 1024))
            a.ext(G1_ADV)
        a("s_movk_i32 s30, 3072\ns_mov_b32 s32, 7")
        for i in range(256): a(f"v_accvgpr_write_b32 a{i}, 0")
        for i in range(64): a(f"v_mov_b32 v{G.vACC+i}, 0")
        a(";stamp 0\ns_waitcnt vmcnt(22)\ns_barrier\n;stamp 1")
        for f in range(4): a.ext(g1_reads(0, f))
        a(f".p2align 6\n{name}_loop{typ}:")
        for u in range(4):
            ex = {46: ["s_add_u32 s30, s30, 4096", "s_sub_u32 s32, s32, 1"], 50: ["s_cmp_lg_u32 s32, 0"]} if u == 3 else None
            a.ext(g1_step(typ, u, True, 13, extra=ex))
        a(f"s_cbranch_scc1 {name}_loop{typ}")
        a.ext(g1_step(typ, 0, True, 13))
        pf = {2: [f"buffer_load_dword v{G.vT+4}, v{G.vT+3}, s[64:67], s61 offen"], 6: [f"buffer_load_dword v{G.vT+5}, v{G.vT+3}, s[68:71], s61 offen"]}
        a.ext(g1_step(typ, 1, False, 13, extra=pf))
        a.ext(g1_step(typ, 2, False, 6))
        a.ext(g1_step(typ, 3, False, 2, bar=False, last=True))
        a(";stamp 2")
        a(f"""s_mul_i32 s56, s52, {HO_T16}
        s_lshl_b32 s57, s36, 11
        s_add_u32 s56, s56, s57
        s_add_u32 s56, s56, {HO_OFF}
        s_lshl_b32 s57, s52, 10
        s_lshl_b32 s58, s33, 19
        s_add_u32 s57, s57, s58""")
        n = 0
        def tmp():
            nonlocal n; n += 1
            return 0 + 20 * (n % 4)
        for tt in range(4):
            for pp in range(2 if typ == "A" else 1):
                for j in range(2):
                    f = 8 * pp + 2 * j
                    gs = [((f + e) * 4 + tt) * 4 + r for e in range(2) for r in range(4)]
                    us = [((f + 4 + e) * 4 + tt) * 4 + r for e in range(2) for r in range(4)]
                    g1_pack_store(a, gs + us, "gu", tmp(), G.vT, "s56", (2 * pp + j) * 1024)
            if tt < 3: a(f"s_add_u32 s56, s56, {HO_T16}")
        if typ == "C":
            for hh in range(4):
                a(f"s_add_u32 s58, s57, {V_OFF + hh * 131072}")
                for e in range(2):
                    f = 8 + 2 * hh + e
                    for t2 in range(2):
                        src = [(f * 4 + 2 * t2 + b) * 4 + r for b in range(2) for r in range(4)]
                        g1_pack_store(a, src, None, tmp(), G.vT + 1, "s58", t2 * 2048 + e * 256)
            a(f"s_add_u32 s58, s57, {K_OFF}")
        else:
            a(f"""s_lshl_b32 s59, s35, 18
            s_add_u32 s59, s59, {Q_OFF}
            s_cmp_eq_u32 s35, 2
            s_cselect_b32 s59, {K_OFF + 2*131072}, s59
            s_add_u32 s58, s57, s59
            s_cmp_eq_u32 s35, 2
            s_cbranch_scc1 {name}_kst
            s_mov_b32 s60, {f2h(QSCALE)}""")
            for j in range(2):
                for tt in range(4):
                    src = [((16 + 2 * j + e) * 4 + tt) * 4 + r for e in range(2) for r in range(4)]
                    g1_pack_store(a, src, "s60", tmp(), G.vT + 1, "s58", (tt // 2) * 2048 + (tt % 2) * 256)
                if j == 0: a("s_add_u32 s58, s58, 131072")
            a("s_endpgm")
    a(f"{name}_kst:")
    for j in range(2):
        for tt in range(4):
            src = [((16 + 2 * j + e) * 4 + tt) * 4 + r for e in range(2) for r in range(4)]
            g1_pack_store(a, src, None, tmp(), G.vT + 2, "s58", (tt // 2) * 2048 + (tt % 2) * 128)
        if j == 0: a("s_add_u32 s58, s58, 131072")
    a(f"{name}_end:\ns_endpgm")
    return a, dict(nm=name, vgpr=512, accum=256, lds=4*SLOT, grid=256, block=256)
```

```python
from asmlib import *
from sched import *
from k01 import WS_BYTES, HO_OFF, HO_T16, Q_OFF, K_OFF, V_OFF, QSCALE
import os
E = lambda k, d: int(os.environ.get(k, d))
FLAG_OFF = 40 << 20
FQ, FH, FO = FLAG_OFF, FLAG_OFF + 4096, FLAG_OFF + 8192
A0 = 256
vL16, vGU, vQK, vRA = 128, 129, 130, 131
vST0, vST1, vSTV, vPF, vFL, vTOK, vPOLL, vOST = 139, 140, 141, 142, 143, 144, 145, 146
vDA, vR2, vOA, vPD = 147, 151, 153, 154
vPC = 155
vSEL = 156
sCD = 36
sWS, sWD, sWO, sX, sOUT = 24, 28, 32, 20, 40
sGU, sQK, sXN = 44, 46, 48
sM1, sREG, sAC, sW2, sK, sV, sQ, sH, sQS, sT = 52, 53, 54, 62, 63, 64, 65, 67, 68, 69
sSC = 70
sFQW, sFQP, sFHW, sFOW, sFP, sPF = 72, 73, 74, 75, 76, 77
sOS, sRES, sWO0, sACD = 4, 6, 8, 9
def srdt(d): return f"s[{d}:{d+3}]"
def M16(d, x, y, z=False): return f"v_mfma_f32_16x16x32_bf16 {R(d,4)}, {R(x,4)}, {R(y,4)}, " + ("0" if z else R(d, 4))
def M32(d, x, y, z=False): return f"v_mfma_f32_32x32x16_bf16 {R(d,16)}, {R(x,4)}, {R(y,4)}, " + ("0" if z else R(d, 16))
CPF = E("CPF", 2)
def code_pf(lbl, d=248): return [f"s_mov_b32 s{sT}, {lbl}-f_base", f"buffer_load_dword v{d}, v{vPC}, {srdt(sCD)}, s{sT} offen"]
def flag_store(s): return f"buffer_store_dword v{vTOK}, v{vFL}, {srdt(sWS)}, s{s} offen sc1"
def poll_load(s, off, tag): return f"buffer_load_dword v{vPD}, v{vPOLL}, {srdt(sWS)}, s{s} offen offset:{off} sc1 ;@{tag}"
def poll_check(lbl, tag): return [W(tag), f"v_cmp_ne_u32 vcc, v{vTOK}, v{vPD}", f"s_cbranch_vccnz {lbl}", f"{lbl}_back:"]
def poll_slow(lbl, s, off, st):
    return f"""{lbl}:
    s_mov_b32 s{sT}, 0
    {lbl}_1:
    s_sleep 1
    buffer_load_dword v{vPD}, v{vPOLL}, {srdt(sWS)}, s{s} offen offset:{off} sc1
    s_add_u32 s{sT}, s{sT}, 1
    s_waitcnt vmcnt(0)
    v_cmp_ne_u32 vcc, v{vTOK}, v{vPD}
    s_cmp_lt_u32 s{sT}, 0x8000
    s_cbranch_scc0 {lbl}_back
    s_cbranch_vccnz {lbl}_1
    s_branch {lbl}_back"""

SLOT = 24576
XSET = [A0 + 192, A0 + 224, 160]
WF = 192; TMP = 216
ORD2 = [0, 1, 4, 5, 2, 3, 6, 7]
def npair(S): return 12 if S < 16 else 8
def pair0(S): return 12 * S if S < 16 else 192 + 8 * (S - 16)
def frag(S, i): return i if S < 16 else ORD2[i]
def g1_reads(S, i):
    f = frag(S, i); slot = S % 4; gp = pair0(S) + i
    va = vRA + f % 4 + (4 if slot >= 2 else 0)
    off = (slot % 2) * SLOT + (f // 4) * 8192
    d = WF + 8 * (gp % 3)
    return [f"ds_read_b64_tr_b16 {R(d+2*q,2)}, v{va} offset:{off + (q//2)*4096 + (q%2)*512} ;@w{gp}" for q in range(4)]
def g1_dma(typ, S):
    L = []
    for p in range(3 if S < 16 else 2):
        isq = S < 16 and (typ == "C" or p == 0)
        for kk in range(2):
            L.append((f"s_add_u32 m0, s{sM1}, {(S % 4) * SLOT + p * 8192 + kk * 4096}",
                      f"buffer_load_dwordx4 v{vQK if isq else vGU}, {srdt(4 + 4*p if S < 16 else 16 + 4*p)}, s{(sQK if isq else sGU) + kk} offen lds ;@d{S}"))
    return L
def g1_dadv(typ, S):
    if S == 15: return [f"s_mov_b32 s{sGU}, 0", f"s_mov_b32 s{sGU+1}, {32*7168}"]
    L = []
    if S >= 16 or typ == "A": L += [f"s_add_u32 s{sGU+k}, s{sGU+k}, {64*7168}" for k in range(2)]
    if S < 16: L += [f"s_add_u32 s{sQK+k}, s{sQK+k}, {64*6144}" for k in range(2)]
    return L
XSC = " sc1" if E("XSC", 0) else ""
def g1_xn(S):
    return [f"buffer_load_dwordx4 {R(XSET[S % 3] + (tt*2+kk)*4, 4)}, v{vL16}, {srdt(sWS)}, s{sXN+tt} offen offset:{(S % 2)*2048 + kk*1024}{XSC} ;@x{S}"
            for tt in range(4) for kk in range(2)]
def g1_xadv(S):
    if S % 2 == 0: return []
    return [f"s_add_u32 s{sXN+tt}, s{sXN+tt}, 4096" if S != 15 else f"s_sub_u32 s{sXN+tt}, s{sXN+tt}, {32768-4096}" for tt in range(4)]
def g1_step(typ, S, pre, vm, stream, first, btags, bpost):
    n = npair(S); mf = []; fill = {g: [] for g in range(8 * n)}
    for i in range(n):
        f = frag(S, i); w = WF + 8 * ((pair0(S) + i) % 3)
        for tt, kk in ([(q // 2, q % 2) for q in range(8)] if E("CHAIN", 1) else [(q % 4, q // 4) for q in range(8)]):
            if 1:
                x = XSET[S % 3] + (tt * 2 + kk) * 4
                c = (A0 if S < 16 else 0) + (f * 4 + tt) * 4
                z = S % 16 == 0 and kk == 0
                mf.append(M16(c, x, w + 4*kk, z) if (typ == "C" and S < 16 and f < 8) else M16(c, w + 4*kk, x, z))
        r = g1_reads(S, i + 2) if i + 2 < n else (g1_reads(S + 1, i + 2 - n) if S < 31 else [])
        for q, x in enumerate(r): fill[8*i + ((4, 5, 6, 7) if i == n - 2 else (0, 1, 4, 5))[q]].append(x)
    if S < 31: fill[8*(n-2) + 3] += [W(f"d{S+1}", f"w{pair0(S) + n - 1}", *btags), "s_barrier"]
    for x in bpost: fill[8*(n-1) + 2].append(x)
    slots = [8*i + q for i in range(n) for q in (2, 6) if (i, q) != (n - 2, 6) and not (bpost and (i, q) == (n - 1, 2))]
    ops = []
    if S + 2 < 32: ops += [[None, ld] for ld in g1_xn(S + 2)]; ops[-1] += g1_xadv(S + 2)
    if S + 3 < 32: ops += [list(x) for x in g1_dma(typ, S + 3)]; ops[-1] += g1_dadv(typ, S + 3)
    ops += [[None, ld] for ld in vm]
    if len(ops) > len(slots): slots = sorted(slots + [8*i + 3 for i in range(n - 2)])
    for k, o in enumerate(ops):
        g = slots[(k * len(slots)) // len(ops)]
        if o[0]: fill[g - 1].append(o[0])
        fill[g].append(o[1])
        if o[2:]: fill[g].append(o[2]); fill[g + 1] += o[3:]
    for i in range(n - 1): fill[8*i + 7].append(W(f"w{pair0(S) + i + 1}"))
    fill[-1] = pre
    return weave2(mf, fill, stream, first=first)

class Tmp:
    n = 0
    @classmethod
    def get(c): c.n += 1; return TMP + 16 * (c.n % 2)
def pack(srcs, mul, voff, soff, off, tag, pk=False):
    t = Tmp.get(); L = []
    def get(idx, base):
        if idx[0] < A0: return idx
        for j, i in enumerate(idx): L.append(f"v_accvgpr_read_b32 v{base+j}, {R(i)}")
        return [base + j for j in range(8)]
    g = get(srcs[:8], t)
    if mul == "gu":
        u = get(srcs[8:], t + 8)
        if pk:
            for j in range(0, 8, 2): L.append(f"v_pk_mul_f32 {R(t+j,2)}, {R(g[j],2)}, {R(u[j],2)}")
        else:
            for j in range(8): L.append(f"v_mul_f32 v{t+j}, v{g[j]}, v{u[j]}")
        g = [t + j for j in range(8)]
    elif mul:
        for j in range(8): L.append(f"v_mul_f32 v{t+j}, s{sSC}, v{g[j]}")
    for j in range(4): L.append(f"v_cvt_pk_bf16_f32 v{t+j}, v{g[2*j]}, v{g[2*j+1]}")
    L.append(f"buffer_store_dwordx4 {R(t,4)}, v{voff}, {srdt(sWS)}, s{soff} offen offset:{off} sc1 ;@{tag}")
    return L
def quad(base, f0, tt): return [base + ((f0 + e) * 4 + tt) * 4 + r for e in range(2) for r in range(4)]
def epi_qk(f0, mul):
    L = []
    for hh in range(2):
        for tt in range(4): L += pack(quad(A0, f0 + 2*hh, tt), mul, vST0 + tt % 2, sQS, (tt // 2) * 2048, "qkv")
        if hh == 0: L.append(f"s_add_u32 s{sQS}, s{sQS}, 131072")
    return L
def epi_h(base, fg, fu, js, off0, rev=False):
    L = []
    for n in range(4):
        tt = 3 - n if rev else n
        for j in js: L += pack(quad(base, fg + 2*j, tt) + quad(base, fu + 2*j, tt), "gu", vL16, sH, off0 + j * 1024, "hst", rev)
        if n < 3: L.append(f"s_{'sub' if rev else 'add'}_u32 s{sH}, s{sH}, {HO_T16}")
    return L
def epi1(typ):
    if typ == "A":
        return epi_qk(0, True), epi_h(A0, 4, 8, (0, 1), 0) + [f"s_sub_u32 s{sH}, s{sH}, {3*HO_T16 - 2048}"]
    L = epi_qk(8, False) + [f"s_add_u32 s{sQS}, s{sQS}, {V_OFF - K_OFF - 131072}"]
    for hh in range(4):
        for e in range(2):
            for t2 in range(2):
                L += pack([A0 + ((2*hh + e) * 4 + 2*t2 + b) * 4 + r for b in range(2) for r in range(4)], None, vSTV, sQS, t2 * 2048 + e * 256, "qkv")
        if hh < 3: L.append(f"s_add_u32 s{sQS}, s{sQS}, 131072")
    return L, []

aQ, aK, aV = A0, A0 + 32, A0 + 64
vS, vP, vO, vLs = 0, 32, 48, 112
def at_qk(t):
    s = vS + 16 * (t % 2); k = aK + 8 * ((t // 4) % 4); q = aQ + 8 * (t % 4)
    return [M32(s, k, q, True), M32(s, k + 4, q + 4)]
def at_pv(t, z=False):
    p = vP + 8 * (t % 2); v = aV + 8 * ((t // 4) % 4); o = vO + 16 * (t % 4); l = vLs + 4 * (t % 4)
    return [M32(o, v, p, z), M32(o, v + 4, p + 4), M16(l, vSEL, p, z), M16(l, vSEL, p + 4)]
def at_ld(kt, w, kk, off=None):
    d = (aK if w == "K" else aV) + 8 * (kt % 4) + 4 * kk
    if off is None: off = (kt % 2) * 2048
    return f"buffer_load_dwordx4 {R(d,4)}, v{vL16}, {srdt(sWS)}, s{sK if w == 'K' else sV} offen offset:{off + kk*1024} sc1 ;@{w}{kt}"
def at_q(i): return f"buffer_load_dwordx4 {R(aQ+4*i,4)}, v{vL16}, {srdt(sWS)}, s{sQ + i//4} offen offset:{(i%4)*1024} sc1 ;@Q{i//2}"
def at_period(t, mem, pre):
    s = vS + 16 * (t % 2); p = vP + 8 * (t % 2)
    Ex = [f"v_exp_f32 v{s+i}, v{s+i}" for i in range(16)]
    C = [f"v_cvt_pk_bf16_f32 v{p+i}, v{s+2*i}, v{s+2*i+1}" for i in range(8)]
    q = at_qk(t + 1) if t < 127 else [None, None]
    v = at_pv(t - 1, t <= 4) if t > 0 else [None] * 4
    mem = mem + [[]] * (6 - len(mem))
    L = list(pre)
    L += [q[0]] + mem[0] + Ex[0:4]
    L += [q[1]] + mem[1] + [Ex[4], C[0], Ex[5], C[1], Ex[6]]
    L += [v[0]] + mem[2] + [Ex[7], C[2], Ex[8], Ex[9], C[3]]
    L += [v[2]] + mem[4] + [Ex[10], Ex[11], C[4]]
    L += [v[1]] + mem[3] + [Ex[12], Ex[13], C[5], Ex[14], Ex[15]]
    L += [v[3]] + mem[5] + [C[6], C[7]]
    return [x for x in L if x]

REG = 40960
ASET = [A0 + 96 + 32 * i for i in range(5)] + [160 + 32 * i for i in range(3)]
W2 = [A0 + 40, A0 + 72]
def g2_act(s, t): return f"buffer_load_dwordx4 {R(ASET[s % 8] + 4*t, 4)}, v{vL16}, {srdt(sWS)}, s{sAC+t} offen offset:{(s % 4)*1024} sc1 ;@a{s}_{t}"
def g2_aadv(s, t):
    if s % 4 != 3 or s == 35: return []
    return [f"s_add_u32 s{sAC+t}, s{sAC+t}, " + ("4096" if s != 27 else f"s{sACD}")]
def g2_dma(s, i): return [f"s_add_u32 m0, s{sREG}, {(s % 8) * 4096 + i * 1024}",
                          f"buffer_load_dwordx4 v{vDA+i}, {srdt(sWD if s < 28 else sWO)}, s{sW2} offen lds ;@e{s}"]
def g2_dadv(s): return [f"s_add_u32 s{sW2}, s{sW2}, 65536" if s != 27 else f"s_mov_b32 s{sW2}, s{sWO0}"]
def g2_rd(s):
    return [f"ds_read_b64_tr_b16 {R(W2[s % 2] + 4*nt + 2*h, 2)}, v{vR2 + nt//2} offset:{(s % 8)*4096 + (nt % 2)*8 + h*2048} ;@r{s}" for nt in range(4) for h in range(2)]
def g2_step(s, pre, extra, stream=None, first=0):
    order = list(range(8)) if s < 35 else [2, 3, 4, 5, 6, 7, 0, 1]
    mf = []; fill = {g: [] for g in range(32)}
    for n, t in enumerate(order):
        for nt in range(4): mf.append(M16((t*4 + nt) * 4, W2[s % 2] + 4*nt, ASET[s % 8] + 4*t, s == 0))
        if s + 8 < 36:
            fill[4*n + 3].append(g2_act(s + 8, t))
            if n < 7: fill[4*n + 6] += g2_aadv(s + 8, t)
        if n < 7: fill[4*n + 3].append(W(f"a{s}_{order[n+1]}"))
    if s + 8 < 36: fill[31] += g2_aadv(s + 8, 7)
    if s < 35:
        for q, x in enumerate(g2_rd(s + 1)): fill[4 * (q // 2) + q % 2].append(x)
    if s + 8 < 36:
        for i in range(4):
            m, ld = g2_dma(s + 8, i); fill[16 + 4*i].append(m); fill[17 + 4*i].append(ld)
        fill[29] += g2_dadv(s + 8)
    for k, v in extra.items(): fill[k] += v
    fill[-1] = pre + [W(f"a{s}_{order[0]}", f"r{s}", *([f"e{s+1}"] if s < 35 else []))]
    return weave2(mf, fill, stream, first=first)

def fused(name):
    a = Asm()
    a(f"""s_cmp_ge_u32 s2, 256
    s_cbranch_scc0 {name}_go
    s_endpgm
    {name}_go:
    s_load_dwordx2 s[54:55], s[0:1], 8
    s_load_dwordx4 s[56:59], s[0:1], 32
    s_load_dwordx2 s[{sWS}:{sWS+1}], s[0:1], 72
    s_load_dwordx2 s[{sWD}:{sWD+1}], s[0:1], 48
    s_load_dwordx2 s[{sWO}:{sWO+1}], s[0:1], 16
    s_load_dwordx2 s[{sOUT}:{sOUT+1}], s[0:1], 56
    v_lshrrev_b32 v1, 6, v0
    v_and_b32 v2, 63, v0
    v_readfirstlane_b32 s3, v1
    s_and_b32 s60, s2, 7
    s_lshr_b32 s61, s2, 3
    s_and_b32 s62, s61, 3
    s_lshr_b32 s63, s61, 2
    s_mul_i32 s64, s60, 7
    s_lshl_b32 s65, s62, 1
    s_add_u32 s64, s64, s65
    s_lshl_b32 s65, s64, 7
    s_lshl_b32 s66, s60, 8
    s_lshl_b32 s{sM1}, s3, 10""")
    a(f"""v_lshrrev_b32 v3, 3, v2
    v_lshl_add_u32 v3, v1, 3, v3
    v_bfe_u32 v4, v2, 4, 1
    v_and_b32 v5, 1, v1
    v_lshl_or_b32 v4, v5, 1, v4
    v_lshlrev_b32 v4, 1, v4
    v_and_b32 v5, 7, v2
    v_xor_b32 v4, v4, v5
    v_lshlrev_b32 v4, 4, v4
    s_movk_i32 s67, 7168
    s_movk_i32 s68, 6144
    v_mad_u32_u24 v{vGU}, v3, s67, v4
    v_mad_u32_u24 v{vQK}, v3, s68, v4
    v_lshlrev_b32 v{vL16}, 4, v2
    s_lshl_b32 s69, s63, 4
    s_lshl_b32 s70, s3, 2
    s_add_u32 s69, s69, s70
    s_lshl_b32 s{sXN}, s69, 15
    s_add_u32 s{sXN+1}, s{sXN}, 0x8000
    s_add_u32 s{sXN+2}, s{sXN}, 0x10000
    s_add_u32 s{sXN+3}, s{sXN}, 0x18000
    s_mov_b32 s{sGU}, 0
    s_mov_b32 s{sGU+1}, {32*7168}
    s_mov_b32 s{sQK}, 0
    s_mov_b32 s{sQK+1}, {32*6144}
    s_mov_b32 s{sWS+2}, {WS_BYTES}
    s_mov_b32 s{sWD+2}, {3584*2048}
    s_mov_b32 s{sWO+2}, {1024*2048}
    s_getpc_b64 s[{sCD}:{sCD+1}]
    f_base:
    s_mov_b32 s{sCD+2}, f_last-f_base
    s_mov_b32 s{sOUT+2}, {2048*2048}""")
    for d in (sWS, sWD, sWO, sCD, sOUT): a(f"s_mov_b32 s{d+3}, 0x00020000")
    a(f"s_cmp_eq_u32 s62, 3\ns_waitcnt lgkmcnt(0)\ns_cbranch_scc1 {name}_C")
    pro = a.L
    def consts(b):
        b(f"""v_lshrrev_b32 v3, 4, v2
        v_bfe_u32 v4, v2, 2, 2
        v_lshl_add_u32 v5, v3, 3, v4
        v_lshlrev_b32 v5, 7, v5
        v_and_b32 v6, 3, v2
        v_lshl_add_u32 v5, v6, 3, v5
        v_bfe_u32 v7, v2, 3, 2""")
        for cb in range(4): b(f"v_xor_b32 v8, {cb}, v7\nv_lshl_add_u32 v{vRA+cb}, v8, 5, v5\nv_add_u32 v{vRA+4+cb}, {2*SLOT}, v{vRA+cb}")
        b(f"""s_mul_i32 s{sREG}, s3, {REG}
        v_lshrrev_b32 v5, 2, v2
        v_lshlrev_b32 v5, 7, v5
        v_lshl_add_u32 v5, v6, 4, v5
        v_add_u32 v5, s{sREG}, v5
        v_bfe_u32 v7, v2, 3, 1
        v_lshl_add_u32 v{vR2}, v7, 6, v5
        v_xor_b32 v8, 1, v7
        v_lshl_add_u32 v{vR2+1}, v8, 6, v5
        v_and_b32 v9, 15, v2
        v_lshlrev_b32 v5, 9, v3
        v_lshl_add_u32 v{vSTV}, v9, 4, v5
        v_and_b32 v10, 7, v2
        v_lshl_add_u32 v5, v10, 4, v5
        v_lshl_add_u32 v5, v7, 8, v5
        s_cmp_ge_u32 s62, 2
        s_cselect_b64 vcc, -1, 0
        s_cselect_b32 s70, 1, 2
        s_lshl_b32 s70, s70, 7
        v_cndmask_b32 v{vST0}, v{vSTV}, v5, vcc
        v_add_u32 v{vST1}, s70, v{vST0}
        v_lshlrev_b32 v{vPF}, 7, v9
        v_mov_b32 v5, 0x7ffffff0
        v_cmp_eq_u32 vcc, 0, v2
        v_mov_b32 v{vTOK}, 1
        v_and_b32 v8, 31, v2
        v_cndmask_b32 v{vFL}, v5, v2, vcc
        v_lshlrev_b32 v{vPOLL}, 2, v8
        v_bfe_u32 v11, v2, 4, 1
        v_lshrrev_b32 v5, 5, v2
        v_lshlrev_b32 v8, 4, v9
        v_lshl_add_u32 v8, v5, 8, v8
        s_mov_b32 s70, {HO_T16}
        v_mad_u32_u24 v{vOST}, v11, s70, v8
        v_lshrrev_b32 v5, 3, v2
        v_lshlrev_b32 v8, 2, v11
        v_xor_b32 v8, v8, v10
        v_lshlrev_b32 v8, 4, v8
        v_lshl_add_u32 v{vDA}, v5, 11, v8
        v_add_u32 v{vDA+1}, 0x4000, v{vDA}
        v_add_u32 v{vDA+2}, 0x8000, v{vDA}
        v_add_u32 v{vDA+3}, 0xc000, v{vDA}
        v_lshlrev_b32 v5, 11, v9
        v_lshl_add_u32 v{vOA}, v3, 4, v5
        v_bfe_u32 v5, v2, 2, 1
        v_xor_b32 v5, v5, v11
        v_or_b32 v5, v5, v6
        v_mov_b32 v8, 0x3f803f80
        v_cmp_eq_u32 vcc, 0, v5""")
        b(f"""s_mul_i32 s{sH}, s69, {HO_T16}
        s_lshl_b32 s70, s64, 11
        s_add_u32 s{sH}, s{sH}, s70
        s_add_u32 s{sH}, s{sH}, {HO_OFF}
        v_cndmask_b32 v{vSEL}, 0, v8, vcc
        v_cndmask_b32 v{vSEL+1}, 0, v8, vcc
        v_cndmask_b32 v{vSEL+2}, 0, v8, vcc
        v_cndmask_b32 v{vSEL+3}, 0, v8, vcc
        s_lshl_b32 s{sQS}, s69, 10
        s_lshl_b32 s70, s60, 19
        s_add_u32 s{sQS}, s{sQS}, s70
        s_lshl_b32 s70, s62, 18
        s_add_u32 s70, s70, {Q_OFF}
        s_cmp_eq_u32 s62, 2
        s_cselect_b32 s70, {K_OFF + 2*131072}, s70
        s_cmp_eq_u32 s62, 3
        s_cselect_b32 s70, {K_OFF}, s70
        s_add_u32 s{sQS}, s{sQS}, s70
        s_lshl_b32 s{sFQP}, s60, 7
        s_add_u32 s{sFQP}, s{sFQP}, {FQ}
        s_lshl_b32 s70, s61, 2
        s_add_u32 s{sFQW}, s{sFQP}, s70
        s_lshl_b32 s54, s60, 2
        s_add_u32 s54, s54, s62
        s_lshr_b32 s55, s3, 1
        s_and_b32 s56, s3, 1
        s_lshl_b32 s57, s63, 1
        s_add_u32 s58, s57, s55
        s_lshl_b32 s58, s58, 6
        s_add_u32 s58, s58, s56
        s_lshl_b32 s59, s54, 1
        s_add_u32 s58, s58, s59
        s_lshl_b32 s58, s58, 2
        s_add_u32 s{sFHW}, s58, {FH}
        s_add_u32 s57, s57, s56
        s_lshl_b32 s58, s57, 6
        s_add_u32 s58, s58, s55
        s_add_u32 s58, s58, s59
        s_lshl_b32 s58, s58, 2
        s_add_u32 s{sFOW}, s58, {FO}
        s_lshl_b32 s{sPF}, s2, 2
        s_add_u32 s{sPF}, s{sPF}, s3
        s_lshl_b32 s{sPF}, s{sPF}, 11
        s_cmp_lt_u32 s62, 2
        s_cselect_b32 s{sSC}, {f2h(QSCALE)}, 1.0
        s_mov_b32 s{sSC+1}, s{sSC}
        s_lshl_b32 s58, s54, 17
        s_lshl_b32 s59, s57, 13
        s_add_u32 s59, s59, s58
        s_add_u32 s59, s59, {Q_OFF}
        s_lshl_b32 s69, s55, 12
        s_add_u32 s{sQ+1}, s59, s69
        s_xor_b32 s{sQ}, s{sQ+1}, 4096
        s_lshl_b32 s69, s55, 16
        s_add_u32 s58, s58, s69
        s_add_u32 s{sK}, s58, {K_OFF}
        s_add_u32 s{sV}, s58, {V_OFF}""")
    def late():
        L = f"""s_lshl_b32 s{sOS}, s57, 1
        s_add_u32 s{sOS}, s{sOS}, s55
        s_mul_i32 s{sOS}, s{sOS}, {4*HO_T16}
        s_lshl_b32 s{sT}, s54, 10
        s_add_u32 s{sOS}, s{sOS}, s{sT}
        s_add_u32 s{sOS}, s{sOS}, {HO_OFF + 112*1024}
        s_add_u32 s{sOS+1}, s{sOS}, {2*HO_T16}
        s_lshr_b32 s10, s60, 1
        s_lshl_b32 s10, s10, 2
        s_lshr_b32 s11, s61, 3
        s_add_u32 s10, s10, s11
        s_and_b32 s11, s60, 1
        s_lshl_b32 s11, s11, 3
        s_and_b32 s12, s61, 7
        s_add_u32 s11, s11, s12
        s_lshl_b32 s11, s11, 7
        s_lshl_b32 s{sFP}, s10, 8
        s_add_u32 s{sFP}, s{sFP}, {FH}
        s_lshl_b32 s12, s10, 2
        s_add_u32 s12, s12, s3
        s_lshl_b32 s12, s12, 16
        s_add_u32 s{sRES}, s12, s11
        s_add_u32 s{sRES+1}, s{sRES}, 32768
        s_mul_i32 s{sW2}, s3, {28*65536}
        s_add_u32 s{sW2}, s{sW2}, s11
        s_lshl_b32 s{sWO0}, s3, 19
        s_add_u32 s{sWO0}, s{sWO0}, s11
        s_mul_i32 s{sACD}, s3, {20*1024}
        s_sub_u32 s{sACD}, {88*1024}, s{sACD}
        s_mul_i32 s10, s10, {8*HO_T16}
        s_mul_i32 s11, s3, {28*1024}
        s_add_u32 s10, s10, s11
        s_add_u32 s10, s10, {HO_OFF}
        s_lshl_b32 s11, s3, 1""".split("\n")
        L = [x.strip() for x in L]
        for t in range(8):
            L += [f"s_add_u32 s12, s11, {t}", "s_and_b32 s12, s12, 7", f"s_mul_i32 s12, s12, {HO_T16}", f"s_add_u32 s{sAC+t}, s10, s12"]
        return L
    bodies = {}; ool = {}
    for typ in "AC":
        b = Asm()
        if typ == "A":
            b("s_lshl_b32 s70, s62, 7\ns_cmp_eq_u32 s62, 2\ns_cselect_b32 s70, 2176, s70\ns_add_u32 s70, s70, s66")
            srd(b, 4, 54, 1024*6144, "s70"); srd(b, 8, 56, 1024*7168, "s65"); srd(b, 12, 58, 1024*7168, "s65")
        else:
            b(f"{name}_C:")
            for p, o in enumerate((4096, 4224, 2048)):
                b(f"s_add_u32 s70, s66, {o}"); srd(b, 4 + 4*p, 54, 1024*6144, "s70")
        for S in range(3):
            for m, ld in g1_dma(typ, S): b(m); b("s_nop 0"); b(ld)
            b.ext(g1_dadv(typ, S))
            if S < 2: b.ext(g1_xn(S)); b.ext(g1_xadv(S))
        if typ == "A": b("s_add_u32 s65, s65, 128")
        srd(b, 16, 56, 1024*7168, "s65"); srd(b, 20, 58, 1024*7168, "s65")
        if CPF & 1:
            b(f"""s_lshl_b32 s70, s61, 2
            s_add_u32 s70, s70, s3
            s_and_b32 s70, s70, 15
            s_lshl_b32 s70, s70, 13
            v_lshlrev_b32 v3, 7, v2
            buffer_load_dword v249, v3, {srdt(sCD)}, s70 offen""")
        consts(b)
        b(f"v_lshl_add_u32 v{vPC}, v1, 11, v{vPF}")
        b(";stamp 0"); b(W("d0")); b("s_barrier\n;stamp 1")
        b.ext(g1_reads(0, 0) + g1_reads(0, 1))
        e_qkv, e_h = epi1(typ)
        stream = []; qdone = None; SP = E("SPOLL", 29)
        for S in range(32):
            tags = [f"x{S}", f"w{pair0(S)}"]; btags = []; bpost = []
            post = []; vm = []; first = 0
            if qdone is not None and S == qdone + E("QD", 2): btags.append("qkv"); bpost.append(flag_store(sFQW))
            if S in (4, 6, 8, 10, 12):
                i = (S - 4) // 2
                vm.append(f"buffer_load_dword v{TMP+32}, v{vPF}, {srdt(sWO if i == 0 else sWD)}, s{sPF} offen")
                if i >= 2: post.append(f"s_add_u32 s{sPF}, s{sPF}, 0x200000")
            post.append(f"{name}_{typ}{S}:")
            if CPF & 2 and S % 4 == 1:
                c = code_pf(f"{name}_{typ}{S+3}" if S < 29 else f"{name}_att"); post.append(c[0]); vm.append(c[1])
            if S == 14: stream += late()
            if S == 16: stream += e_qkv + [";qdone"] + e_h; first = 3; post.append(";stamp 2")
            if S == SP: vm.append(poll_load(sFQP, 0, "pq"))
            if S == SP + 1:
                assert not stream
                post += poll_check(f"{name}_pq{typ}", "pq")
                vm += [at_ld(0, "K", 0), at_ld(0, "K", 1)] + [at_q(i) for i in range(8)] + [at_ld(0, "V", 0), at_ld(0, "V", 1)]
                vm += [at_ld(1, w, kk) for w in "KV" for kk in range(2)]
            if S == 31:
                post += [f"s_add_u32 s{sK}, s{sK}, 4096", f"s_add_u32 s{sV}, s{sV}, 4096"]
                vm += [at_ld(2, w, kk) for w in "KV" for kk in range(2)]
                stream += epi_h(0, 0, 4, (0,), 0); first = 35
            L = g1_step(typ, S, [W(*tags)] + post, vm, stream, first, btags, bpost)
            if ";qdone" in L: qdone = S; print(typ, "qkv stores done in step", S)
            b.ext(L)
        b.ext(stream)
        if typ == "A": b(f"s_branch {name}_att")
        bodies[typ] = b.L
        o = Asm(); o(poll_slow(f"{name}_pq{typ}", sFQP, 0, 7)); ool[typ] = o.L
    t_ = Asm()
    t_(f"{name}_att:\n;stamp 3")
    t_(W("K0", "Q0")); t_.ext(at_qk(0))
    t_(f"v_lshrrev_b32 v{vPOLL}, 2, v{vL16}\ns_load_dwordx2 s[{sX}:{sX+1}], s[0:1], 0\ns_mov_b32 s{sX+2}, {2048*2048}\ns_mov_b32 s{sX+3}, 0x00020000")
    t_(f"""s_xor_b32 s10, s3, 2
    s_mul_i32 s10, s10, {REG}
    v_add_u32 v{vRA}, s10, v{vL16}
    v_add_u32 v{vRA+1}, s{sREG}, v{vL16}
    v_lshrrev_b32 v{vRA+3}, 1, v{vL16}
    v_add_u32 v{vRA+3}, 0x7000, v{vRA+3}
    v_add_u32 v{vRA+2}, s10, v{vRA+3}
    v_add_u32 v{vRA+3}, s{sREG}, v{vRA+3}""")
    for d in range(1, 4):
        t_(f"s_sub_u32 s10, s3, {d}\ns_and_b32 s10, s10, 3\ns_mul_i32 s10, s10, {REG}\ns_add_u32 s10, s10, {16384 + (d-1)*8192}\nv_add_u32 v{vRA+3+d}, s10, v{vL16}")
    t_.ext(epi_h(0, 0, 4, (1,), 0, rev=True))
    TF, TP, T0 = E("TF", 16), E("TP", 40), E("T0", 52)
    pl = []
    for s in range(8):
        if s < 7:
            for i in range(4): pl.append(g2_dma(s, i) + (g2_dadv(s) if i == 3 else []))
        for t in range(8): pl.append([None, g2_act(s, t)] + g2_aadv(s, t))
    npl = len(pl); T1 = E("T1", 120)
    for t in range(128):
        kt, qt = t // 4, t % 4
        mem = [[] for _ in range(6)]; pre = []
        if kt + 3 < 32:
            mem[0].append(at_ld(kt + 3, "KKVV"[qt], qt % 2))
            if kt % 2 == 0 and qt % 2 == 1: mem[4].append(f"s_add_u32 s{sK if qt == 1 else sV}, s{sK if qt == 1 else sV}, 4096")
        if t < 3: pre.append(W(f"Q{t+1}"))
        if t == 1: pre.append(W("V0"))
        if qt == 3 and kt < 31: pre.append(W(f"K{kt+1}", f"V{kt+1}"))
        if t == TF: pre.append(W("hst")); mem[1].append(flag_store(sFHW))
        if t == TP: mem[1].append(poll_load(sFP, 0, "ph"))
        if t == T0 - 1: pre += poll_check(f"{name}_ph", "ph") + ["s_waitcnt lgkmcnt(0)", "s_barrier"]
        pre.append(f"{name}_t{t}:")
        if CPF & 2 and t % 32 == 10:
            c = code_pf(f"{name}_t{t+20}" if t < 106 else f"{name}_t126", vGU); pre.append(c[0]); mem[1].append(c[1])
        if t >= T0:
            want = min(npl, ((t - T0 + 1) * npl + (T1 - T0) - 1) // (T1 - T0))
            for sl, prev in ((2, 1), (3, 4)):
                if npl - len(pl) < want:
                    x = pl.pop(0)
                    if x[0]: mem[prev].append(x[0])
                    mem[sl].append(x[1]); mem[5] += x[2:]
        if t == 124: pre.append(W("e0"))
        if t in (124, 125):
            for q in range(4): mem[q].append(g2_rd(0)[4 * (t - 124) + q])
        if t in (126, 127):
            for q in range(4): mem[[2, 4, 3, 5][q]].append(f"ds_write_b128 v{vRA}, {R(vO + 16*(t-126) + 4*q, 4)} offset:{32768 + 4096*(t-126) + 1024*q}")
        t_.ext(at_period(t, mem, pre))
    assert not pl
    pv = at_pv(127)
    t_(f"ds_write2_b32 v{vRA+2}, v{vLs}, v{vLs+4} offset0:0 offset1:1")
    t_.ext([pv[0], pv[2], pv[1], pv[3]])
    t_(";stamp 4\ns_waitcnt lgkmcnt(0)\ns_barrier")
    t_(f"ds_read_b64 {R(vLs,2)}, v{vRA+3} ;@xl")
    for i in range(8): t_(f"ds_read_b128 {R(vO+4*i,4)}, v{vRA+1} offset:{32768 + 1024*i} ;@xo{i}")
    t_(f"s_mov_b32 s10, {f2h(2.0**-64)}\ns_mov_b32 s11, {f2h(2.0**64)}")
    t_(W("xl"))
    for i in range(4):
        m, ld = g2_dma(7, i); t_(m)
        t_([f"v_add_f32 v{vLs+8}, v{vLs+8}, v{vLs}", f"v_add_f32 v{vLs+12}, v{vLs+12}, v{vLs+1}",
            f"v_cmp_le_f32 s[12:13], s10, v{vLs+8}", f"v_cmp_le_f32 s[14:15], s10, v{vLs+12}"][i])
        t_(ld)
    t_.ext(g2_dadv(7))
    t_(f"""v_cmp_ge_f32 s[16:17], s11, v{vLs+8}
    v_cmp_ge_f32 s[18:19], s11, v{vLs+12}""")
    for i in range(8):
        t_(W(f"xo{i}"))
        for r in (0, 2): t_(f"v_pk_add_f32 {R(vO+32+4*i+r,2)}, {R(vO+32+4*i+r,2)}, {R(vO+4*i+r,2)}")
    t_(f"""s_and_b64 s[12:13], s[12:13], s[14:15]
    s_and_b64 s[16:17], s[16:17], s[18:19]
    s_and_b64 s[12:13], s[12:13], s[16:17]
    s_cmp_eq_u64 s[12:13], -1
    s_cbranch_scc0 {name}_slow
    {name}_fin:
    v_rcp_f32 v{vLs+8}, v{vLs+8}
    v_rcp_f32 v{vLs+12}, v{vLs+12}""")
    for qt in range(2):
        o = vO + 32 + 16 * qt
        for i in range(0, 16, 2): t_(f"v_pk_mul_f32 {R(o+i,2)}, {R(o+i,2)}, {R(vLs+8+4*qt,2)} op_sel_hi:[1,0]")
        for h in range(2):
            d = vP + 8 * qt + 4 * h
            idx = [4*h, 4*h+1, 4*h+2, 4*h+3, 8+4*h, 9+4*h, 10+4*h, 11+4*h]
            for j in range(4): t_(f"v_cvt_pk_bf16_f32 v{d+j}, v{o+idx[2*j]}, v{o+idx[2*j+1]}")
            t_(f"buffer_store_dwordx4 {R(d,4)}, v{vOST}, {srdt(sWS)}, s{sOS+qt} offen offset:{512*h} sc1 ;@ost")
    t_(";stamp 5")
    XR = 160; XF = 176
    SO, SP2 = E("SO", 4), E("SP2", 15)
    for s in range(36):
        pre = []; ex = {}; stream = None; first = 0
        if s == SO: pre.append(W("ost")); ex[2] = [flag_store(sFOW), f"s_add_u32 s{sFP}, s{sFP}, 4096"]
        pre.append(f"{name}_g{s}:")
        if CPF & 2 and s in (3, 17):
            c = code_pf(f"{name}_g{s+8}", vGU); pre.append(c[0]); ex[2] = [c[1]]
        if s == SP2: ex[2] = [poll_load(sFP, 0, "po")]
        if s == 20: pre += poll_check(f"{name}_po", "po")
        if s == 30:
            for i in range(4): ex[4*i + 3] = [f"buffer_load_dwordx4 {R(XR+4*i,4)}, v{vOA}, {srdt(sX)}, s{sRES + i//2} offen offset:{64*(i%2)} ;@xr"]
        if s == 34:
            stream = [W("xr"), "s_mov_b32 s10, 0xffff0000"]
            for i in range(16): stream += [f"v_lshlrev_b32 v{XF+2*i}, 16, v{XR+i}", f"v_and_b32 v{XF+2*i+1}, s10, v{XR+i}"]
            first = 14
        if s == 35:
            for i in range(24): ex[i + 8] = [f"ds_write_b128 v{vRA+1}, {R(32+4*i,4)} offset:{16384 + 1024*i}"]
        t_.ext(g2_step(s, pre, ex, stream, first))
        assert not stream
    t_(";stamp 6\ns_waitcnt lgkmcnt(0)\ns_barrier")
    for d in range(3):
        for i in range(8): t_(f"ds_read_b128 {R(32+32*d+4*i,4)}, v{vRA+4+d} offset:{1024*i} ;@y{d}_{i}")
        if d == 0:
            for i in range(0, 32, 2): t_(f"v_pk_add_f32 {R(i,2)}, {R(i,2)}, {R(XF+i,2)}")
        else:
            t_(W(f"y{d-1}_7"))
            for i in range(0, 32, 2): t_(f"v_pk_add_f32 {R(i,2)}, {R(i,2)}, {R(32*d+i,2)}")
    for i in range(4):
        t_(W(f"y2_{2*i+1}"))
        for r in range(0, 8, 2): t_(f"v_pk_add_f32 {R(8*i+r,2)}, {R(8*i+r,2)}, {R(96+8*i+r,2)}")
        for r in range(4): t_(f"v_cvt_pk_bf16_f32 v{8*i+r}, v{8*i+2*r}, v{8*i+2*r+1}")
        t_(f"buffer_store_dwordx4 {R(8*i,4)}, v{vOA}, {srdt(sOUT)}, s{sRES + i//2} offen offset:{64*(i%2)}")
    t_(f"{name}_end:\ns_endpgm")
    tail = t_.L
    e = Asm()
    e(poll_slow(f"{name}_ph", sFP, 0, 8)); e(poll_slow(f"{name}_po", sFP, 0, 9))
    M = vO
    kv0 = f"s_and_b32 s{sK}, s{sK}, 0xfffe0000\ns_add_u32 s{sV}, s{sK}, {V_OFF - K_OFF}\ns_mov_b32 s10, 64"
    e(f"{name}_slow:\ns_sub_u32 s{sK}, s{sK}, 4096\n{kv0}\nv_mov_b32 v{M}, 0xff800000\nv_mov_b32 v{M+1}, 0xff800000\n{name}_slow1:")
    e(at_ld(0, "K", 0)); e(at_ld(0, "K", 1))
    e(f"s_add_u32 s{sK}, s{sK}, 2048\ns_sub_u32 s10, s10, 1\ns_waitcnt vmcnt(0)")
    e.ext(at_qk(2) + at_qk(3)); e("s_nop 7\ns_nop 3")
    for qt in range(2):
        for i in range(0, 16, 2): e(f"v_max3_f32 v{M+qt}, v{M+qt}, v{vS+16*qt+i}, v{vS+16*qt+i+1}")
    e(f"""s_cmp_lg_u32 s10, 0
    s_cbranch_scc1 {name}_slow1
    v_mov_b32 v{M+2}, v{M}
    v_mov_b32 v{M+3}, v{M+1}
    s_sub_u32 s{sK}, s{sK}, 4096
    {kv0}
    v_permlane32_swap_b32 v{M}, v{M+2}
    v_permlane32_swap_b32 v{M+1}, v{M+3}
    v_max_f32 v{M}, v{M}, v{M+2}
    v_max_f32 v{M+1}, v{M+1}, v{M+3}""")
    for i in range(32): e(f"v_mov_b32 v{vO+32+i}, 0")
    for i in range(8): e(f"v_mov_b32 v{vLs+8+i}, 0")
    e(f"{name}_slow2:")
    for w in "KV": e(at_ld(0, w, 0)); e(at_ld(0, w, 1))
    e(f"s_add_u32 s{sK}, s{sK}, 2048\ns_add_u32 s{sV}, s{sV}, 2048\ns_sub_u32 s10, s10, 1\ns_waitcnt vmcnt(0)")
    e.ext(at_qk(2) + at_qk(3)); e("s_nop 7\ns_nop 3")
    for qt in range(2):
        s = vS + 16 * qt; p = vP + 8 * qt
        for i in range(16): e(f"v_sub_f32 v{s+i}, v{s+i}, v{M+qt}")
        for i in range(16): e(f"v_exp_f32 v{s+i}, v{s+i}")
        e("s_nop 0")
        for i in range(8): e(f"v_cvt_pk_bf16_f32 v{p+i}, v{s+2*i}, v{s+2*i+1}")
    e("s_nop 1")
    e.ext(at_pv(2) + at_pv(3))
    e(f"s_cmp_lg_u32 s10, 0\ns_cbranch_scc1 {name}_slow2\ns_nop 7\ns_nop 3\ns_branch {name}_fin\nf_last:")
    res = {}
    for typ in "AC": res[typ] = resolve(pro + bodies[typ] + tail)
    def part(typ, lo, L): return emit(L, {i - lo: v for i, v in res[typ].items()})
    nA, nC = len(pro) + len(bodies["A"]), len(pro) + len(bodies["C"])
    rt = {i - nA: mergew(v, res["C"][i - nA + nC]) for i, v in res["A"].items() if i >= nA}
    out = Asm()
    out.L = pro + part("A", len(pro), bodies["A"]) + ool["A"] + ool["C"] + part("C", len(pro), bodies["C"]) + emit(tail, rt) + emit(e.L, {})
    return out, dict(nm=name, vgpr=512, accum=256, lds=163840, grid=256, block=256)
```

```python
import re
def R(i, n=1):
    p, j = ("v", i) if i < 256 else ("a", i - 256)
    return f"{p}{j}" if n == 1 else f"{p}[{j}:{j+n-1}]"
def cls(x):
    op = x.split()[0]
    if op.startswith(("buffer_", "global_")): return "vm"
    if op.startswith("ds_"): return "ds"
    if op.startswith(("v_mfma", "v_smfmac")): return "mfma"
    if op.startswith("v_"): return "valu"
    if op.startswith(";W"): return "salu"
    if op.startswith(";") or x.endswith(":") or op.startswith("."): return "none"
    return "salu"
def W(*tags): return ";W " + " ".join(tags)
def resolve(L):
    cnt = {"vm": 0, "ds": 0}; last = {}; res = {}
    done = {"vm": 0, "ds": 0}
    for i, x in enumerate(L):
        c = cls(x)
        if x.endswith(";@-"): continue
        if c in cnt:
            cnt[c] += 1
            m = re.search(r";@(\S+)", x)
            if m: last[m.group(1)] = (c, cnt[c])
        elif x.startswith(";W"):
            need = {"vm": None, "ds": None}
            for t in x.split()[1:]:
                if t not in last: raise Exception("unknown tag " + t)
                c2, pos = last[t]
                if pos <= done[c2]: continue
                n = cnt[c2] - pos
                need[c2] = n if need[c2] is None else min(need[c2], n)
            for c2, mx in (("vm", 63), ("ds", 15)):
                if need[c2] is not None:
                    need[c2] = min(need[c2], mx); done[c2] = max(done[c2], cnt[c2] - need[c2])
            res[i] = (need["vm"], need["ds"])
        elif x.startswith("s_waitcnt"):
            m = re.search(r"vmcnt\((\d+)\)", x)
            if m: done["vm"] = max(done["vm"], cnt["vm"] - int(m.group(1)))
            m = re.search(r"lgkmcnt\((\d+)\)", x)
            if m: done["ds"] = max(done["ds"], cnt["ds"] - int(m.group(1)))
    return res
def mergew(a, b):
    f = lambda x, y: y if x is None else (x if y is None else min(x, y))
    return (f(a[0], b[0]), f(a[1], b[1]))
def emit(L, res):
    out = []
    for i, x in enumerate(L):
        if x.startswith(";W"):
            v, l = res[i]
            s = (f" vmcnt({v})" if v is not None else "") + (f" lgkmcnt({l})" if l is not None else "")
            if s: out.append("s_waitcnt" + s)
        else: out.append(re.sub(r"\s*;@\S+", "", x))
    return out
def adv(t, x):
    c = cls(x)
    if c in ("vm", "ds"): return t + 8
    if c == "valu": return max(t, 8) + (8 if x.startswith(("v_exp", "v_rcp")) else 4)
    if c == "salu": return t + 4
    return t
def weave2(mf, fill, stream=None, budget=16, first=0):
    out = list(fill.get(-1, []))
    for i, m in enumerate(mf):
        out.append(m)
        g = list(fill.get(i, []))
        t = 4
        for x in g: t = adv(t, x)
        if stream is not None and i >= first:
            while stream and adv(t, stream[0]) <= budget:
                x = stream.pop(0); t = adv(t, x); g.append(x)
        out += g
    return out
MACROS = r""".macro mf d,dn,x,xn,y,yn
v_mfma_f32_16x16x32_bf16 \d[\dn:\dn+3], \x[\xn:\xn+3], \y[\yn:\yn+3], \d[\dn:\dn+3]
.endm
.macro mg d,dn,x,xn,y,yn
v_mfma_f32_32x32x16_bf16 \d[\dn:\dn+15], \x[\xn:\xn+3], \y[\yn:\yn+3], \d[\dn:\dn+15]
.endm
.macro tr d,dn,ad,of
ds_read_b64_tr_b16 \d[\dn:\dn+1], v\ad offset:\of
.endm
"""
def compact(text):
    def f(m):
        if (m.group(2), m.group(3)) != (m.group(8), m.group(9)): return m.group(0)
        return ("mf " if m.group(1) == "16x16x32" else "mg ") + ",".join(m.group(k) for k in range(2, 8))
    text = re.sub(r"v_mfma_f32_(16x16x32|32x32x16)_bf16 ([av])\[(\d+):\d+\], ([av])\[(\d+):\d+\], ([av])\[(\d+):\d+\], ([av])\[(\d+):\d+\]", f, text)
    text = re.sub(r"ds_read_b64_tr_b16 ([av])\[(\d+):\d+\], v(\d+) offset:(\d+)", r"tr \1,\2,\3,\4", text)
    return re.sub(r"^    ", " ", text, flags=re.M)
```

```python
import sys, os
from asmlib import *
import k01, kf, hazard, sched
NAME = "parallel_sum__mha_block__glu_gated_bilinear__prompt"
def instrument(a, idx, nm):
    L = []; started = False
    if os.environ.get("STL") and nm == "f":
        import re
        pats = os.environ["STL"].split(","); N = []
        for x in a.L:
            if re.fullmatch(r";stamp [2-6]", x): continue
            N.append(x)
            for k, p in enumerate(pats):
                if re.fullmatch(f"f_{p}:", x): N.append(f";stamp {2+k}")
        a.L = N
    for i, x in enumerate(a.L):
        if x.startswith(";stamp"):
            k = int(x.split()[1]); L.append(f"s_memrealtime s[{78+2*k}:{79+2*k}]"); continue
        if x.startswith(";var"): L.append(f"s_mov_b32 s51, {x.split()[1]}"); continue
        if x.startswith("s_load") and not started:
            started = True
            L += ["s_memrealtime s[98:99]", "s_memtime s[100:101]"] + [f"s_mov_b32 s{78+2*k}, 0" for k in range(10)]
        if x == f"s_cbranch_scc1 {nm}_end" and i < 3: x = f"s_cbranch_scc1 {nm}_exit"
        if x == "s_endpgm" and started:
            L += ["s_memrealtime s[4:5]", "s_waitcnt vmcnt(0)", "s_memrealtime s[6:7]", "s_memtime s[8:9]", "s_load_dwordx2 s[12:13], s[0:1], 72", "s_getreg_b32 s10, hwreg(HW_REG_XCC_ID)", "s_waitcnt lgkmcnt(0)",
              "s_mov_b32 s14, 0x10000000", "s_mov_b32 s15, 0x00020000", "s_lshl_b32 s16, s2, 3", "s_add_u32 s16, s16, s3", "s_lshl_b32 s16, s16, 6",
              f"s_add_u32 s16, s16, {(64<<20) + idx*131072}", "s_sub_u32 s8, s8, s100", "s_nop 7", "s_nop 7"]
            for j, r in enumerate([98, 6, 8, 10] + [78 + 2*k for k in range(10)] + [4, 51]): L.append(f"v_mov_b32 v{j}, s{r}")
            L += ["v_mov_b32 v16, 0"] + [f"buffer_store_dwordx4 v[{4*q}:{4*q+3}], v16, s[12:15], s16 offen offset:{16*q}" for q in range(4)]
        L.append(x)
    if os.environ.get('STAMPC'): L = [x.replace('s_memrealtime', 's_memtime') for x in L]
    a.L = L
def build(ks, comp):
    ref = open(f"cdna_kernels/{NAME}.s.ref").read().split("\n")
    out = [l for l in ref if l.startswith(";") and "@launch" not in l]
    if len(ks) == 1 and not os.environ.get("LIST"):
        m = ks[0][1][1]; out.append(f"; @launch grid=({m['grid']},1,1) block=({m['block']},1,1) lds={m['lds']}")
    else:
        for n, (a, m) in ks: out.append(f"; @launch kernel={n} grid=({m['grid']},1,1) block=({m['block']},1,1) lds={m['lds']}")
    if os.path.exists("notes.txt"): out += ["; " + l for l in open("notes.txt").read().rstrip().split("\n")]
    out += ['.amdgcn_target "amdgcn-amd-amdhsa--gfx950"', ".text"]
    if comp: out.append(sched.MACROS)
    for n, (a, m) in ks: out.append(khead(n) + (sched.compact(a.text()) if comp else a.text()))
    out.append('.section .rodata,"a"')
    for n, (a, m) in ks: out.append(kdesc(n, m["vgpr"], m["accum"]))
    return "\n".join(out)
if __name__ == "__main__":
    ks = [(NAME + "_kernel", kf.fused("f"))]
    if len(sys.argv) > 2 and sys.argv[2] == "stamp":
        for i, (n, (a, m)) in enumerate(ks): instrument(a, i, m["nm"])
    t0 = build(ks, False); open("full.s", "w").write(t0)
    t = build(ks, True)
    dst = sys.argv[1] if len(sys.argv) > 1 else f"cdna_kernels/{NAME}.s"
    open(dst, "w").write(t)
    print("hazards:", hazard.check(t0) if not os.environ.get("NOHZ") else "-", "bytes", len(t))
```

```python
from asmlib import *
from sched import *
from k01 import wave_allsum, WS_BYTES, HO_OFF, HO_T16, Q_OFF, K_OFF, V_OFF, QSCALE
import os
E = lambda k, d: int(os.environ.get(k, d))
FLAG_OFF = 40 << 20
FQ, FL, FH, FO = FLAG_OFF, FLAG_OFF + 32768, FLAG_OFF + 65536, FLAG_OFF + 131072
A0 = 256
FSQ, FSH = E('FSQ', 5), E('FSH', 4)
vL16, vGU, vQK, vRA = 128, 129, 130, 131
vST0, vST1, vSTV, vPF, vFL, vTOK, vPOLL, vOST = 139, 140, 141, 142, 143, 144, 145, 146
vDA, vR2, vOA, vPD = 147, 151, 153, 154
vPC = 155
vSEL = 156
sCD = 36
sW1, sW2_ = 32, 28
sWS, sWD, sWO, sX, sOUT = 24, 28, 32, 40, 20
sGU, sQK, sXN = 44, 46, 48
sM1, sREG, sAC, sW2, sK, sV, sQ, sH, sQS, sT = 52, 53, 54, 62, 63, 64, 65, 67, 68, 69
sSC = 70
sFQW, sFQP, sFHW, sFOW, sFP, sPF = 72, 73, 74, 75, 76, 77
sOS, sRES, sWO0, sACD = 4, 6, 8, 9
def srdt(d): return f"s[{d}:{d+3}]"
def M16(d, x, y, z=False): return f"v_mfma_f32_16x16x32_bf16 {R(d,4)}, {R(x,4)}, {R(y,4)}, " + ("0" if z else R(d, 4))
def M32(d, x, y, z=False): return f"v_mfma_f32_32x32x16_bf16 {R(d,16)}, {R(x,4)}, {R(y,4)}, " + ("0" if z else R(d, 16))
CPF = E("CPF", 3)
def code_pf(lbl, d=vOST): return [f"s_mov_b32 s{sT}, {lbl}-f_base", f"buffer_load_dword v{d}, v{vPC}, {srdt(sCD)}, s{sT} offen"]
def flag_store(s): return f"buffer_store_dword v{vTOK}, v{vFL}, {srdt(sWS)}, s{s} offen sc1"
def poll_load(s, off, tag): return f"buffer_load_dword v{vPD}, v{vPOLL}, {srdt(sWS)}, s{s} offen offset:{off} sc1 ;@{tag}"
def poll_check(lbl, tag): return [W(tag), f"v_cmp_ne_u32 vcc, v{vTOK}, v{vPD}", f"s_cbranch_vccnz {lbl}", f"{lbl}_back:"]
def poll_slow(lbl, s, off, st):
    return f"""{lbl}:
    s_mov_b32 s{sT}, 0
    {lbl}_1:
    s_sleep 1
    buffer_load_dword v{vPD}, v{vPOLL}, {srdt(sWS)}, s{s} offen offset:{off} sc1
    s_add_u32 s{sT}, s{sT}, 1
    s_waitcnt vmcnt(0)
    v_cmp_ne_u32 vcc, v{vTOK}, v{vPD}
    s_cmp_lt_u32 s{sT}, 0x8000
    s_cbranch_scc0 {lbl}_back
    s_cbranch_vccnz {lbl}_1
    s_branch {lbl}_back"""

SLOT = 24576; NS = E("NS", 6); REV = E("REV", 1); KEEP = E("KEEP", 7)
WF = 192; TMP = 216
PSET = [A0 + 192, A0 + 208, A0 + 224, A0 + 240, 160, 176, 240]
YSET = [16 * i for i in range(8)]
ORD2 = [0, 4, 2, 6]
def npair(S): return 12 if S < 16 else 8
def pair0(S): return 12 * S if S < 16 else 192 + 8 * (S - 16)
def pairdef(S, i):
    if S < 16: return [(i, 0), (i, 1)]
    if S == 31: return [([0, 1, 4, 5, 2, 3, 6, 7][i], 0), ([0, 1, 4, 5, 2, 3, 6, 7][i], 1)]
    return [(ORD2[i % 4], i // 4), (ORD2[i % 4] + 1, i // 4)]
def g1_reads(S, i):
    gp = pair0(S) + i; d = WF + 8 * (gp % 3); L = []
    for e, (f, kk) in enumerate(pairdef(S, i)):
        for q in range(2):
            L.append(f"ds_read_b64_tr_b16 {R(d+4*e+2*q,2)}, v{vRA + 4*(S % 2) + f % 4} offset:{(f // 4)*8192 + kk*4096 + q*512} ;@w{gp}")
    return L
def g1_dma(typ, S):
    L = []
    for kk in range(2):
        for p in range(3 if S < 16 else 2):
            isq = S < 16 and (typ == "C" or p == 0)
            L.append([f"s_add_u32 m0, s{sM1}, {(S % NS) * SLOT + p * 8192 + kk * 4096}",
                      f"buffer_load_dwordx4 v{vQK if isq else vGU}, {srdt(4 + 4*p if S < 16 else 16 + 4*p)}, s{sQK if isq else sGU} offen lds ;@d{S}"])
        if S == 15 and kk == 1: L[-1].append(f"s_mov_b32 s{sGU}, {31*32*7168 if REV else 0}"); continue
        if S >= 16 or typ == "A": L[-1].append(f"s_{'sub' if REV and S >= 16 else 'add'}_u32 s{sGU}, s{sGU}, {32*7168}")
        if S < 16: L[-1].append(f"s_add_u32 s{sQK}, s{sQK}, {32*6144}")
    return L
XSC = " sc1"
D1, R1, B2, R2, LEAD = E("D1", 4), E("R1", 1), E("B2", 12), E("R2", 2), E("LEAD", 3)
class XAlloc:
    def __init__(s): s.reg = {}; s.busy = {r: 0 for r in PSET + YSET}
    @staticmethod
    def need(n): return n & ~1 if (n < 32 or n >= 62) else n
    @staticmethod
    def rel(n): return (n | 1) + 1 if (n < 32 or n >= 62) else n + 1
    def take(s, n, now):
        kept = 32 - KEEP <= n < 32
        for r in (YSET + PSET if n < 32 - KEEP else PSET):
            if s.busy[r] <= now:
                s.busy[r] = s.rel(63 - n if kept else n); s.reg[n] = r
                if kept: s.reg[63 - n] = r
                return True
        return False
    @staticmethod
    def kb(n): return n if n < 32 else (63 - n if REV else n - 32)
    @staticmethod
    def tag(n): return f"x{63 - n if 32 <= n < 32 + KEEP else n}"
    def loads(s, n):
        L = [[None, f"buffer_load_dwordx4 {R(s.reg[n] + 4*tt, 4)}, v{vL16}, {srdt(sWS)}, s{sXN+tt} offen offset:{(s.kb(n) % 4)*1024}{XSC} ;@x{n}"] for tt in range(4)]
        if n < 63:
            d = s.kb(n + 1 + (KEEP if n == 31 else 0)) // 4 - s.kb(n) // 4
            for tt in range(4):
                if d: L[tt].append(f"s_{'add' if d > 0 else 'sub'}_u32 s{sXN+tt}, s{sXN+tt}, {4096*abs(d)}")
        return L
class Feed:
    def __init__(s, typ): s.typ = typ; s.x = XAlloc(); s.nx = 0; s.nd = 0; s.qx = []; s.qd = []
    def pop(s, h, lax, lad):
        S = h // 2
        if not s.qx and s.nx < 64 and s.x.need(s.nx) - h <= lax and s.x.take(s.nx, h): s.qx = s.x.loads(s.nx); s.lx = s.nx; s.nx += 1 + (KEEP if s.nx == 31 else 0)
        if not s.qd and s.nd < 32 and s.nd - S <= min(lad, NS - 1): s.qd = g1_dma(s.typ, s.nd); s.nd += 1
        if s.qx and (not s.qd or s.x.need(s.lx) < 2 * (s.nd - 1) - 0.5): return s.qx.pop(0)
        if s.qd: return s.qd.pop(0)
        return None
def g1_step(typ, S, fd, pre, vm, stream, first, btags, bpost, ev):
    n = npair(S); mf = []; fill = {g: [] for g in range(-1, 8 * n)}
    for i in range(n):
        r = g1_reads(S, i + 2) if i + 2 < n else (g1_reads(S + 1, i + 2 - n) if S < 31 else [])
        for q, x in enumerate(r): fill[8*i + ((4, 5, 6, 7) if i == n - 2 else (0, 1, 4, 5))[q]].append(x)
    if S < 31: fill[8*(n-2) + 3] += [W(f"d{S+1}", f"w{pair0(S) + n - 1}", *btags), "s_barrier"]
    for x in bpost: fill[8*(n-1) + 2].append(x)
    cap = E("CAP1", 10) if S < 16 else E("CAP2", 7)
    for hf in range(2):
        h = 2 * S + hf
        slots = [8*i + q for i in range(hf * n // 2, (hf + 1) * n // 2) for q in (2, 6) if (i, q) != (n - 2, 6) and not (bpost and (i, q) == (n - 1, 2))]
        ops = [x if isinstance(x, list) else [None, x] for x in vm[hf]]
        while len(ops) < min(cap, len(slots)):
            o = fd.pop(h, E("LAX1", 6) if S < 16 else E("LAX2", 6), min(E("LAD", 5), max(D1 - 1, D1 + (h - LEAD) // R1) - S))
            if o is None: break
            ops.append(o)
        assert len(ops) <= len(slots)
        for k, o in enumerate(ops):
            g = slots[(k * len(slots)) // len(ops)]
            if o[0]: fill[g - 1].append(o[0])
            fill[g].append(o[1])
            if o[2:]: fill[g].append(o[2]); fill[g + 1] += o[3:]
    if 1 <= S < 31:
        dl = (((S + 1) % NS) - ((S - 1) % NS)) * SLOT
        for q in range(4): fill[(0, 4, 8, 12)[q]].append(f"v_add_u32 v{vRA + 4*((S+1) % 2) + q}, 0x{dl & 0xffffffff:x}, v{vRA + 4*((S+1) % 2) + q}")
    for i in range(-1, n - 1):
        need = sorted({fd.x.tag(2*S + kk) for f, kk in pairdef(S, i + 1)})
        fill[8*i + 7].append(W(f"w{pair0(S) + i + 1}", *need))
    fill[-1] += pre
    for g, x in ev.items(): fill[g] += x
    for i in range(n):
        w = WF + 8 * ((pair0(S) + i) % 3); pd = pairdef(S, i)
        for tt, e in ([(q // 2, q % 2) for q in range(8)] if pd[0][0] == pd[1][0] else [(q % 4, q // 4) for q in range(8)]):
            f, kk = pd[e]
            x = fd.x.reg[2*S + kk] + 4 * tt
            c = (A0 if S < 16 else 0) + (f * 4 + tt) * 4
            z = S % 16 == 0 and kk == 0
            mf.append(M16(c, x, w + 4*e, z) if (typ == "C" and S < 16 and f < 8) else M16(c, w + 4*e, x, z))
    return weave2(mf, fill, stream, first=first)

class Tmp:
    n = 0
    @classmethod
    def get(c): c.n += 1; return TMP + 16 + 4 * (c.n % 2)
def pack(srcs, mul, voff, soff, off, tag, pk=False):
    t = TMP; o = Tmp.get(); L = []
    def get(idx, base):
        if idx[0] < A0: return idx
        for j, i in enumerate(idx): L.append(f"v_accvgpr_read_b32 v{base+j}, {R(i)}")
        return [base + j for j in range(8)]
    g = get(srcs[:8], t)
    if mul == "gu":
        u = get(srcs[8:], t + 8)
        if pk:
            for j in range(0, 8, 2): L.append(f"v_pk_mul_f32 {R(t+j,2)}, {R(g[j],2)}, {R(u[j],2)}")
        else:
            for j in range(8): L.append(f"v_mul_f32 v{t+j}, v{g[j]}, v{u[j]}")
        g = [t + j for j in range(8)]
    elif mul:
        for j in range(8): L.append(f"v_mul_f32 v{t+j}, s{sSC}, v{g[j]}")
    for j in range(4): L.append(f"v_cvt_pk_bf16_f32 v{o+j}, v{g[2*j]}, v{g[2*j+1]}")
    L.append(f"buffer_store_dwordx4 {R(o,4)}, v{voff}, {srdt(sWS)}, s{soff} offen offset:{off} sc1 ;@{tag}")
    return L
def quad(base, f0, tt): return [base + ((f0 + e) * 4 + tt) * 4 + r for e in range(2) for r in range(4)]
def epi_qk(f0, mul):
    L = []
    for hh in range(2):
        for tt in range(4): L += pack(quad(A0, f0 + 2*hh, tt), mul, vST0 + tt % 2, sQS, (tt // 2) * 2048, "qkv")
        if hh == 0: L.append(f"s_add_u32 s{sQS}, s{sQS}, 131072")
    return L
def epi_h(base, fg, fu, js, off0, rev=False):
    L = []
    for n in range(4):
        tt = 3 - n if rev else n
        for j in js: L += pack(quad(base, fg + 2*j, tt) + quad(base, fu + 2*j, tt), "gu", vL16, sH, off0 + j * 1024, "hst", rev)
        if n < 3: L.append(f"s_{'sub' if rev else 'add'}_u32 s{sH}, s{sH}, {HO_T16}")
    return L
def epi1(typ):
    if typ == "A":
        return epi_qk(0, True), epi_h(A0, 4, 8, (0, 1), 0) + [f"s_sub_u32 s{sH}, s{sH}, {3*HO_T16 - 2048}"]
    L = epi_qk(8, False) + [f"s_add_u32 s{sQS}, s{sQS}, {V_OFF - K_OFF - 131072}"]
    for hh in range(4):
        for e in range(2):
            for t2 in range(2):
                L += pack([A0 + ((2*hh + e) * 4 + 2*t2 + b) * 4 + r for b in range(2) for r in range(4)], None, vSTV, sQS, t2 * 2048 + e * 256, "qkv")
        if hh < 3: L.append(f"s_add_u32 s{sQS}, s{sQS}, 131072")
    return L, []

aQ, aK, aV = A0, A0 + 32, A0 + 64
vS, vP, vO, vLs = 0, 32, 48, 112
def at_qk(t):
    s = vS + 16 * (t % 2); k = aK + 8 * ((t // 4) % 4); q = aQ + 8 * (t % 4)
    return [M32(s, k, q, True), M32(s, k + 4, q + 4)]
def at_pv(t, z=False):
    p = vP + 8 * (t % 2); v = aV + 8 * ((t // 4) % 4); o = vO + 16 * (t % 4); l = vLs + 4 * (t % 4)
    return [M32(o, v, p, z), M32(o, v + 4, p + 4), M16(l, vSEL, p, z), M16(l, vSEL, p + 4)]
def at_ld(kt, w, kk, off=None):
    d = (aK if w == "K" else aV) + 8 * (kt % 4) + 4 * kk
    if off is None: off = (kt % 2) * 2048
    return f"buffer_load_dwordx4 {R(d,4)}, v{vL16}, {srdt(sWS)}, s{sK if w == 'K' else sV} offen offset:{off + kk*1024} sc1 ;@{w}{kt}"
def at_q(i): return f"buffer_load_dwordx4 {R(aQ+4*i,4)}, v{vL16}, {srdt(sWS)}, s{sQ + i//4} offen offset:{(i%4)*1024} sc1 ;@Q{i//2}"
def at_period(t, mem, pre):
    s = vS + 16 * (t % 2); p = vP + 8 * (t % 2)
    Ex = [f"v_exp_f32 v{s+i}, v{s+i}" for i in range(16)]
    C = [f"v_cvt_pk_bf16_f32 v{p+i}, v{s+2*i}, v{s+2*i+1}" for i in range(8)]
    q = at_qk(t + 1) if t < 127 else [None, None]
    v = at_pv(t - 1, t <= 4) if t > 0 else [None] * 4
    mem = mem + [[]] * (6 - len(mem))
    L = list(pre)
    L += [q[0]] + mem[0] + Ex[0:4]
    L += [q[1]] + mem[1] + [Ex[4], C[0], Ex[5], C[1], Ex[6]]
    L += [v[0]] + mem[2] + [Ex[7], C[2], Ex[8], Ex[9], C[3]]
    L += [v[2]] + mem[4] + [Ex[10], Ex[11], C[4]]
    L += [v[1]] + mem[3] + [Ex[12], Ex[13], C[5], Ex[14], Ex[15]]
    L += [v[3]] + mem[5] + [C[6], C[7]]
    return [x for x in L if x]

REG = 40960
ASET = [A0 + 96 + 32 * i for i in range(5)] + [160 + 32 * i for i in range(3)]
W2 = [A0 + 40, A0 + 72]
def g2_act(s, t): return f"buffer_load_dwordx4 {R(ASET[s % 8] + 4*t, 4)}, v{vL16}, {srdt(sWS)}, s{sAC+t} offen offset:{(s % 4)*1024} sc1 ;@a{s}_{t}"
def g2_aadv(s, t):
    if s % 4 != 3 or s == 35: return []
    return [f"s_add_u32 s{sAC+t}, s{sAC+t}, " + ("4096" if s != 27 else f"s{sACD}")]
def g2_dma(s, i): return [f"s_add_u32 m0, s{sREG}, {(s % 8) * 4096 + i * 1024}",
                          f"buffer_load_dwordx4 v{vDA+i}, {srdt(sWD if s < 28 else sWO)}, s{sW2} offen lds ;@e{s}"]
def g2_dadv(s): return [f"s_add_u32 s{sW2}, s{sW2}, 65536" if s != 27 else f"s_mov_b32 s{sW2}, s{sWO0}"]
def g2_rd(s):
    return [f"ds_read_b64_tr_b16 {R(W2[s % 2] + 4*nt + 2*h, 2)}, v{vR2 + nt//2} offset:{(s % 8)*4096 + (nt % 2)*8 + h*2048} ;@r{s}" for nt in range(4) for h in range(2)]
def g2_step(s, pre, extra, stream=None, first=0):
    order = list(range(8)) if s < 35 else [2, 3, 4, 5, 6, 7, 0, 1]
    mf = []; fill = {g: [] for g in range(32)}
    for n, t in enumerate(order):
        for nt in range(4): mf.append(M16((t*4 + nt) * 4, W2[s % 2] + 4*nt, ASET[s % 8] + 4*t, s == 0))
        if s + 8 < 36:
            fill[4*n + 3].append(g2_act(s + 8, t))
            if n < 7: fill[4*n + 6] += g2_aadv(s + 8, t)
        if n < 7: fill[4*n + 3].append(W(f"a{s}_{order[n+1]}"))
    if s + 8 < 36: fill[31] += g2_aadv(s + 8, 7)
    if s < 35:
        for q, x in enumerate(g2_rd(s + 1)): fill[4 * (q // 2) + q % 2].append(x)
    if s + 8 < 36:
        for i in range(4):
            m, ld = g2_dma(s + 8, i); fill[16 + 4*i].append(m); fill[17 + 4*i].append(ld)
        fill[29] += g2_dadv(s + 8)
    for k, v in extra.items(): fill[k] += v
    fill[-1] = pre + [W(f"a{s}_{order[0]}", f"r{s}", *([f"e{s+1}"] if s < 35 else []))]
    return weave2(mf, fill, stream, first=first)

def fused(name):
    a = Asm()
    a(f"""s_cmp_ge_u32 s2, 256
    s_cbranch_scc0 {name}_go
    s_endpgm
    {name}_go:
    s_load_dwordx2 s[{sX}:{sX+1}], s[0:1], 0
    s_load_dwordx2 s[{sWS}:{sWS+1}], s[0:1], 72
    s_load_dwordx2 s[54:55], s[0:1], 8
    s_load_dwordx4 s[56:59], s[0:1], 32
    s_getpc_b64 s[{sCD}:{sCD+1}]
    f_base:
    v_lshrrev_b32 v1, 6, v0
    v_and_b32 v9, 15, v0
    v_lshlrev_b32 v{vPF}, 7, v9
    s_mov_b32 s{sCD+2}, f_last-f_base
    s_mov_b32 s{sCD+3}, 0x00020000
    v_lshl_add_u32 v{vPC}, v1, 11, v{vPF}
    v_readfirstlane_b32 s3, v1
    v_and_b32 v2, 63, v0""")
    if CPF & 1: a(f"buffer_load_dword v{vOST}, v{vPC}, {srdt(sCD)}, 0 offen")
    a(f"""v_lshlrev_b32 v{vL16}, 4, v2
    s_lshl_b32 s{sPF}, s2, 2
    s_mov_b32 s{sX+2}, {2048*2048}
    s_add_u32 s{sPF}, s{sPF}, s3
    s_mov_b32 s{sX+3}, s{sCD+3}
    s_lshl_b32 s45, s{sPF}, 12
    s_lshr_b32 s61, s2, 3
    s_and_b32 s62, s61, 3
    s_mov_b32 s70, {name}_lbA-f_base
    s_cmp_eq_u32 s62, 3
    s_cselect_b32 s70, {name}_lbC-f_base, s70
    s_mov_b32 s{sWS+2}, {WS_BYTES}
    s_mov_b32 s{sWS+3}, s{sCD+3}
    s_mov_b32 s47, {FO}
    s_and_b32 s60, s2, 7
    s_lshr_b32 s63, s61, 2
    s_mul_i32 s64, s60, 7
    s_lshl_b32 s65, s62, 1
    s_add_u32 s64, s64, s65
    s_lshl_b32 s65, s64, 7
    s_lshl_b32 s66, s60, 8
    s_waitcnt lgkmcnt(0)""")
    for i in range(4): a(f"buffer_load_dwordx4 v[{16+4*i}:{19+4*i}], v{vL16}, {srdt(sX)}, s45 offen offset:{1024*i} ;@lx{i//2}")
    a(f"buffer_load_dword v{vTOK}, off, {srdt(sWS)}, s47 sc1 ;@ep")
    if CPF & 1: a(f"buffer_load_dword v{vOST}, v{vPC}, {srdt(sCD)}, s70 offen")
    a(f"s_movk_i32 s67, 7168\ns_movk_i32 s68, 6144\ns_cmp_eq_u32 s62, 3\ns_cbranch_scc1 {name}_sC")
    a("s_lshl_b32 s70, s62, 7\ns_cmp_eq_u32 s62, 2\ns_cselect_b32 s70, 2176, s70\ns_add_u32 s70, s70, s66")
    srd(a, 4, 54, 1024*6144, "s70"); srd(a, 8, 56, 1024*7168, "s65"); srd(a, 12, 58, 1024*7168, "s65")
    a(f"s_add_u32 s65, s65, 128\ns_cmp_eq_u32 s3, 0\ns_cselect_b32 s71, s68, s67\ns_branch {name}_sJ\n{name}_sC:")
    for p, o in enumerate((4096, 4224, 2048)):
        a(f"s_add_u32 s70, s66, {o}"); srd(a, 4 + 4*p, 54, 1024*6144, "s70")
    a(f"s_mov_b32 s71, s68\n{name}_sJ:")
    a(f"""s_cmp_eq_u32 s3, 0
    s_cselect_b64 s[{sW1}:{sW1+1}], s[4:5], s[8:9]
    s_cselect_b64 s[{sW1+2}:{sW1+3}], s[6:7], s[10:11]
    s_cmp_ge_u32 s3, 2
    s_cselect_b64 s[{sW1}:{sW1+1}], s[12:13], s[{sW1}:{sW1+1}]
    s_cselect_b64 s[{sW1+2}:{sW1+3}], s[14:15], s[{sW1+2}:{sW1+3}]
    v_lshl_add_u32 v3, s63, 6, v2
    s_cmp_eq_u32 s3, 3
    s_cselect_b32 s70, 8, s63
    v_mul_u32_u24 v{TMP}, s71, v3
    s_lshl_b32 s71, s71, 9
    s_cmp_ge_u32 s70, {D1}
    v_mov_b32 v{TMP+2}, s71
    s_cbranch_scc1 {name}_w0
    buffer_load_dword v{vOST}, v{TMP}, {srdt(sW1)}, 0 offen ;@-
    v_add_u32 v{TMP}, v{TMP+2}, v{TMP}
    {name}_w0:""")
    srd(a, 16, 56, 1024*7168, "s65"); srd(a, 20, 58, 1024*7168, "s65")
    a(f"""s_bitcmp1_b32 s3, 0
    s_cselect_b64 s[{sW2_}:{sW2_+1}], s[20:21], s[16:17]
    s_mov_b64 s[{sW2_+2}:{sW2_+3}], s[18:19]
    s_lshr_b32 s70, s3, 1
    s_lshl1_add_u32 s70, s63, s70
    s_lshl_b32 s70, s70, 6
    s_{'sub' if REV else 'add'}_u32 s70, {960 if REV else 0}, s70
    v_add_u32 v3, s70, v2
    v_mul_u32_u24 v{TMP+1}, s67, v3
    s_lshl_b32 s{sM1}, s3, 10
    v_lshrrev_b32 v3, 3, v2
    v_lshl_add_u32 v3, v1, 3, v3
    v_bfe_u32 v4, v2, 4, 1
    v_and_b32 v5, 1, v1
    v_lshl_or_b32 v4, v5, 1, v4
    v_lshlrev_b32 v4, 1, v4
    v_and_b32 v5, 7, v2
    v_xor_b32 v4, v4, v5
    v_lshlrev_b32 v4, 4, v4
    v_mad_u32_u24 v{vGU}, v3, s67, v4
    v_mad_u32_u24 v{vQK}, v3, s68, v4
    s_lshl_b32 s69, s63, 4
    s_lshl_b32 s70, s3, 2
    s_add_u32 s69, s69, s70
    s_lshl_b32 s{sXN}, s69, 15
    s_add_u32 s{sXN+1}, s{sXN}, 0x8000
    s_add_u32 s{sXN+2}, s{sXN}, 0x10000
    s_add_u32 s{sXN+3}, s{sXN}, 0x18000
    s_mov_b32 s{sGU}, 0
    s_mov_b32 s{sQK}, 0
    s_lshl_b32 s47, s69, 8
    s_add_u32 s47, s47, {FL}""")
    def consts(b):
        b(f"""v_lshrrev_b32 v3, 4, v2
        v_bfe_u32 v4, v2, 2, 2
        v_lshl_add_u32 v5, v3, 3, v4
        v_lshlrev_b32 v5, 7, v5
        v_and_b32 v6, 3, v2
        v_lshl_add_u32 v5, v6, 3, v5
        v_bfe_u32 v7, v2, 3, 2""")
        for cb in range(4): b(f"v_xor_b32 v8, {cb}, v7\nv_lshl_add_u32 v{vRA+cb}, v8, 5, v5\nv_add_u32 v{vRA+4+cb}, {SLOT}, v{vRA+cb}")
        b(f"""s_mul_i32 s{sREG}, s3, {REG}
        v_lshrrev_b32 v5, 2, v2
        v_lshlrev_b32 v5, 7, v5
        v_lshl_add_u32 v5, v6, 4, v5
        v_add_u32 v5, s{sREG}, v5
        v_bfe_u32 v7, v2, 3, 1
        v_lshl_add_u32 v{vR2}, v7, 6, v5
        v_xor_b32 v8, 1, v7
        v_lshl_add_u32 v{vR2+1}, v8, 6, v5
        v_and_b32 v9, 15, v2
        v_lshlrev_b32 v5, 9, v3
        v_lshl_add_u32 v{vSTV}, v9, 4, v5
        v_and_b32 v10, 7, v2
        v_lshl_add_u32 v5, v10, 4, v5
        v_lshl_add_u32 v5, v7, 8, v5
        s_cmp_ge_u32 s62, 2
        s_cselect_b64 vcc, -1, 0
        s_cselect_b32 s70, 1, 2
        s_lshl_b32 s70, s70, 7
        v_cndmask_b32 v{vST0}, v{vSTV}, v5, vcc
        v_add_u32 v{vST1}, s70, v{vST0}
        v_mov_b32 v5, 0x7ffffff0
        v_cmp_eq_u32 vcc, 0, v2
        v_and_b32 v8, 31, v2
        s_nop 0
        v_cndmask_b32 v{vFL}, v5, v2, vcc
        v_lshlrev_b32 v{vPOLL}, {FSQ}, v8
        v_bfe_u32 v11, v2, 4, 1
        v_lshrrev_b32 v5, 3, v2
        v_lshlrev_b32 v8, 2, v11
        v_xor_b32 v8, v8, v10
        v_lshlrev_b32 v8, 4, v8
        v_lshl_add_u32 v{vDA}, v5, 11, v8
        v_add_u32 v{vDA+1}, 0x4000, v{vDA}
        v_add_u32 v{vDA+2}, 0x8000, v{vDA}
        v_add_u32 v{vDA+3}, 0xc000, v{vDA}
        v_lshlrev_b32 v5, 11, v9
        v_lshl_add_u32 v{vOA}, v3, 4, v5
        v_bfe_u32 v5, v2, 2, 1
        v_xor_b32 v5, v5, v11
        v_or_b32 v5, v5, v6
        v_mov_b32 v8, 0x3f803f80
        v_cmp_eq_u32 vcc, 0, v5""")
        b(f"""s_mul_i32 s{sH}, s69, {HO_T16}
        s_lshl_b32 s70, s64, 11
        s_add_u32 s{sH}, s{sH}, s70
        s_add_u32 s{sH}, s{sH}, {HO_OFF}
        v_cndmask_b32 v{vSEL}, 0, v8, vcc
        v_cndmask_b32 v{vSEL+1}, 0, v8, vcc
        v_cndmask_b32 v{vSEL+2}, 0, v8, vcc
        v_cndmask_b32 v{vSEL+3}, 0, v8, vcc
        s_lshl_b32 s{sQS}, s69, 10
        s_lshl_b32 s70, s60, 19
        s_add_u32 s{sQS}, s{sQS}, s70
        s_lshl_b32 s70, s62, 18
        s_add_u32 s70, s70, {Q_OFF}
        s_cmp_eq_u32 s62, 2
        s_cselect_b32 s70, {K_OFF + 2*131072}, s70
        s_cmp_eq_u32 s62, 3
        s_cselect_b32 s70, {K_OFF}, s70
        s_add_u32 s{sQS}, s{sQS}, s70
        s_lshl_b32 s{sFQP}, s60, 12
        s_add_u32 s{sFQP}, s{sFQP}, {FQ}
        s_lshl_b32 s70, s61, {FSQ}
        s_add_u32 s{sFQW}, s{sFQP}, s70
        s_lshl_b32 s54, s60, 2
        s_add_u32 s54, s54, s62
        s_lshr_b32 s55, s3, 1
        s_and_b32 s56, s3, 1
        s_lshl_b32 s57, s63, 1
        s_add_u32 s58, s57, s55
        s_lshl_b32 s58, s58, 10
        s_add_u32 s58, s58, s56
        s_lshl_b32 s59, s54, {FSH-2}
        s_add_u32 s58, s58, s59
        s_lshl_b32 s58, s58, 2
        s_add_u32 s{sFHW}, s58, {FH}
        s_add_u32 s57, s57, s56
        s_lshl_b32 s58, s57, 10
        s_add_u32 s58, s58, s55
        s_add_u32 s58, s58, s59
        s_lshl_b32 s58, s58, 2
        s_add_u32 s{sFOW}, s58, {FO}
        s_cmp_lt_u32 s62, 2
        s_cselect_b32 s{sSC}, {f2h(QSCALE)}, 1.0
        s_mov_b32 s{sSC+1}, s{sSC}
        s_lshl_b32 s58, s54, 17
        s_lshl_b32 s59, s57, 13
        s_add_u32 s59, s59, s58
        s_add_u32 s59, s59, {Q_OFF}
        s_lshl_b32 s69, s55, 12
        s_add_u32 s{sQ+1}, s59, s69
        s_xor_b32 s{sQ}, s{sQ+1}, 4096
        s_lshl_b32 s69, s55, 16
        s_add_u32 s58, s58, s69
        s_add_u32 s{sK}, s58, {K_OFF}
        s_add_u32 s{sV}, s58, {V_OFF}""")
    def layernorm(a):
        X, T, D, LB = 32, 64, 80, NS * SLOT
        a(f"""v_and_b32 v3, 7, v2
        v_lshlrev_b32 v4, 1, v1
        v_xor_b32 v4, v4, v3
        v_xor_b32 v5, 1, v4
        v_lshlrev_b32 v6, 7, v2
        v_add_u32 v6, {LB}, v6
        v_lshl_add_u32 v112, v4, 4, v6
        v_lshl_add_u32 v113, v5, 4, v6
        v_lshrrev_b32 v4, 3, v0
        v_and_b32 v5, 7, v4
        v_xor_b32 v5, v5, v3
        v_lshlrev_b32 v5, 4, v5
        v_lshl_add_u32 v5, v4, 7, v5
        v_add_u32 v114, {LB}, v5
        v_lshlrev_b32 v5, 4, v3
        v_lshl_add_u32 v115, v4, 8, v5
        v_add_u32 v116, 0x2000, v115
        v_add_u32 v117, 0x4000, v115
        v_add_u32 v118, 0x6000, v115
        s_lshr_b32 s71, s2, 1
        s_lshl_b32 s71, s71, 15
        s_and_b32 s45, s2, 1
        s_lshl_b32 s45, s45, 7
        s_add_u32 s71, s71, s45
        s_mov_b32 s45, 0xffff0000
        s_mov_b32 s{sT}, 0x9e3779b1""")
        for row in range(2):
            a(W(f"lx{row}")); a(f"f_lx{row}:")
            for j in range(8): a(f"v_lshlrev_b32 v{X+16*row+2*j}, 16, v{16+8*row+j}\nv_and_b32 v{X+16*row+2*j+1}, s45, v{16+8*row+j}")
            t = T + 8*row
            for j in range(0, 8, 2): a(f"v_pk_add_f32 {R(t+j,2)}, {R(X+16*row+j,2)}, {R(X+16*row+8+j,2)}")
            for st in (4, 2):
                for j in range(0, st, 2): a(f"v_pk_add_f32 {R(t+j,2)}, {R(t+j,2)}, {R(t+j+st,2)}")
            a(f"v_add_f32 v{t}, v{t}, v{t+1}")
        wave_allsum(a, [64, 72], [65, 73])
        a(f"v_mul_f32 v64, {f2h(1.0/1024)}, v64\nv_mul_f32 v72, {f2h(1.0/1024)}, v72")
        for row in range(2):
            for j in range(0, 16, 2): a(f"v_pk_add_f32 {R(D+16*row+j,2)}, {R(X+16*row+j,2)}, {R(64+8*row,2)} op_sel_hi:[1,0] neg_lo:[0,1] neg_hi:[0,1]")
            for j in range(0, 4, 2): a(f"v_pk_mul_f32 {R(66+8*row+j,2)}, {R(D+16*row+j,2)}, {R(D+16*row+j,2)}")
            for j in range(4, 16, 2): a(f"v_pk_fma_f32 {R(66+8*row+j%4,2)}, {R(D+16*row+j,2)}, {R(D+16*row+j,2)}, {R(66+8*row+j%4,2)}")
            a(f"v_add_f32 v{66+8*row}, v{66+8*row}, v{67+8*row}\nv_add_f32 v{68+8*row}, v{68+8*row}, v{69+8*row}\nv_add_f32 v{66+8*row}, v{66+8*row}, v{68+8*row}")
        wave_allsum(a, [66, 74], [67, 75])
        a(f"""v_mul_f32 v66, {f2h(1.0/1024)}, v66
        v_mul_f32 v74, {f2h(1.0/1024)}, v74
        v_cvt_pk_bf16_f32 v64, v64, v72
        v_cvt_pk_bf16_f32 v66, v66, v74
        v_and_b32 v72, s45, v64
        v_lshlrev_b32 v64, 16, v64
        v_and_b32 v74, s45, v66
        v_lshlrev_b32 v66, 16, v66
        v_add_f32 v66, {f2h(1e-5)}, v66
        v_add_f32 v74, {f2h(1e-5)}, v74
        v_cvt_pk_bf16_f32 v66, v66, v74
        v_and_b32 v74, s45, v66
        v_lshlrev_b32 v66, 16, v66
        v_sqrt_f32 v74, v74
        v_sqrt_f32 v66, v66
        s_nop 0
        v_cvt_pk_bf16_f32 v66, v66, v74
        v_and_b32 v74, s45, v66
        v_lshlrev_b32 v66, 16, v66
        v_rcp_f32 v74, v74
        v_rcp_f32 v66, v66""")
        for row in range(2):
            b = X + 16*row
            for j in range(0, 16, 2): a(f"v_pk_add_f32 {R(b+j,2)}, {R(b+j,2)}, {R(64+8*row,2)} op_sel_hi:[1,0] neg_lo:[0,1] neg_hi:[0,1]")
            for j in range(8): a(f"v_cvt_pk_bf16_f32 v{D+16*row+j}, v{b+2*j}, v{b+2*j+1}")
            for j in range(8): a(f"v_lshlrev_b32 v{b+2*j}, 16, v{D+16*row+j}\nv_and_b32 v{b+2*j+1}, s45, v{D+16*row+j}")
            for j in range(0, 16, 2): a(f"v_pk_mul_f32 {R(b+j,2)}, {R(b+j,2)}, {R(66+8*row,2)} op_sel_hi:[1,0]")
            for j in range(8): a(f"v_cvt_pk_bf16_f32 v{D+16*row+8+j}, v{b+2*j}, v{b+2*j+1}")
            a(f"ds_write_b128 v{112+row}, v[{D+16*row+8}:{D+16*row+11}]\nds_write_b128 v{112+row}, v[{D+16*row+12}:{D+16*row+15}] offset:8192 ;@lw")
        a(W("ep", "lw")); a("s_barrier")
        for i in range(4): a(f"ds_read_b128 v[{16+4*i}:{19+4*i}], v114 offset:{4096*i} ;@lr{i}")
        a(f"v_mul_lo_u32 v{vTOK}, v{vTOK}, s{sT}\nv_add_u32 v{vTOK}, 0x7f4a7c15, v{vTOK}")
        for i in range(4):
            a(W(f"lr{i}")); a(f"buffer_store_dwordx4 v[{16+4*i}:{19+4*i}], v{115+i}, {srdt(sWS)}, s71 offen sc1 ;@xst")
    def late():
        L = f"""s_lshl_b32 s{sOS}, s57, 1
        s_add_u32 s{sOS}, s{sOS}, s55
        s_mul_i32 s{sOS}, s{sOS}, {4*HO_T16}
        s_lshl_b32 s{sT}, s54, 10
        s_add_u32 s{sOS}, s{sOS}, s{sT}
        s_add_u32 s{sOS}, s{sOS}, {HO_OFF + 112*1024}
        s_add_u32 s{sOS+1}, s{sOS}, {2*HO_T16}
        s_lshr_b32 s10, s60, 1
        s_lshl_b32 s10, s10, 2
        s_lshr_b32 s11, s61, 3
        s_add_u32 s10, s10, s11
        s_and_b32 s11, s60, 1
        s_lshl_b32 s11, s11, 3
        s_and_b32 s12, s61, 7
        s_add_u32 s11, s11, s12
        s_lshl_b32 s11, s11, 7
        s_lshl_b32 s{sFP}, s10, 12
        s_add_u32 s{sFP}, s{sFP}, {FH}
        s_lshl_b32 s12, s10, 2
        s_add_u32 s12, s12, s3
        s_lshl_b32 s12, s12, 16
        s_add_u32 s{sRES}, s12, s11
        s_add_u32 s{sRES+1}, s{sRES}, 32768
        s_mul_i32 s{sW2}, s3, {28*65536}
        s_add_u32 s{sW2}, s{sW2}, s11
        s_lshl_b32 s{sWO0}, s3, 19
        s_add_u32 s{sWO0}, s{sWO0}, s11
        s_mul_i32 s{sACD}, s3, {20*1024}
        s_sub_u32 s{sACD}, {88*1024}, s{sACD}
        s_mul_i32 s10, s10, {8*HO_T16}
        s_mul_i32 s11, s3, {28*1024}
        s_add_u32 s10, s10, s11
        s_add_u32 s10, s10, {HO_OFF}
        s_lshl_b32 s11, s3, 1""".split("\n")
        L = [x.strip() for x in L]
        for t in range(8):
            L += [f"s_add_u32 s12, s11, {t}", "s_and_b32 s12, s12, 7", f"s_mul_i32 s12, s12, {HO_T16}", f"s_add_u32 s{sAC+t}, s10, s12"]
        return L
    consts(a)
    a("v_and_b32 v3, 7, v2\nv_lshlrev_b32 v119, 7, v3\nv_bfe_u32 v3, v2, 3, 2\nv_lshl_add_u32 v119, v3, 2, v119")
    layernorm(a)
    a(f"s_lshl_b32 s45, s2, 5\ns_add_u32 s45, s45, s3\ns_lshl_b32 s45, s45, 2\ns_add_u32 s45, s45, {FL}\ns_lshl_b32 s{sPF}, s{sPF}, 11\ns_mov_b32 s{sT}, 0")
    a(f"s_and_b32 s71, s61, 3\ns_cmp_eq_u32 s71, 3\n{name}_la:")
    a(W("xst")); a(flag_store(45)); a(f"s_cbranch_scc1 {name}_lbC")
    pro = a.L
    bodies = {}; ool = {}
    for typ in "AC":
        b = Asm()
        fd = Feed(typ)
        def dmas(n):
            L = []
            for k in range(n): o = fd.pop(0, -1, 5); L.append([o[0], "s_nop 0"] + o[1:])
            return L
        b(f"{name}_lb{typ}:")
        b.ext(sum(dmas(E("PD2", 12)), []))
        b(f"""s_lshr_b32 s71, s61, 2
        s_cmp_eq_u32 s3, 3
        s_cselect_b32 s45, 0, 0x101
        s_lshl_b32 s45, s45, s71
        s_lshr_b32 s45, s45, {D1}
        s_add_u32 s71, s71, 16
        s_bitset1_b32 s45, s71
        s_and_b32 s71, s61, 3
        s_lshl_b32 s71, s71, 15
        s_add_u32 s71, s71, s{sXN}
        ;stamp 0
        s_branch {name}_pm{typ}
        {name}_pl{typ}:
        s_sleep {E("SLP", 2)}
        {name}_pm{typ}:
        buffer_load_dword v{vPD}, v119, {srdt(sWS)}, s47 offen sc1
        s_add_u32 s{sT}, s{sT}, 1
        s_cmp_lt_u32 s{sT}, 0x8000
        s_waitcnt vmcnt(0)
        v_cmp_ne_u32 vcc, v{vTOK}, v{vPD}
        s_cbranch_scc0 {name}_pk{typ}
        s_cbranch_vccnz {name}_pl{typ}
        {name}_pk{typ}:
        ;stamp 1""")
        xw = [[int(y) for y in x.split(":")] for x in os.environ.get("XW", "").split(",") if x]
        xev = {}
        for k, (h, e) in enumerate(xw):
            d = xw[k + 1][1] - e if k + 1 < len(xw) else 0
            xev[h] = [None, f"buffer_load_dword v{vOST}, v{vPD}, {srdt(sWS)}, s47 offen sc1"] + ([f"s_add_u32 s47, s47, {(d * 8192) & 0xffffffff}"] if d else [])
        if xw: b(f"v_lshlrev_b32 v{vPD}, 3, v{vL16}\ns_add_u32 s47, s71, {xw[0][1] * 8192}")
        if -1 in xev: b.ext(xev[-1][1:])
        for k in range(4 * E("PX", 4)):
            b.ext(fd.pop(0, 9, -1)[1:])
            if k == 7: b("s_barrier"); b.ext(g1_reads(0, 0) + g1_reads(0, 1))
        e_qkv, e_h = epi1(typ)
        def groups(L):
            G = [[]]
            for x in L:
                if G[-1] and any("buffer_store" in y for y in G[-1]) and cls(x) == "valu": G.append([])
                G[-1].append(x)
            return G if L else []
        gq, gh = groups(e_qkv), groups(e_h)
        NQ, NH = E("NQ" + typ, 6), E("NH", 7)
        plan = {16 + k: sum(gq[(k * len(gq)) // NQ:((k + 1) * len(gq)) // NQ], []) for k in range(NQ)}
        plan[16 + NQ - 1].append(";qdone")
        for k in range(NH): plan[16 + NQ + k] = sum(gh[(k * len(gh)) // NH:((k + 1) * len(gh)) // NH], [])
        stream = []; qdone = None; HP = E("HP", 56)
        for S in range(32):
            btags = []; bpost = []; post = []; vm = [[], []]; first = 0
            if qdone is not None and S == qdone + E("QD", 2): btags.append("qkv"); bpost.append(flag_store(sFQW))
            ev = {}
            for hf in range(2):
                h = 2 * S + hf; k = None
                if h in xev: vm[hf].append(xev[h])
                if E("NOEV", 0): continue
                if h % R1 == 0 and h // R1 + D1 < 16: k = h // R1; ld = [f"buffer_load_dword v{vOST}, v{TMP}, {srdt(sW1)}, 0 offen ;@-", f"v_add_u32 v{TMP}, v{TMP+2}, v{TMP}"]
                if k is not None: ev[48*hf + 11] = [f"s_bitcmp1_b32 s45, {k}", f"s_cbranch_scc0 {name}_w{typ}{k}"] + ld + [f"{name}_w{typ}{k}:"]
                if h >= B2 and (h - B2) % R2 == 0 and (h - B2) // R2 < 8:
                    k = 16 + (h - B2) // R2; assert h < 32
                    ev[48*hf + 27] = [f"s_bitcmp1_b32 s45, {k}", f"s_cbranch_scc0 {name}_w{typ}{k}", f"buffer_load_dword v{vOST}, v{TMP+1}, {srdt(sW2_)}, 0 offen ;@-", f"{name}_w{typ}{k}:"]
            post.append(f"{name}_{typ}{S}:")
            if CPF & 2 and S % 4 == 1:
                c = code_pf(f"{name}_{typ}{S+3}" if S < 29 else f"{name}_att"); post.append(c[0]); vm[0].append(c[1])
            if S == 14: stream += late()
            if S == 16: first = 3; post.append(";stamp 2")
            stream += plan.get(S, [])
            if S == HP // 2: vm[HP % 2].insert(0, poll_load(sFQP, 0, "pq"))
            if S == 30:
                assert not stream
                post += poll_check(f"{name}_pq{typ}", "pq")
                vm[0] += [at_ld(0, "K", 0), at_ld(0, "K", 1)] + [at_q(i) for i in range(6)]
                vm[1] += [at_ld(0, "V", 0), at_ld(0, "V", 1), at_q(6), at_q(7), at_ld(1, "K", 0), at_ld(1, "K", 1)]
            if S == 31:
                post += [f"s_add_u32 s{sK}, s{sK}, 4096"]
                vm[0] += [at_ld(1, "V", 0), at_ld(1, "V", 1) + f"\ns_add_u32 s{sV}, s{sV}, 4096"] + [at_ld(2, w, kk) for w in "KV" for kk in range(2)]
                stream += epi_h(0, 0, 4, (0,), 0); first = 35
            L = g1_step(typ, S, fd, post, vm, stream, first, btags, bpost, ev)
            if ";qdone" in L: qdone = S
            if os.environ.get("V"): print(typ, S, "x", fd.nx - 2*S, "d", fd.nd - S, "vm", sum(cls(x) == "vm" for x in L), "left", len(stream))
            if E("NOST", 0) and 17 < S < 30: L = [x for x in L if "buffer_store_dwordx4" not in x]
            if E("NOX", 0) and 17 < S < 30: L = [x.replace("s[24:27], s48", "s[24:27], s71").replace("s[24:27], s49", "s[24:27], s71").replace("s[24:27], s50", "s[24:27], s71").replace("s[24:27], s51", "s[24:27], s71") for x in L]
            b.ext(L)
        assert fd.nx == 64 and fd.nd == 32 and not fd.qx and not fd.qd
        b.ext(stream)
        if typ == "A": b(f"s_branch {name}_att")
        bodies[typ] = b.L
        o = Asm(); o(poll_slow(f"{name}_pq{typ}", sFQP, 0, 7)); ool[typ] = o.L
    t_ = Asm()
    t_(f"{name}_att:\n;stamp 3")
    t_(W("K0", "Q0")); t_.ext(at_qk(0))
    t_(f"v_lshrrev_b32 v{vPOLL}, 9, v{vL16}\nv_bfe_u32 v{vGU}, v{vL16}, 4, 5\nv_lshlrev_b32 v{vGU}, {FSH}, v{vGU}\nv_lshl_add_u32 v{vPOLL}, v{vPOLL}, 2, v{vGU}\ns_load_dwordx2 s[{sOUT}:{sOUT+1}], s[0:1], 56\ns_mov_b32 s{sOUT+2}, {2048*2048}\ns_mov_b32 s{sOUT+3}, 0x00020000")
    t_(f"s_load_dwordx2 s[{sWD}:{sWD+1}], s[0:1], 48\ns_load_dwordx2 s[{sWO}:{sWO+1}], s[0:1], 16\ns_mov_b32 s{sWD+2}, {3584*2048}\ns_mov_b32 s{sWO+2}, {1024*2048}")
    t_(f"""s_xor_b32 s10, s3, 2
    s_mul_i32 s10, s10, {REG}
    v_add_u32 v{vRA}, s10, v{vL16}
    v_add_u32 v{vRA+1}, s{sREG}, v{vL16}
    v_lshrrev_b32 v{vRA+3}, 1, v{vL16}
    v_add_u32 v{vRA+3}, 0x7000, v{vRA+3}
    v_add_u32 v{vRA+2}, s10, v{vRA+3}
    v_add_u32 v{vRA+3}, s{sREG}, v{vRA+3}""")
    t_(f"""v_bfe_u32 v{vGU}, v{vL16}, 8, 1
    v_lshrrev_b32 v{vQK}, 9, v{vL16}
    v_and_b32 v{vOST}, 0xf0, v{vL16}
    v_lshl_add_u32 v{vOST}, v{vQK}, 8, v{vOST}
    s_mov_b32 s10, {HO_T16}
    v_mad_u32_u24 v{vOST}, v{vGU}, s10, v{vOST}""")
    for d in range(1, 4):
        t_(f"s_sub_u32 s10, s3, {d}\ns_and_b32 s10, s10, 3\ns_mul_i32 s10, s10, {REG}\ns_add_u32 s10, s10, {16384 + (d-1)*8192}\nv_add_u32 v{vRA+3+d}, s10, v{vL16}")
    t_.ext(epi_h(0, 0, 4, (1,), 0, rev=True))
    TF, TP, T0 = E("TF", 16), E("TP", 40), E("T0", 52)
    pl = []
    for s in range(8):
        if s < 7:
            for i in range(4): pl.append(g2_dma(s, i) + (g2_dadv(s) if i == 3 else []))
        for t in range(8): pl.append([None, g2_act(s, t)] + g2_aadv(s, t))
    npl = len(pl); T1 = E("T1", 120)
    pts = [int(x) for x in os.environ.get("PTS", "3,11,19,27,35").split(",")]
    for t in range(128):
        kt, qt = t // 4, t % 4
        mem = [[] for _ in range(6)]; pre = []
        if kt + 3 < 32:
            mem[0].append(at_ld(kt + 3, "KKVV"[qt], qt % 2))
            if kt % 2 == 0 and qt % 2 == 1: mem[4].append(f"s_add_u32 s{sK if qt == 1 else sV}, s{sK if qt == 1 else sV}, 4096")
        if t < 3: pre.append(W(f"Q{t+1}"))
        if t == 1: pre += [W("V0"), "s_waitcnt lgkmcnt(0)"]
        if qt == 3 and kt < 31: pre.append(W(f"K{kt+1}", f"V{kt+1}"))
        if t in pts:
            i = pts.index(t)
            mem[1].append(f"buffer_load_dword v{vGU}, v{vPF}, {srdt(sWD if i < 4 else sWO)}, s{sPF} offen")
            if i < 4: mem[5].append(f"s_add_u32 s{sPF}, s{sPF}, 0x200000" if i < 3 else f"s_and_b32 s{sPF}, s{sPF}, 0x1fffff")
        if t == TF: pre.append(W("hst")); mem[1].append(flag_store(sFHW))
        if t == TP: mem[1].append(poll_load(sFP, 0, "ph"))
        if t == T0 - 1: pre += poll_check(f"{name}_ph", "ph") + ["s_waitcnt lgkmcnt(0)", "s_barrier"]
        pre.append(f"{name}_t{t}:")
        if CPF & 2 and t % 32 == 10:
            c = code_pf(f"{name}_t{t+20}" if t < 106 else f"{name}_t126", vGU); pre.append(c[0]); mem[1].append(c[1])
        if t >= T0:
            want = min(npl, ((t - T0 + 1) * npl + (T1 - T0) - 1) // (T1 - T0))
            for sl, prev in ((2, 1), (3, 4)):
                if npl - len(pl) < want:
                    x = pl.pop(0)
                    if x[0]: mem[prev].append(x[0])
                    mem[sl].append(x[1]); mem[5] += x[2:]
        if t == 124: pre.append(W("e0"))
        if t in (124, 125):
            for q in range(4): mem[q].append(g2_rd(0)[4 * (t - 124) + q])
        if t in (126, 127):
            for q in range(4): mem[[2, 4, 3, 5][q]].append(f"ds_write_b128 v{vRA}, {R(vO + 16*(t-126) + 4*q, 4)} offset:{32768 + 4096*(t-126) + 1024*q}")
        t_.ext(at_period(t, mem, pre))
    assert not pl
    pv = at_pv(127)
    t_(f"ds_write2_b32 v{vRA+2}, v{vLs}, v{vLs+4} offset0:0 offset1:1")
    t_.ext([pv[0], pv[2], pv[1], pv[3]])
    t_(";stamp 4\ns_waitcnt lgkmcnt(0)\ns_barrier")
    t_(f"ds_read_b64 {R(vLs,2)}, v{vRA+3} ;@xl")
    for i in range(8): t_(f"ds_read_b128 {R(vO+4*i,4)}, v{vRA+1} offset:{32768 + 1024*i} ;@xo{i}")
    t_(f"s_mov_b32 s10, {f2h(2.0**-64)}\ns_mov_b32 s11, {f2h(2.0**64)}")
    t_(W("xl"))
    for i in range(4):
        m, ld = g2_dma(7, i); t_(m)
        t_([f"v_add_f32 v{vLs+8}, v{vLs+8}, v{vLs}", f"v_add_f32 v{vLs+12}, v{vLs+12}, v{vLs+1}",
            f"v_cmp_le_f32 s[12:13], s10, v{vLs+8}", f"v_cmp_le_f32 s[14:15], s10, v{vLs+12}"][i])
        t_(ld)
    t_.ext(g2_dadv(7))
    t_(f"""v_cmp_ge_f32 s[16:17], s11, v{vLs+8}
    v_cmp_ge_f32 s[18:19], s11, v{vLs+12}""")
    for i in range(8):
        t_(W(f"xo{i}"))
        for r in (0, 2): t_(f"v_pk_add_f32 {R(vO+32+4*i+r,2)}, {R(vO+32+4*i+r,2)}, {R(vO+4*i+r,2)}")
    t_(f"""s_and_b64 s[12:13], s[12:13], s[14:15]
    s_and_b64 s[16:17], s[16:17], s[18:19]
    s_and_b64 s[12:13], s[12:13], s[16:17]
    s_cmp_eq_u64 s[12:13], -1
    s_cbranch_scc0 {name}_slow
    {name}_fin:
    v_rcp_f32 v{vLs+8}, v{vLs+8}
    v_rcp_f32 v{vLs+12}, v{vLs+12}""")
    for qt in range(2):
        o = vO + 32 + 16 * qt
        for i in range(0, 16, 2): t_(f"v_pk_mul_f32 {R(o+i,2)}, {R(o+i,2)}, {R(vLs+8+4*qt,2)} op_sel_hi:[1,0]")
        for h in range(2):
            d = vP + 8 * qt + 4 * h
            idx = [4*h, 4*h+1, 4*h+2, 4*h+3, 8+4*h, 9+4*h, 10+4*h, 11+4*h]
            for j in range(4): t_(f"v_cvt_pk_bf16_f32 v{d+j}, v{o+idx[2*j]}, v{o+idx[2*j+1]}")
            t_(f"buffer_store_dwordx4 {R(d,4)}, v{vOST}, {srdt(sWS)}, s{sOS+qt} offen offset:{512*h} sc1 ;@ost")
    t_(";stamp 5")
    XR = 160; XF = 176
    SO, SP2 = E("SO", 4), E("SP2", 15)
    for s in range(36):
        pre = []; ex = {}; stream = None; first = 0
        if s == SO: pre.append(W("ost")); ex[2] = [flag_store(sFOW), f"s_add_u32 s{sFP}, s{sFP}, {FO - FH}"]
        pre.append(f"{name}_g{s}:")
        if CPF & 2 and s in (3, 17):
            c = code_pf(f"{name}_g{s+8}", vGU); pre.append(c[0]); ex[2] = [c[1]]
        if s == SP2: ex[2] = [poll_load(sFP, 0, "po")]
        if s == 20: pre += poll_check(f"{name}_po", "po")
        if s == 30:
            for i in range(4): ex[4*i + 3] = [f"buffer_load_dwordx4 {R(XR+4*i,4)}, v{vOA}, {srdt(sX)}, s{sRES + i//2} offen offset:{64*(i%2)} ;@xr"]
        if s == 34:
            stream = [W("xr"), "s_mov_b32 s10, 0xffff0000"]
            for i in range(16): stream += [f"v_lshlrev_b32 v{XF+2*i}, 16, v{XR+i}", f"v_and_b32 v{XF+2*i+1}, s10, v{XR+i}"]
            first = 14
        if s == 35:
            for i in range(24): ex[i + 8] = [f"ds_write_b128 v{vRA+1}, {R(32+4*i,4)} offset:{16384 + 1024*i}"]
        t_.ext(g2_step(s, pre, ex, stream, first))
        assert not stream
    t_(";stamp 6\ns_waitcnt lgkmcnt(0)\ns_barrier")
    for d in range(3):
        for i in range(8): t_(f"ds_read_b128 {R(32+32*d+4*i,4)}, v{vRA+4+d} offset:{1024*i} ;@y{d}_{i}")
        if d == 0:
            for i in range(0, 32, 2): t_(f"v_pk_add_f32 {R(i,2)}, {R(i,2)}, {R(XF+i,2)}")
        else:
            t_(W(f"y{d-1}_7"))
            for i in range(0, 32, 2): t_(f"v_pk_add_f32 {R(i,2)}, {R(i,2)}, {R(32*d+i,2)}")
    for i in range(4):
        t_(W(f"y2_{2*i+1}"))
        for r in range(0, 8, 2): t_(f"v_pk_add_f32 {R(8*i+r,2)}, {R(8*i+r,2)}, {R(96+8*i+r,2)}")
        for r in range(4): t_(f"v_cvt_pk_bf16_f32 v{8*i+r}, v{8*i+2*r}, v{8*i+2*r+1}")
        t_(f"buffer_store_dwordx4 {R(8*i,4)}, v{vOA}, {srdt(sOUT)}, s{sRES + i//2} offen offset:{64*(i%2)}")
    t_(f"{name}_end:\ns_endpgm")
    tail = t_.L
    e = Asm()
    e(poll_slow(f"{name}_ph", sFP, 0, 8)); e(poll_slow(f"{name}_po", sFP, 0, 9))
    M = vO
    kv0 = f"s_and_b32 s{sK}, s{sK}, 0xfffe0000\ns_add_u32 s{sV}, s{sK}, {V_OFF - K_OFF}\ns_mov_b32 s10, 64"
    e(f"{name}_slow:\ns_sub_u32 s{sK}, s{sK}, 4096\n{kv0}\nv_mov_b32 v{M}, 0xff800000\nv_mov_b32 v{M+1}, 0xff800000\n{name}_slow1:")
    e(at_ld(0, "K", 0)); e(at_ld(0, "K", 1))
    e(f"s_add_u32 s{sK}, s{sK}, 2048\ns_sub_u32 s10, s10, 1\ns_waitcnt vmcnt(0)")
    e.ext(at_qk(2) + at_qk(3)); e("s_nop 7\ns_nop 3")
    for qt in range(2):
        for i in range(0, 16, 2): e(f"v_max3_f32 v{M+qt}, v{M+qt}, v{vS+16*qt+i}, v{vS+16*qt+i+1}")
    e(f"""s_cmp_lg_u32 s10, 0
    s_cbranch_scc1 {name}_slow1
    v_mov_b32 v{M+2}, v{M}
    v_mov_b32 v{M+3}, v{M+1}
    s_sub_u32 s{sK}, s{sK}, 4096
    {kv0}
    v_permlane32_swap_b32 v{M}, v{M+2}
    v_permlane32_swap_b32 v{M+1}, v{M+3}
    v_max_f32 v{M}, v{M}, v{M+2}
    v_max_f32 v{M+1}, v{M+1}, v{M+3}""")
    for i in range(32): e(f"v_mov_b32 v{vO+32+i}, 0")
    for i in range(8): e(f"v_mov_b32 v{vLs+8+i}, 0")
    e(f"{name}_slow2:")
    for w in "KV": e(at_ld(0, w, 0)); e(at_ld(0, w, 1))
    e(f"s_add_u32 s{sK}, s{sK}, 2048\ns_add_u32 s{sV}, s{sV}, 2048\ns_sub_u32 s10, s10, 1\ns_waitcnt vmcnt(0)")
    e.ext(at_qk(2) + at_qk(3)); e("s_nop 7\ns_nop 3")
    for qt in range(2):
        s = vS + 16 * qt; p = vP + 8 * qt
        for i in range(16): e(f"v_sub_f32 v{s+i}, v{s+i}, v{M+qt}")
        for i in range(16): e(f"v_exp_f32 v{s+i}, v{s+i}")
        e("s_nop 0")
        for i in range(8): e(f"v_cvt_pk_bf16_f32 v{p+i}, v{s+2*i}, v{s+2*i+1}")
    e("s_nop 1")
    e.ext(at_pv(2) + at_pv(3))
    e(f"s_cmp_lg_u32 s10, 0\ns_cbranch_scc1 {name}_slow2\ns_nop 7\ns_nop 3\ns_branch {name}_fin\nf_last:")
    res = {}
    for typ in "AC": res[typ] = resolve(pro + bodies[typ] + tail)
    def part(typ, lo, L): return emit(L, {i - lo: v for i, v in res[typ].items()})
    nA, nC = len(pro) + len(bodies["A"]), len(pro) + len(bodies["C"])
    rt = {i - nA: mergew(v, res["C"][i - nA + nC]) for i, v in res["A"].items() if i >= nA}
    out = Asm()
    out.L = emit(pro, res['A']) + part("A", len(pro), bodies["A"]) + ool["A"] + ool["C"] + part("C", len(pro), bodies["C"]) + emit(tail, rt) + emit(e.L, {})
    return out, dict(nm=name, vgpr=512, accum=256, lds=163840, grid=256, block=256)
```

```python
from asmlib import *
from sched import *
from k01 import wave_allsum, WS_BYTES, HO_OFF, HO_T16, Q_OFF, K_OFF, V_OFF, QSCALE
import os
E = lambda k, d: int(os.environ.get(k, d))
FLAG_OFF = 40 << 20
FQ, FL, FH, FO = FLAG_OFF, FLAG_OFF + 32768, FLAG_OFF + 65536, FLAG_OFF + 131072
A0 = 256
FSQ, FSH = E('FSQ', 5), E('FSH', 4)
vL16, vGU, vQK, vRA = 128, 129, 130, 131
vST0, vST1, vSTV, vPF, vFL, vTOK, vPOLL, vOST = 139, 140, 141, 142, 143, 144, 145, 146
vDA, vR2, vOA, vPD = 147, 151, 153, 154
vPC = 155
vSEL = 156
sCD = 36
sW1, sW2_ = 32, 28
sWS, sWD, sWO, sX, sOUT = 24, 28, 32, 40, 20
sGU, sQK, sXN = 44, 46, 48
sM1, sREG, sAC, sW2, sK, sV, sQ, sH, sQS, sT = 52, 53, 54, 62, 63, 64, 65, 67, 68, 69
sSC = 70
sFQW, sFQP, sFHW, sFOW, sFP, sPF = 72, 73, 74, 75, 76, 77
sOS, sRES, sWO0, sACD = 4, 6, 8, 9
def srdt(d): return f"s[{d}:{d+3}]"
def M16(d, x, y, z=False): return f"v_mfma_f32_16x16x32_bf16 {R(d,4)}, {R(x,4)}, {R(y,4)}, " + ("0" if z else R(d, 4))
def M32(d, x, y, z=False): return f"v_mfma_f32_32x32x16_bf16 {R(d,16)}, {R(x,4)}, {R(y,4)}, " + ("0" if z else R(d, 16))
CPF = E("CPF", 3)
def code_pf(lbl, d=vOST): return [f"s_mov_b32 s{sT}, {lbl}-f_base", f"buffer_load_dword v{d}, v{vPC}, {srdt(sCD)}, s{sT} offen"]
def flag_store(s): return f"buffer_store_dword v{vTOK}, v{vFL}, {srdt(sWS)}, s{s} offen sc1"
def poll_load(s, off, tag): return f"buffer_load_dword v{vPD}, v{vPOLL}, {srdt(sWS)}, s{s} offen offset:{off} sc1 ;@{tag}"
def poll_check(lbl, tag): return [W(tag), f"v_cmp_ne_u32 vcc, v{vTOK}, v{vPD}", f"s_cbranch_vccnz {lbl}", f"{lbl}_back:"]
def poll_slow(lbl, s, off, st):
    return f"""{lbl}:
    s_mov_b32 s{sT}, 0
    {lbl}_1:
    s_sleep 1
    buffer_load_dword v{vPD}, v{vPOLL}, {srdt(sWS)}, s{s} offen offset:{off} sc1
    s_add_u32 s{sT}, s{sT}, 1
    s_waitcnt vmcnt(0)
    v_cmp_ne_u32 vcc, v{vTOK}, v{vPD}
    s_cmp_lt_u32 s{sT}, 0x8000
    s_cbranch_scc0 {lbl}_back
    s_cbranch_vccnz {lbl}_1
    s_branch {lbl}_back"""

SLOT = 24576; NS = E("NS", 6); REV = E("REV", 1); KEEP = E("KEEP", 7)
WF = 192; TMP = 216
PSET = [A0 + 192, A0 + 208, A0 + 224, A0 + 240, 160, 176, 240]
YSET = [16 * i for i in range(8)]
ORD2 = [0, 4, 2, 6]
def npair(S): return 12 if S < 16 else 8
def pair0(S): return 12 * S if S < 16 else 192 + 8 * (S - 16)
def pairdef(S, i):
    if S < 16: return [(i, 0), (i, 1)]
    if S == 31: return [([0, 1, 4, 5, 2, 3, 6, 7][i], 0), ([0, 1, 4, 5, 2, 3, 6, 7][i], 1)]
    return [(ORD2[i % 4], i // 4), (ORD2[i % 4] + 1, i // 4)]
def g1_reads(S, i):
    gp = pair0(S) + i; d = WF + 8 * (gp % 3); L = []
    for e, (f, kk) in enumerate(pairdef(S, i)):
        for q in range(2):
            L.append(f"ds_read_b64_tr_b16 {R(d+4*e+2*q,2)}, v{vRA + 4*(S % 2) + f % 4} offset:{(f // 4)*8192 + kk*4096 + q*512} ;@w{gp}")
    return L
def g1_dma(typ, S):
    L = []
    for kk in range(2):
        for p in range(3 if S < 16 else 2):
            isq = S < 16 and (typ == "C" or p == 0)
            L.append([f"s_add_u32 m0, s{sM1}, {(S % NS) * SLOT + p * 8192 + kk * 4096}",
                      f"buffer_load_dwordx4 v{vQK if isq else vGU}, {srdt(4 + 4*p if S < 16 else 16 + 4*p)}, s{sQK if isq else sGU} offen lds ;@d{S}"])
        if S == 15 and kk == 1: L[-1].append(f"s_mov_b32 s{sGU}, {31*32*7168 if REV else 0}"); continue
        if S >= 16 or typ == "A": L[-1].append(f"s_{'sub' if REV and S >= 16 else 'add'}_u32 s{sGU}, s{sGU}, {32*7168}")
        if S < 16: L[-1].append(f"s_add_u32 s{sQK}, s{sQK}, {32*6144}")
    return L
XSC = " sc1"
D1, R1, B2, R2, LEAD = E("D1", 4), E("R1", 1), E("B2", 12), E("R2", 2), E("LEAD", 3)
class XAlloc:
    def __init__(s): s.reg = {}; s.busy = {r: 0 for r in PSET + YSET}
    @staticmethod
    def need(n): return n & ~1 if (n < 32 or n >= 62) else n
    @staticmethod
    def rel(n): return (n | 1) + 1 if (n < 32 or n >= 62) else n + 1
    def take(s, n, now):
        kept = 32 - KEEP <= n < 32
        for r in (YSET + PSET if n < 32 - KEEP else PSET):
            if s.busy[r] <= now:
                s.busy[r] = s.rel(63 - n if kept else n); s.reg[n] = r
                if kept: s.reg[63 - n] = r
                return True
        return False
    @staticmethod
    def kb(n): return n if n < 32 else (63 - n if REV else n - 32)
    @staticmethod
    def tag(n): return f"x{63 - n if 32 <= n < 32 + KEEP else n}"
    def loads(s, n):
        L = [[None, f"buffer_load_dwordx4 {R(s.reg[n] + 4*tt, 4)}, v{vL16}, {srdt(sWS)}, s{sXN+tt} offen offset:{(s.kb(n) % 4)*1024}{XSC} ;@x{n}"] for tt in range(4)]
        if n < 63:
            d = s.kb(n + 1 + (KEEP if n == 31 else 0)) // 4 - s.kb(n) // 4
            for tt in range(4):
                if d: L[tt].append(f"s_{'add' if d > 0 else 'sub'}_u32 s{sXN+tt}, s{sXN+tt}, {4096*abs(d)}")
        return L
class Feed:
    def __init__(s, typ): s.typ = typ; s.x = XAlloc(); s.nx = 0; s.nd = 0; s.qx = []; s.qd = []
    def pop(s, h, lax, lad):
        S = h // 2
        if not s.qx and s.nx < 64 and s.x.need(s.nx) - h <= lax and s.x.take(s.nx, h): s.qx = s.x.loads(s.nx); s.lx = s.nx; s.nx += 1 + (KEEP if s.nx == 31 else 0)
        if not s.qd and s.nd < 32 and s.nd - S <= min(lad, NS - 1): s.qd = g1_dma(s.typ, s.nd); s.nd += 1
        if s.qx and (not s.qd or s.x.need(s.lx) < 2 * (s.nd - 1) - 0.5): return s.qx.pop(0)
        if s.qd: return s.qd.pop(0)
        return None
def g1_step(typ, S, fd, pre, vm, stream, first, btags, bpost, ev):
    n = npair(S); mf = []; fill = {g: [] for g in range(-1, 8 * n)}
    for i in range(n):
        r = g1_reads(S, i + 2) if i + 2 < n else (g1_reads(S + 1, i + 2 - n) if S < 31 else [])
        for q, x in enumerate(r): fill[8*i + ((4, 5, 6, 7) if i == n - 2 else (0, 1, 4, 5))[q]].append(x)
    if S < 31: fill[8*(n-2) + 3] += [W(f"d{S+1}", f"w{pair0(S) + n - 1}", *btags), "s_barrier"]
    for x in bpost: fill[8*(n-1) + 2].append(x)
    cap = E("CAP1", 10) if S < 16 else E("CAP2", 7)
    for hf in range(2):
        h = 2 * S + hf
        slots = [8*i + q for i in range(hf * n // 2, (hf + 1) * n // 2) for q in (2, 6) if (i, q) != (n - 2, 6) and not (bpost and (i, q) == (n - 1, 2))]
        ops = [x if isinstance(x, list) else [None, x] for x in vm[hf]]
        while len(ops) < min(cap, len(slots)):
            o = fd.pop(h, E("LAX1", 6) if S < 16 else E("LAX2", 6), min(E("LAD", 5), max(D1 - 1, D1 + (h - LEAD) // R1) - S))
            if o is None: break
            ops.append(o)
        assert len(ops) <= len(slots)
        for k, o in enumerate(ops):
            g = slots[(k * len(slots)) // len(ops)]
            if o[0]: fill[g - 1].append(o[0])
            fill[g].append(o[1])
            if o[2:]: fill[g].append(o[2]); fill[g + 1] += o[3:]
    if 1 <= S < 31:
        dl = (((S + 1) % NS) - ((S - 1) % NS)) * SLOT
        for q in range(4): fill[(0, 4, 8, 12)[q]].append(f"v_add_u32 v{vRA + 4*((S+1) % 2) + q}, 0x{dl & 0xffffffff:x}, v{vRA + 4*((S+1) % 2) + q}")
    for i in range(-1, n - 1):
        need = sorted({fd.x.tag(2*S + kk) for f, kk in pairdef(S, i + 1)})
        fill[8*i + 7].append(W(f"w{pair0(S) + i + 1}", *need))
    fill[-1] += pre
    for g, x in ev.items(): fill[g] += x
    for i in range(n):
        w = WF + 8 * ((pair0(S) + i) % 3); pd = pairdef(S, i)
        for tt, e in ([(q // 2, q % 2) for q in range(8)] if pd[0][0] == pd[1][0] else [(q % 4, q // 4) for q in range(8)]):
            f, kk = pd[e]
            x = fd.x.reg[2*S + kk] + 4 * tt
            c = (A0 if S < 16 else 0) + (f * 4 + tt) * 4
            z = S % 16 == 0 and kk == 0
            mf.append(M16(c, x, w + 4*e, z) if (typ == "C" and S < 16 and f < 8) else M16(c, w + 4*e, x, z))
    return weave2(mf, fill, stream, first=first)

class Tmp:
    n = 0
    @classmethod
    def get(c): c.n += 1; return TMP + 16 + 4 * (c.n % 2)
def pack(srcs, mul, voff, soff, off, tag, pk=False):
    t = TMP; o = Tmp.get(); L = []
    def get(idx, base):
        if idx[0] < A0: return idx
        for j, i in enumerate(idx): L.append(f"v_accvgpr_read_b32 v{base+j}, {R(i)}")
        return [base + j for j in range(8)]
    g = get(srcs[:8], t)
    if mul == "gu":
        u = get(srcs[8:], t + 8)
        if pk:
            for j in range(0, 8, 2): L.append(f"v_pk_mul_f32 {R(t+j,2)}, {R(g[j],2)}, {R(u[j],2)}")
        else:
            for j in range(8): L.append(f"v_mul_f32 v{t+j}, v{g[j]}, v{u[j]}")
        g = [t + j for j in range(8)]
    elif mul:
        for j in range(8): L.append(f"v_mul_f32 v{t+j}, s{sSC}, v{g[j]}")
    for j in range(4): L.append(f"v_cvt_pk_bf16_f32 v{o+j}, v{g[2*j]}, v{g[2*j+1]}")
    L.append(f"buffer_store_dwordx4 {R(o,4)}, v{voff}, {srdt(sWS)}, s{soff} offen offset:{off} sc1 ;@{tag}")
    return L
def quad(base, f0, tt): return [base + ((f0 + e) * 4 + tt) * 4 + r for e in range(2) for r in range(4)]
def epi_qk(f0, mul):
    L = []
    for hh in range(2):
        for tt in range(4): L += pack(quad(A0, f0 + 2*hh, tt), mul, vST0 + tt % 2, sQS, (tt // 2) * 2048, "qkv")
        if hh == 0: L.append(f"s_add_u32 s{sQS}, s{sQS}, 131072")
    return L
def epi_h(base, fg, fu, js, off0, rev=False):
    L = []
    for n in range(4):
        tt = 3 - n if rev else n
        for j in js: L += pack(quad(base, fg + 2*j, tt) + quad(base, fu + 2*j, tt), "gu", vL16, sH, off0 + j * 1024, "hst", rev)
        if n < 3: L.append(f"s_{'sub' if rev else 'add'}_u32 s{sH}, s{sH}, {HO_T16}")
    return L
def epi1(typ):
    if typ == "A":
        return epi_qk(0, True), epi_h(A0, 4, 8, (0, 1), 0) + [f"s_sub_u32 s{sH}, s{sH}, {3*HO_T16 - 2048}"]
    L = epi_qk(8, False) + [f"s_add_u32 s{sQS}, s{sQS}, {V_OFF - K_OFF - 131072}"]
    for hh in range(4):
        for e in range(2):
            for t2 in range(2):
                L += pack([A0 + ((2*hh + e) * 4 + 2*t2 + b) * 4 + r for b in range(2) for r in range(4)], None, vSTV, sQS, t2 * 2048 + e * 256, "qkv")
        if hh < 3: L.append(f"s_add_u32 s{sQS}, s{sQS}, 131072")
    return L, []

aQ, aK, aV = A0, A0 + 32, A0 + 64
vS, vP, vO, vLs = 0, 32, 48, 112
def at_qk(t):
    s = vS + 16 * (t % 2); k = aK + 8 * ((t // 4) % 4); q = aQ + 8 * (t % 4)
    return [M32(s, k, q, True), M32(s, k + 4, q + 4)]
def at_pv(t, z=False):
    p = vP + 8 * (t % 2); v = aV + 8 * ((t // 4) % 4); o = vO + 16 * (t % 4); l = vLs + 4 * (t % 4)
    return [M32(o, v, p, z), M32(o, v + 4, p + 4), M16(l, vSEL, p, z), M16(l, vSEL, p + 4)]
def at_ld(kt, w, kk, off=None):
    d = (aK if w == "K" else aV) + 8 * (kt % 4) + 4 * kk
    if off is None: off = (kt % 2) * 2048
    return f"buffer_load_dwordx4 {R(d,4)}, v{vL16}, {srdt(sWS)}, s{sK if w == 'K' else sV} offen offset:{off + kk*1024} sc1 ;@{w}{kt}"
def at_q(i): return f"buffer_load_dwordx4 {R(aQ+4*i,4)}, v{vL16}, {srdt(sWS)}, s{sQ + i//4} offen offset:{(i%4)*1024} sc1 ;@Q{i//2}"
def at_period(t, mem, pre):
    s = vS + 16 * (t % 2); p = vP + 8 * (t % 2)
    Ex = [f"v_exp_f32 v{s+i}, v{s+i}" for i in range(16)]
    C = [f"v_cvt_pk_bf16_f32 v{p+i}, v{s+2*i}, v{s+2*i+1}" for i in range(8)]
    q = at_qk(t + 1) if t < 127 else [None, None]
    v = at_pv(t - 1, t <= 4) if t > 0 else [None] * 4
    mem = mem + [[]] * (6 - len(mem))
    L = list(pre)
    L += [q[0]] + mem[0] + Ex[0:4]
    L += [q[1]] + mem[1] + [Ex[4], C[0], Ex[5], C[1], Ex[6]]
    L += [v[0]] + mem[2] + [Ex[7], C[2], Ex[8], Ex[9], C[3]]
    L += [v[2]] + mem[4] + [Ex[10], Ex[11], C[4]]
    L += [v[1]] + mem[3] + [Ex[12], Ex[13], C[5], Ex[14], Ex[15]]
    L += [v[3]] + mem[5] + [C[6], C[7]]
    return [x for x in L if x]

REG = 40960; RG = 10; NL = E("NL", 8)
ASET = [A0 + 96 + 16 * i for i in range(10)] + [160 + 16 * i for i in range(6)]
WF2 = A0 + 40
EX_OFF = 48 << 20; FX = FLAG_OFF + 196608
sEXW, sEXR, sFXW, sFXR = sAC + 4, sAC + 5, sAC + 6, sAC + 7
def g2_act(s, t): return f"buffer_load_dwordx4 {R(ASET[s % 16] + 4*t, 4)}, v{vL16}, {srdt(sWS)}, s{sAC+t} offen offset:{(s % 4)*1024} sc1 ;@a{s}"
def g2_aadv(s, t):
    if s % 4 != 3 or s == 35: return []
    return [f"s_add_u32 s{sAC+t}, s{sAC+t}, " + ("4096" if s != 27 else f"s{sACD}")]
def g2_dma(s, i): return [f"s_add_u32 m0, s{sREG}, {(s % RG) * 4096 + i * 1024}",
                          f"buffer_load_dwordx4 v{vDA+i}, {srdt(sWD if s < 28 else sWO)}, s{sW2} offen lds ;@e{s}"]
def g2_dadv(s): return [f"s_add_u32 s{sW2}, s{sW2}, 65536" if s != 27 else f"s_mov_b32 s{sW2}, s{sWO0}"]
PAIRS = [(s, h, q) for s in range(36 - NL) for h in (1, 0) for q in range(2)]
PAIRS += [(s, h, q) for h in (1, 0) for s in range(36 - NL, 36) for q in range(2)]
def g2_rd(i):
    s, h, q = PAIRS[i]
    return [f"ds_read_b64_tr_b16 {R(WF2 + 8*(i % 3) + 4*e + 2*k, 2)}, v{(vRA + 4 if h else vR2) + q} offset:{(s % RG)*4096 + e*8 + k*2048} ;@r{i}" for e in range(2) for k in range(2)]
def gemm2(pre, vm, streams):
    out = []; n = len(PAIRS); stream = []; carry = []
    for i, (s, h, q) in enumerate(PAIRS):
        fill = {g: [] for g in range(-1, 9)}
        fill[-1] = pre.get(i, []); fill[0] = []
        bar = i + 2 < n and PAIRS[i + 2][1:] == (1, 0) and PAIRS[i + 2][0] % 2 == 0
        if i + 2 < n:
            for k, x in enumerate(g2_rd(i + 2)): fill[((4, 5, 6, 7) if bar else (0, 1, 4, 5))[k]].append(x)
        if bar: fill[3] += [W(f"e{PAIRS[i+2][0] + 1}", f"r{i+1}"), "s_barrier"]
        for g in ((2,) if bar else (2, 6)):
            o = vm.get(i, [])
            if o:
                o = o.pop(0)
                if o[0]: fill[g - 1].append(o[0])
                fill[g].append(o[1]); fill[g] += o[2:3]; fill[g + 1] += o[3:]
        assert not vm.get(i), i
        if i + 1 < n: fill[7].append(W(f"r{i+1}", f"a{PAIRS[i+1][0]}"))
        mf = []
        for e in range(2):
            for t in ((2, 3, 0, 1) if s == 35 else range(4)):
                mf.append(M16(64*h + (t*4 + 2*q + e) * 4, WF2 + 8*(i % 3) + 4*e, ASET[s % 16] + 4*t, s == 0))
        first = 0
        if i in streams: assert not stream; first, stream = streams[i]
        out += weave2(mf, fill, stream, first=first)
    return out + stream

def fused(name):
    a = Asm()
    a(f"""s_cmp_ge_u32 s2, 256
    s_cbranch_scc0 {name}_go
    s_endpgm
    {name}_go:
    s_load_dwordx2 s[{sX}:{sX+1}], s[0:1], 0
    s_load_dwordx2 s[{sWS}:{sWS+1}], s[0:1], 72
    s_load_dwordx2 s[54:55], s[0:1], 8
    s_load_dwordx4 s[56:59], s[0:1], 32
    s_getpc_b64 s[{sCD}:{sCD+1}]
    f_base:
    v_lshrrev_b32 v1, 6, v0
    v_and_b32 v9, 15, v0
    v_lshlrev_b32 v{vPF}, 7, v9
    s_mov_b32 s{sCD+2}, f_last-f_base
    s_mov_b32 s{sCD+3}, 0x00020000
    v_lshl_add_u32 v{vPC}, v1, 11, v{vPF}
    v_readfirstlane_b32 s3, v1
    v_and_b32 v2, 63, v0""")
    if CPF & 1: a(f"buffer_load_dword v{vOST}, v{vPC}, {srdt(sCD)}, 0 offen")
    a(f"""v_lshlrev_b32 v{vL16}, 4, v2
    s_lshl_b32 s{sPF}, s2, 2
    s_mov_b32 s{sX+2}, {2048*2048}
    s_add_u32 s{sPF}, s{sPF}, s3
    s_mov_b32 s{sX+3}, s{sCD+3}
    s_lshl_b32 s45, s{sPF}, 12
    s_lshr_b32 s61, s2, 3
    s_and_b32 s62, s61, 3
    s_mov_b32 s70, {name}_lbA-f_base
    s_cmp_eq_u32 s62, 3
    s_cselect_b32 s70, {name}_lbC-f_base, s70
    s_mov_b32 s{sWS+2}, {WS_BYTES}
    s_mov_b32 s{sWS+3}, s{sCD+3}
    s_mov_b32 s47, {FO}
    s_and_b32 s60, s2, 7
    s_lshr_b32 s63, s61, 2
    s_mul_i32 s64, s60, 7
    s_lshl_b32 s65, s62, 1
    s_add_u32 s64, s64, s65
    s_lshl_b32 s65, s64, 7
    s_lshl_b32 s66, s60, 8
    s_waitcnt lgkmcnt(0)""")
    for i in range(4): a(f"buffer_load_dwordx4 v[{16+4*i}:{19+4*i}], v{vL16}, {srdt(sX)}, s45 offen offset:{1024*i} ;@lx{i//2}")
    a(f"buffer_load_dword v{vTOK}, off, {srdt(sWS)}, s47 sc1 ;@ep")
    if CPF & 1: a(f"buffer_load_dword v{vOST}, v{vPC}, {srdt(sCD)}, s70 offen")
    a(f"s_movk_i32 s67, 7168\ns_movk_i32 s68, 6144\ns_cmp_eq_u32 s62, 3\ns_cbranch_scc1 {name}_sC")
    a("s_lshl_b32 s70, s62, 7\ns_cmp_eq_u32 s62, 2\ns_cselect_b32 s70, 2176, s70\ns_add_u32 s70, s70, s66")
    srd(a, 4, 54, 1024*6144, "s70"); srd(a, 8, 56, 1024*7168, "s65"); srd(a, 12, 58, 1024*7168, "s65")
    a(f"s_add_u32 s65, s65, 128\ns_cmp_eq_u32 s3, 0\ns_cselect_b32 s71, s68, s67\ns_branch {name}_sJ\n{name}_sC:")
    for p, o in enumerate((4096, 4224, 2048)):
        a(f"s_add_u32 s70, s66, {o}"); srd(a, 4 + 4*p, 54, 1024*6144, "s70")
    a(f"s_mov_b32 s71, s68\n{name}_sJ:")
    a(f"""s_cmp_eq_u32 s3, 0
    s_cselect_b64 s[{sW1}:{sW1+1}], s[4:5], s[8:9]
    s_cselect_b64 s[{sW1+2}:{sW1+3}], s[6:7], s[10:11]
    s_cmp_ge_u32 s3, 2
    s_cselect_b64 s[{sW1}:{sW1+1}], s[12:13], s[{sW1}:{sW1+1}]
    s_cselect_b64 s[{sW1+2}:{sW1+3}], s[14:15], s[{sW1+2}:{sW1+3}]
    v_lshl_add_u32 v3, s63, 6, v2
    s_cmp_eq_u32 s3, 3
    s_cselect_b32 s70, 8, s63
    v_mul_u32_u24 v{TMP}, s71, v3
    s_lshl_b32 s71, s71, 9
    s_cmp_ge_u32 s70, {D1}
    v_mov_b32 v{TMP+2}, s71
    s_cbranch_scc1 {name}_w0
    buffer_load_dword v{vOST}, v{TMP}, {srdt(sW1)}, 0 offen ;@-
    v_add_u32 v{TMP}, v{TMP+2}, v{TMP}
    {name}_w0:""")
    srd(a, 16, 56, 1024*7168, "s65"); srd(a, 20, 58, 1024*7168, "s65")
    a(f"""s_bitcmp1_b32 s3, 0
    s_cselect_b64 s[{sW2_}:{sW2_+1}], s[20:21], s[16:17]
    s_mov_b64 s[{sW2_+2}:{sW2_+3}], s[18:19]
    s_lshr_b32 s70, s3, 1
    s_lshl1_add_u32 s70, s63, s70
    s_lshl_b32 s70, s70, 6
    s_{'sub' if REV else 'add'}_u32 s70, {960 if REV else 0}, s70
    v_add_u32 v3, s70, v2
    v_mul_u32_u24 v{TMP+1}, s67, v3
    s_lshl_b32 s{sM1}, s3, 10
    v_lshrrev_b32 v3, 3, v2
    v_lshl_add_u32 v3, v1, 3, v3
    v_bfe_u32 v4, v2, 4, 1
    v_and_b32 v5, 1, v1
    v_lshl_or_b32 v4, v5, 1, v4
    v_lshlrev_b32 v4, 1, v4
    v_and_b32 v5, 7, v2
    v_xor_b32 v4, v4, v5
    v_lshlrev_b32 v4, 4, v4
    v_mad_u32_u24 v{vGU}, v3, s67, v4
    v_mad_u32_u24 v{vQK}, v3, s68, v4
    s_lshl_b32 s69, s63, 4
    s_lshl_b32 s70, s3, 2
    s_add_u32 s69, s69, s70
    s_lshl_b32 s{sXN}, s69, 15
    s_add_u32 s{sXN+1}, s{sXN}, 0x8000
    s_add_u32 s{sXN+2}, s{sXN}, 0x10000
    s_add_u32 s{sXN+3}, s{sXN}, 0x18000
    s_mov_b32 s{sGU}, 0
    s_mov_b32 s{sQK}, 0
    s_lshl_b32 s47, s69, 8
    s_add_u32 s47, s47, {FL}""")
    def consts(b):
        b(f"""v_lshrrev_b32 v3, 4, v2
        v_bfe_u32 v4, v2, 2, 2
        v_lshl_add_u32 v5, v3, 3, v4
        v_lshlrev_b32 v5, 7, v5
        v_and_b32 v6, 3, v2
        v_lshl_add_u32 v5, v6, 3, v5
        v_bfe_u32 v7, v2, 3, 2""")
        for cb in range(4): b(f"v_xor_b32 v8, {cb}, v7\nv_lshl_add_u32 v{vRA+cb}, v8, 5, v5\nv_add_u32 v{vRA+4+cb}, {SLOT}, v{vRA+cb}")
        b(f"""s_mul_i32 s{sREG}, s3, {REG}
        v_lshrrev_b32 v5, 2, v2
        v_lshlrev_b32 v5, 7, v5
        v_lshl_add_u32 v5, v6, 4, v5
        s_and_b32 s70, s60, 1
        s_and_b32 s71, s3, 1
        s_lshl1_add_u32 s70, s70, s71
        s_mul_i32 s70, s70, {REG}
        v_add_u32 v5, s70, v5
        v_bfe_u32 v7, v2, 3, 1
        v_lshl_add_u32 v{vR2}, v7, 6, v5
        v_xor_b32 v8, 1, v7
        v_lshl_add_u32 v{vR2+1}, v8, 6, v5
        v_and_b32 v9, 15, v2
        v_lshlrev_b32 v5, 9, v3
        v_lshl_add_u32 v{vSTV}, v9, 4, v5
        v_and_b32 v10, 7, v2
        v_lshl_add_u32 v5, v10, 4, v5
        v_lshl_add_u32 v5, v7, 8, v5
        s_cmp_ge_u32 s62, 2
        s_cselect_b64 vcc, -1, 0
        s_cselect_b32 s70, 1, 2
        s_lshl_b32 s70, s70, 7
        v_cndmask_b32 v{vST0}, v{vSTV}, v5, vcc
        v_add_u32 v{vST1}, s70, v{vST0}
        v_mov_b32 v5, 0x7ffffff0
        v_cmp_eq_u32 vcc, 0, v2
        v_and_b32 v8, 31, v2
        s_nop 0
        v_cndmask_b32 v{vFL}, v5, v2, vcc
        v_lshlrev_b32 v{vPOLL}, {FSQ}, v8
        v_bfe_u32 v11, v2, 4, 1
        v_lshrrev_b32 v5, 3, v2
        v_lshlrev_b32 v8, 2, v11
        v_xor_b32 v8, v8, v10
        v_lshlrev_b32 v8, 4, v8
        v_lshl_add_u32 v{vDA}, v5, 11, v8
        v_add_u32 v{vDA+1}, 0x4000, v{vDA}
        v_add_u32 v{vDA+2}, 0x8000, v{vDA}
        v_add_u32 v{vDA+3}, 0xc000, v{vDA}
        v_lshlrev_b32 v5, 11, v9
        v_lshl_add_u32 v{vOA}, v3, 4, v5
        v_bfe_u32 v5, v2, 2, 1
        v_xor_b32 v5, v5, v11
        v_or_b32 v5, v5, v6
        v_mov_b32 v8, 0x3f803f80
        v_cmp_eq_u32 vcc, 0, v5""")
        b(f"""s_mul_i32 s{sH}, s69, {HO_T16}
        s_lshl_b32 s70, s64, 11
        s_add_u32 s{sH}, s{sH}, s70
        s_add_u32 s{sH}, s{sH}, {HO_OFF}
        v_cndmask_b32 v{vSEL}, 0, v8, vcc
        v_cndmask_b32 v{vSEL+1}, 0, v8, vcc
        v_cndmask_b32 v{vSEL+2}, 0, v8, vcc
        v_cndmask_b32 v{vSEL+3}, 0, v8, vcc
        s_lshl_b32 s{sQS}, s69, 10
        s_lshl_b32 s70, s60, 19
        s_add_u32 s{sQS}, s{sQS}, s70
        s_lshl_b32 s70, s62, 18
        s_add_u32 s70, s70, {Q_OFF}
        s_cmp_eq_u32 s62, 2
        s_cselect_b32 s70, {K_OFF + 2*131072}, s70
        s_cmp_eq_u32 s62, 3
        s_cselect_b32 s70, {K_OFF}, s70
        s_add_u32 s{sQS}, s{sQS}, s70
        s_lshl_b32 s{sFQP}, s60, 12
        s_add_u32 s{sFQP}, s{sFQP}, {FQ}
        s_lshl_b32 s70, s61, {FSQ}
        s_add_u32 s{sFQW}, s{sFQP}, s70
        s_lshl_b32 s54, s60, 2
        s_add_u32 s54, s54, s62
        s_lshr_b32 s55, s3, 1
        s_and_b32 s56, s3, 1
        s_lshl_b32 s57, s63, 1
        s_add_u32 s58, s57, s55
        s_lshl_b32 s58, s58, 10
        s_add_u32 s58, s58, s56
        s_lshl_b32 s59, s54, {FSH-2}
        s_add_u32 s58, s58, s59
        s_lshl_b32 s58, s58, 2
        s_add_u32 s{sFHW}, s58, {FH}
        s_add_u32 s57, s57, s56
        s_lshl_b32 s58, s57, 10
        s_add_u32 s58, s58, s55
        s_add_u32 s58, s58, s59
        s_lshl_b32 s58, s58, 2
        s_add_u32 s{sFOW}, s58, {FO}
        s_cmp_lt_u32 s62, 2
        s_cselect_b32 s{sSC}, {f2h(QSCALE)}, 1.0
        s_mov_b32 s{sSC+1}, s{sSC}
        s_lshl_b32 s58, s54, 17
        s_lshl_b32 s59, s57, 13
        s_add_u32 s59, s59, s58
        s_add_u32 s59, s59, {Q_OFF}
        s_lshl_b32 s69, s55, 12
        s_add_u32 s{sQ+1}, s59, s69
        s_xor_b32 s{sQ}, s{sQ+1}, 4096
        s_lshl_b32 s69, s55, 16
        s_add_u32 s58, s58, s69
        s_add_u32 s{sK}, s58, {K_OFF}
        s_add_u32 s{sV}, s58, {V_OFF}""")
    def layernorm(a):
        X, T, D, LB = 32, 64, 80, NS * SLOT
        a(f"""v_and_b32 v3, 7, v2
        v_lshlrev_b32 v4, 1, v1
        v_xor_b32 v4, v4, v3
        v_xor_b32 v5, 1, v4
        v_lshlrev_b32 v6, 7, v2
        v_add_u32 v6, {LB}, v6
        v_lshl_add_u32 v112, v4, 4, v6
        v_lshl_add_u32 v113, v5, 4, v6
        v_lshrrev_b32 v4, 3, v0
        v_and_b32 v5, 7, v4
        v_xor_b32 v5, v5, v3
        v_lshlrev_b32 v5, 4, v5
        v_lshl_add_u32 v5, v4, 7, v5
        v_add_u32 v114, {LB}, v5
        v_lshlrev_b32 v5, 4, v3
        v_lshl_add_u32 v115, v4, 8, v5
        v_add_u32 v116, 0x2000, v115
        v_add_u32 v117, 0x4000, v115
        v_add_u32 v118, 0x6000, v115
        s_lshr_b32 s71, s2, 1
        s_lshl_b32 s71, s71, 15
        s_and_b32 s45, s2, 1
        s_lshl_b32 s45, s45, 7
        s_add_u32 s71, s71, s45
        s_mov_b32 s45, 0xffff0000
        s_mov_b32 s{sT}, 0x9e3779b1""")
        for row in range(2):
            a(W(f"lx{row}")); a(f"f_lx{row}:")
            for j in range(8): a(f"v_lshlrev_b32 v{X+16*row+2*j}, 16, v{16+8*row+j}\nv_and_b32 v{X+16*row+2*j+1}, s45, v{16+8*row+j}")
            t = T + 8*row
            for j in range(0, 8, 2): a(f"v_pk_add_f32 {R(t+j,2)}, {R(X+16*row+j,2)}, {R(X+16*row+8+j,2)}")
            for st in (4, 2):
                for j in range(0, st, 2): a(f"v_pk_add_f32 {R(t+j,2)}, {R(t+j,2)}, {R(t+j+st,2)}")
            a(f"v_add_f32 v{t}, v{t}, v{t+1}")
        wave_allsum(a, [64, 72], [65, 73])
        a(f"v_mul_f32 v64, {f2h(1.0/1024)}, v64\nv_mul_f32 v72, {f2h(1.0/1024)}, v72")
        for row in range(2):
            for j in range(0, 16, 2): a(f"v_pk_add_f32 {R(D+16*row+j,2)}, {R(X+16*row+j,2)}, {R(64+8*row,2)} op_sel_hi:[1,0] neg_lo:[0,1] neg_hi:[0,1]")
            for j in range(0, 4, 2): a(f"v_pk_mul_f32 {R(66+8*row+j,2)}, {R(D+16*row+j,2)}, {R(D+16*row+j,2)}")
            for j in range(4, 16, 2): a(f"v_pk_fma_f32 {R(66+8*row+j%4,2)}, {R(D+16*row+j,2)}, {R(D+16*row+j,2)}, {R(66+8*row+j%4,2)}")
            a(f"v_add_f32 v{66+8*row}, v{66+8*row}, v{67+8*row}\nv_add_f32 v{68+8*row}, v{68+8*row}, v{69+8*row}\nv_add_f32 v{66+8*row}, v{66+8*row}, v{68+8*row}")
        wave_allsum(a, [66, 74], [67, 75])
        a(f"""v_mul_f32 v66, {f2h(1.0/1024)}, v66
        v_mul_f32 v74, {f2h(1.0/1024)}, v74
        v_cvt_pk_bf16_f32 v64, v64, v72
        v_cvt_pk_bf16_f32 v66, v66, v74
        v_and_b32 v72, s45, v64
        v_lshlrev_b32 v64, 16, v64
        v_and_b32 v74, s45, v66
        v_lshlrev_b32 v66, 16, v66
        v_add_f32 v66, {f2h(1e-5)}, v66
        v_add_f32 v74, {f2h(1e-5)}, v74
        v_cvt_pk_bf16_f32 v66, v66, v74
        v_and_b32 v74, s45, v66
        v_lshlrev_b32 v66, 16, v66
        v_sqrt_f32 v74, v74
        v_sqrt_f32 v66, v66
        s_nop 0
        v_cvt_pk_bf16_f32 v66, v66, v74
        v_and_b32 v74, s45, v66
        v_lshlrev_b32 v66, 16, v66
        v_rcp_f32 v74, v74
        v_rcp_f32 v66, v66""")
        for row in range(2):
            b = X + 16*row
            for j in range(0, 16, 2): a(f"v_pk_add_f32 {R(b+j,2)}, {R(b+j,2)}, {R(64+8*row,2)} op_sel_hi:[1,0] neg_lo:[0,1] neg_hi:[0,1]")
            for j in range(8): a(f"v_cvt_pk_bf16_f32 v{D+16*row+j}, v{b+2*j}, v{b+2*j+1}")
            for j in range(8): a(f"v_lshlrev_b32 v{b+2*j}, 16, v{D+16*row+j}\nv_and_b32 v{b+2*j+1}, s45, v{D+16*row+j}")
            for j in range(0, 16, 2): a(f"v_pk_mul_f32 {R(b+j,2)}, {R(b+j,2)}, {R(66+8*row,2)} op_sel_hi:[1,0]")
            for j in range(8): a(f"v_cvt_pk_bf16_f32 v{D+16*row+8+j}, v{b+2*j}, v{b+2*j+1}")
            a(f"ds_write_b128 v{112+row}, v[{D+16*row+8}:{D+16*row+11}]\nds_write_b128 v{112+row}, v[{D+16*row+12}:{D+16*row+15}] offset:8192 ;@lw")
        a(W("ep", "lw")); a("s_barrier")
        for i in range(4): a(f"ds_read_b128 v[{16+4*i}:{19+4*i}], v114 offset:{4096*i} ;@lr{i}")
        a(f"v_mul_lo_u32 v{vTOK}, v{vTOK}, s{sT}\nv_add_u32 v{vTOK}, 0x7f4a7c15, v{vTOK}")
        for i in range(4):
            a(W(f"lr{i}")); a(f"buffer_store_dwordx4 v[{16+4*i}:{19+4*i}], v{115+i}, {srdt(sWS)}, s71 offen sc1 ;@xst")
    def late():
        L = f"""s_lshl_b32 s{sOS}, s57, 1
        s_add_u32 s{sOS}, s{sOS}, s55
        s_mul_i32 s{sOS}, s{sOS}, {4*HO_T16}
        s_lshl_b32 s{sT}, s54, 10
        s_add_u32 s{sOS}, s{sOS}, s{sT}
        s_add_u32 s{sOS}, s{sOS}, {HO_OFF + 112*1024}
        s_add_u32 s{sOS+1}, s{sOS}, {2*HO_T16}
        s_lshr_b32 s10, s60, 1
        s_lshl_b32 s10, s10, 2
        s_lshr_b32 s11, s61, 3
        s_add_u32 s10, s10, s11
        s_lshl_b32 s{sFP}, s10, 12
        s_add_u32 s{sFP}, s{sFP}, {FH}
        s_and_b32 s11, s61, 7
        s_lshl_b32 s11, s11, 8
        s_and_b32 s13, s60, 1
        s_lshl_b32 s12, s10, 2
        s_add_u32 s12, s12, s3
        s_lshl_b32 s12, s12, 16
        s_add_u32 s12, s12, s11
        s_lshl_b32 s14, s13, 7
        s_add_u32 s{sRES}, s12, s14
        s_add_u32 s{sRES+1}, s{sRES}, 32768
        s_lshl_b32 s14, s55, 7
        s_add_u32 s11, s11, s14
        s_lshl1_add_u32 s13, s13, s56
        s_mul_i32 s{sW2}, s13, {28*65536}
        s_add_u32 s{sW2}, s{sW2}, s11
        s_lshl_b32 s{sWO0}, s13, 19
        s_add_u32 s{sWO0}, s{sWO0}, s11
        s_mul_i32 s{sACD}, s13, {20*1024}
        s_sub_u32 s{sACD}, {88*1024}, s{sACD}
        s_lshl1_add_u32 s10, s10, s55
        s_mul_i32 s10, s10, {4*HO_T16}
        s_mul_i32 s11, s13, {28*1024}
        s_add_u32 s10, s10, s11
        s_add_u32 s10, s10, {HO_OFF}
        s_mul_i32 s11, s56, {2*HO_T16}
        s_sub_u32 s12, {2*HO_T16}, s11
        s_add_u32 s{sAC}, s10, s11
        s_add_u32 s{sAC+1}, s{sAC}, {HO_T16}
        s_add_u32 s{sAC+2}, s10, s12
        s_add_u32 s{sAC+3}, s{sAC+2}, {HO_T16}
        s_lshl2_add_u32 s10, s2, s3
        s_lshl_b32 s11, s10, 12
        s_add_u32 s{sEXW}, s11, {EX_OFF}
        s_xor_b32 s{sEXR}, s{sEXW}, 16384
        s_lshl_b32 s11, s10, 7
        s_add_u32 s{sFXW}, s11, {FX}
        s_xor_b32 s{sFXR}, s{sFXW}, 512""".split("\n")
        L = [x.strip() for x in L]
        return L
    consts(a)
    a("v_and_b32 v3, 7, v2\nv_lshlrev_b32 v119, 7, v3\nv_bfe_u32 v3, v2, 3, 2\nv_lshl_add_u32 v119, v3, 2, v119")
    layernorm(a)
    a(f"s_lshl_b32 s45, s2, 5\ns_add_u32 s45, s45, s3\ns_lshl_b32 s45, s45, 2\ns_add_u32 s45, s45, {FL}\ns_lshl_b32 s{sPF}, s{sPF}, 11\ns_mov_b32 s{sT}, 0")
    a(f"s_and_b32 s71, s61, 3\ns_cmp_eq_u32 s71, 3\n{name}_la:")
    a(W("xst")); a(flag_store(45)); a(f"s_cbranch_scc1 {name}_lbC")
    pro = a.L
    bodies = {}; ool = {}
    for typ in "AC":
        b = Asm()
        fd = Feed(typ)
        def dmas(n):
            L = []
            for k in range(n): o = fd.pop(0, -1, 5); L.append([o[0], "s_nop 0"] + o[1:])
            return L
        b(f"{name}_lb{typ}:")
        b.ext(sum(dmas(E("PD2", 12)), []))
        b(f"""s_lshr_b32 s71, s61, 2
        s_cmp_eq_u32 s3, 3
        s_cselect_b32 s45, 0, 0x101
        s_lshl_b32 s45, s45, s71
        s_lshr_b32 s45, s45, {D1}
        s_add_u32 s71, s71, 16
        s_bitset1_b32 s45, s71
        s_and_b32 s71, s61, 3
        s_lshl_b32 s71, s71, 15
        s_add_u32 s71, s71, s{sXN}
        ;stamp 0
        s_branch {name}_pm{typ}
        {name}_pl{typ}:
        s_sleep {E("SLP", 2)}
        {name}_pm{typ}:
        buffer_load_dword v{vPD}, v119, {srdt(sWS)}, s47 offen sc1
        s_add_u32 s{sT}, s{sT}, 1
        s_cmp_lt_u32 s{sT}, 0x8000
        s_waitcnt vmcnt(0)
        v_cmp_ne_u32 vcc, v{vTOK}, v{vPD}
        s_cbranch_scc0 {name}_pk{typ}
        s_cbranch_vccnz {name}_pl{typ}
        {name}_pk{typ}:
        ;stamp 1""")
        xw = [[int(y) for y in x.split(":")] for x in os.environ.get("XW", "").split(",") if x]
        xev = {}
        for k, (h, e) in enumerate(xw):
            d = xw[k + 1][1] - e if k + 1 < len(xw) else 0
            xev[h] = [None, f"buffer_load_dword v{vOST}, v{vPD}, {srdt(sWS)}, s47 offen sc1"] + ([f"s_add_u32 s47, s47, {(d * 8192) & 0xffffffff}"] if d else [])
        if xw: b(f"v_lshlrev_b32 v{vPD}, 3, v{vL16}\ns_add_u32 s47, s71, {xw[0][1] * 8192}")
        if -1 in xev: b.ext(xev[-1][1:])
        for k in range(4 * E("PX", 4)):
            b.ext(fd.pop(0, 9, -1)[1:])
            if k == 7: b("s_barrier"); b.ext(g1_reads(0, 0) + g1_reads(0, 1))
        e_qkv, e_h = epi1(typ)
        def groups(L):
            G = [[]]
            for x in L:
                if G[-1] and any("buffer_store" in y for y in G[-1]) and cls(x) == "valu": G.append([])
                G[-1].append(x)
            return G if L else []
        gq, gh = groups(e_qkv), groups(e_h)
        NQ, NH = E("NQ" + typ, 6), E("NH", 7)
        plan = {16 + k: sum(gq[(k * len(gq)) // NQ:((k + 1) * len(gq)) // NQ], []) for k in range(NQ)}
        plan[16 + NQ - 1].append(";qdone")
        for k in range(NH): plan[16 + NQ + k] = sum(gh[(k * len(gh)) // NH:((k + 1) * len(gh)) // NH], [])
        stream = []; qdone = None; HP = E("HP", 56)
        for S in range(32):
            btags = []; bpost = []; post = []; vm = [[], []]; first = 0
            if qdone is not None and S == qdone + E("QD", 2): btags.append("qkv"); bpost.append(flag_store(sFQW))
            ev = {}
            for hf in range(2):
                h = 2 * S + hf; k = None
                if h in xev: vm[hf].append(xev[h])
                if E("NOEV", 0): continue
                if h % R1 == 0 and h // R1 + D1 < 16: k = h // R1; ld = [f"buffer_load_dword v{vOST}, v{TMP}, {srdt(sW1)}, 0 offen ;@-", f"v_add_u32 v{TMP}, v{TMP+2}, v{TMP}"]
                if k is not None: ev[48*hf + 11] = [f"s_bitcmp1_b32 s45, {k}", f"s_cbranch_scc0 {name}_w{typ}{k}"] + ld + [f"{name}_w{typ}{k}:"]
                if h >= B2 and (h - B2) % R2 == 0 and (h - B2) // R2 < 8:
                    k = 16 + (h - B2) // R2; assert h < 32
                    ev[48*hf + 27] = [f"s_bitcmp1_b32 s45, {k}", f"s_cbranch_scc0 {name}_w{typ}{k}", f"buffer_load_dword v{vOST}, v{TMP+1}, {srdt(sW2_)}, 0 offen ;@-", f"{name}_w{typ}{k}:"]
            post.append(f"{name}_{typ}{S}:")
            if CPF & 2 and S % 4 == 1:
                c = code_pf(f"{name}_{typ}{S+3}" if S < 29 else f"{name}_att"); post.append(c[0]); vm[0].append(c[1])
            if S == 14: stream += late()
            if S == 16: first = 3; post.append(";stamp 2")
            stream += plan.get(S, [])
            if S == HP // 2: vm[HP % 2].insert(0, poll_load(sFQP, 0, "pq"))
            if S == 30:
                assert not stream
                post += poll_check(f"{name}_pq{typ}", "pq")
                vm[0] += [at_ld(0, "K", 0), at_ld(0, "K", 1)] + [at_q(i) for i in range(6)]
                vm[1] += [at_ld(0, "V", 0), at_ld(0, "V", 1), at_q(6), at_q(7), at_ld(1, "K", 0), at_ld(1, "K", 1)]
            if S == 31:
                post += [f"s_add_u32 s{sK}, s{sK}, 4096"]
                vm[0] += [at_ld(1, "V", 0), at_ld(1, "V", 1) + f"\ns_add_u32 s{sV}, s{sV}, 4096"] + [at_ld(2, w, kk) for w in "KV" for kk in range(2)]
                stream += epi_h(0, 0, 4, (0,), 0); first = 35
            L = g1_step(typ, S, fd, post, vm, stream, first, btags, bpost, ev)
            if ";qdone" in L: qdone = S
            if os.environ.get("V"): print(typ, S, "x", fd.nx - 2*S, "d", fd.nd - S, "vm", sum(cls(x) == "vm" for x in L), "left", len(stream))
            if E("NOST", 0) and 17 < S < 30: L = [x for x in L if "buffer_store_dwordx4" not in x]
            if E("NOX", 0) and 17 < S < 30: L = [x.replace("s[24:27], s48", "s[24:27], s71").replace("s[24:27], s49", "s[24:27], s71").replace("s[24:27], s50", "s[24:27], s71").replace("s[24:27], s51", "s[24:27], s71") for x in L]
            b.ext(L)
        assert fd.nx == 64 and fd.nd == 32 and not fd.qx and not fd.qd
        b.ext(stream)
        if typ == "A": b(f"s_branch {name}_att")
        bodies[typ] = b.L
        o = Asm(); o(poll_slow(f"{name}_pq{typ}", sFQP, 0, 7)); ool[typ] = o.L
    t_ = Asm()
    t_(f"{name}_att:\n;stamp 3")
    t_(W("K0", "Q0")); t_.ext(at_qk(0))
    t_(f"v_lshrrev_b32 v{vPOLL}, 9, v{vL16}\nv_bfe_u32 v{vGU}, v{vL16}, 4, 5\nv_lshlrev_b32 v{vGU}, {FSH}, v{vGU}\nv_lshl_add_u32 v{vPOLL}, v{vPOLL}, 2, v{vGU}\ns_load_dwordx2 s[{sOUT}:{sOUT+1}], s[0:1], 56\ns_mov_b32 s{sOUT+2}, {2048*2048}\ns_mov_b32 s{sOUT+3}, 0x00020000")
    t_(f"s_load_dwordx2 s[{sWD}:{sWD+1}], s[0:1], 48\ns_load_dwordx2 s[{sWO}:{sWO+1}], s[0:1], 16\ns_mov_b32 s{sWD+2}, {3584*2048}\ns_mov_b32 s{sWO+2}, {1024*2048}")
    t_(f"""s_xor_b32 s10, s3, 2
    s_mul_i32 s10, s10, {REG}
    v_add_u32 v{vRA}, s10, v{vL16}
    v_add_u32 v{vRA+1}, s{sREG}, v{vL16}
    v_lshrrev_b32 v{vRA+3}, 1, v{vL16}
    v_add_u32 v{vRA+3}, 0x7000, v{vRA+3}
    v_add_u32 v{vRA+2}, s10, v{vRA+3}
    v_add_u32 v{vRA+3}, s{sREG}, v{vRA+3}""")
    t_(f"""v_bfe_u32 v{vGU}, v{vL16}, 8, 1
    v_lshrrev_b32 v{vQK}, 9, v{vL16}
    v_and_b32 v{vOST}, 0xf0, v{vL16}
    v_lshl_add_u32 v{vOST}, v{vQK}, 8, v{vOST}
    s_mov_b32 s10, {HO_T16}
    v_mad_u32_u24 v{vOST}, v{vGU}, s10, v{vOST}""")
    t_(f"""s_mov_b32 s10, {2*REG}
    s_bitcmp1_b32 s2, 0
    s_cselect_b32 s10, {-2*REG & 0xffffffff}, s10
    s_xor_b32 s11, s3, 1
    s_mul_i32 s11, s11, {REG}
    v_add_u32 v{vRA+4}, s10, v{vR2}
    v_add_u32 v{vRA+5}, s10, v{vR2+1}
    v_add_u32 v{vRA+6}, s11, v{vL16}""")
    t_.ext(epi_h(0, 0, 4, (1,), 0, rev=True))
    TF, TP, T0 = E("TF", 16), E("TP", 48), E("T0", 60)
    pl = []
    for s in range(8):
        if s < 7:
            for i in range(4): pl.append(g2_dma(s, i) + (g2_dadv(s) if i == 3 else []))
        for t in range(8): pl.append([None, g2_act(2*s + t//4, t % 4)] + g2_aadv(2*s + t//4, t % 4))
    npl = len(pl); T1 = E("T1", 120)
    pts = [int(x) for x in os.environ.get("PTS", "3,11,19,27,35").split(",")]
    for t in range(128):
        kt, qt = t // 4, t % 4
        mem = [[] for _ in range(6)]; pre = []
        if kt + 3 < 32:
            mem[0].append(at_ld(kt + 3, "KKVV"[qt], qt % 2))
            if kt % 2 == 0 and qt % 2 == 1: mem[4].append(f"s_add_u32 s{sK if qt == 1 else sV}, s{sK if qt == 1 else sV}, 4096")
        if t < 3: pre.append(W(f"Q{t+1}"))
        if t == 1: pre += [W("V0"), "s_waitcnt lgkmcnt(0)"]
        if qt == 3 and kt < 31: pre.append(W(f"K{kt+1}", f"V{kt+1}"))
        if t in pts:
            i = pts.index(t)
            mem[1].append(f"buffer_load_dword v{vGU}, v{vPF}, {srdt(sWD if i < 4 else sWO)}, s{sPF} offen")
            if i < 4: mem[5].append(f"s_add_u32 s{sPF}, s{sPF}, 0x200000" if i < 3 else f"s_and_b32 s{sPF}, s{sPF}, 0x1fffff")
        if t == TF: pre.append(W("hst")); mem[1].append(flag_store(sFHW))
        if t == TP: mem[1].append(poll_load(sFP, 0, "ph"))
        if t == T0 - 1: pre += poll_check(f"{name}_ph", "ph") + ["s_waitcnt lgkmcnt(0)", "s_barrier"]
        pre.append(f"{name}_t{t}:")
        if CPF & 2 and t % 32 == 10:
            c = code_pf(f"{name}_t{t+20}" if t < 106 else f"{name}_t126", vGU); pre.append(c[0]); mem[1].append(c[1])
        if t >= T0:
            want = min(npl, ((t - T0 + 1) * npl + (T1 - T0) - 1) // (T1 - T0))
            for sl, prev in ((2, 1), (3, 4)):
                if npl - len(pl) < want:
                    x = pl.pop(0)
                    if x[0]: mem[prev].append(x[0])
                    mem[sl].append(x[1]); mem[5] += x[2:]
        if t in (126, 127):
            for q in range(4): mem[[2, 4, 3, 5][q]].append(f"ds_write_b128 v{vRA}, {R(vO + 16*(t-126) + 4*q, 4)} offset:{32768 + 4096*(t-126) + 1024*q}")
        t_.ext(at_period(t, mem, pre))
    assert not pl
    pv = at_pv(127)
    t_(f"ds_write2_b32 v{vRA+2}, v{vLs}, v{vLs+4} offset0:0 offset1:1")
    t_.ext([pv[0], pv[2], pv[1], pv[3]])
    t_(";stamp 4"); t_(W("e1")); t_("s_waitcnt lgkmcnt(0)\ns_barrier")
    t_(f"ds_read_b64 {R(vLs,2)}, v{vRA+3} ;@xl")
    for i in range(8): t_(f"ds_read_b128 {R(vO+4*i,4)}, v{vRA+1} offset:{32768 + 1024*i} ;@xo{i}")
    t_(f"s_mov_b32 s10, {f2h(2.0**-64)}\ns_mov_b32 s11, {f2h(2.0**64)}")
    t_(W("xl"))
    for i in range(4):
        m, ld = g2_dma(7, i); t_(m)
        t_([f"v_add_f32 v{vLs+8}, v{vLs+8}, v{vLs}", f"v_add_f32 v{vLs+12}, v{vLs+12}, v{vLs+1}",
            f"v_cmp_le_f32 s[12:13], s10, v{vLs+8}", f"v_cmp_le_f32 s[14:15], s10, v{vLs+12}"][i])
        t_(ld)
    t_.ext(g2_dadv(7))
    t_(f"""v_cmp_ge_f32 s[16:17], s11, v{vLs+8}
    v_cmp_ge_f32 s[18:19], s11, v{vLs+12}""")
    for i in range(8):
        t_(W(f"xo{i}"))
        for r in (0, 2): t_(f"v_pk_add_f32 {R(vO+32+4*i+r,2)}, {R(vO+32+4*i+r,2)}, {R(vO+4*i+r,2)}")
    t_(f"""s_and_b64 s[12:13], s[12:13], s[14:15]
    s_and_b64 s[16:17], s[16:17], s[18:19]
    s_and_b64 s[12:13], s[12:13], s[16:17]
    s_cmp_eq_u64 s[12:13], -1
    s_cbranch_scc0 {name}_slow
    {name}_fin:
    v_rcp_f32 v{vLs+8}, v{vLs+8}
    v_rcp_f32 v{vLs+12}, v{vLs+12}""")
    t_.ext(g2_rd(0) + g2_rd(1))
    for qt in range(2):
        o = vO + 32 + 16 * qt
        for i in range(0, 16, 2): t_(f"v_pk_mul_f32 {R(o+i,2)}, {R(o+i,2)}, {R(vLs+8+4*qt,2)} op_sel_hi:[1,0]")
        for h in range(2):
            d = vP + 8 * qt + 4 * h
            idx = [4*h, 4*h+1, 4*h+2, 4*h+3, 8+4*h, 9+4*h, 10+4*h, 11+4*h]
            for j in range(4): t_(f"v_cvt_pk_bf16_f32 v{d+j}, v{o+idx[2*j]}, v{o+idx[2*j+1]}")
            t_(f"buffer_store_dwordx4 {R(d,4)}, v{vOST}, {srdt(sWS)}, s{sOS+qt} offen offset:{512*h} sc1 ;@ost")
    t_(";stamp 5")
    XR, XF, Y = 176, 96, 160
    SO, SP2, SC2 = E("SO", 3), E("SP2", 12), E("SC2", 16)
    pre = {0: [W("r0", "a0")]}; vm = {}; streams = {}
    aq = [[None, g2_act(s, t)] + g2_aadv(s, t) for s in range(16, 36) for t in range(4)]; na = 0
    for s in range(28):
        ex = []; p = pre.setdefault(4*s, [])
        if s == SO: p.append(W("ost")); ex.append([None, flag_store(sFOW), f"s_add_u32 s{sFP}, s{sFP}, {FO - FH}"])
        p.append(f"{name}_g{s}:")
        if CPF & 2 and s in (2, 14): c = code_pf(f"{name}_g{s+11}", vGU); ex.append(c)
        if s == SP2: ex.append([None, poll_load(sFP, 0, "po")])
        if s == SC2: p += poll_check(f"{name}_po", "po")
        dm = [g2_dma(s + 8, i) + (g2_dadv(s + 8) if i == 3 and s < 27 else []) for i in range(4)]
        ns = 7 if s % 2 else 8
        want = -(-48 * s // (SC2 - 1)) if s < SC2 else 48 - (-32 * (s - SC2 + 1) // (E("AE", 27) - SC2))
        while len(ex) < ns - 4 and na < min(want, 80, 4 * s): ex.append(aq[na]); na += 1
        ops = []
        for k in range(4): ops += [dm[k]] + ex[k:k+1]
        sl = [4*s + k for k in range(4) for r in range(1 if s % 2 and k == 2 else 2)]
        for k, o in enumerate(ops): vm.setdefault(sl[(k * len(sl)) // len(ops)], []).append(o)
    assert na == 80
    i1 = 4 * (36 - NL) + 2 * NL; XB = 6 * 4096
    for i in range(4): vm.setdefault(114 + i, []).append([None, f"buffer_load_dwordx4 {R(XR+4*i,4)}, v{vOA}, {srdt(sX)}, s{sRES + i//2} offen offset:{64*(i%2)} ;@xr"])
    pre.setdefault(i1, []).append(f"{name}_own:")
    L = [f"ds_write_b128 v{vRA+6}, {R(96+4*k,4)} offset:{XB + 1024*k} ;@sw" for k in (0, 1, 4, 5, 2, 6, 3, 7)] + [W("sw"), "s_barrier"]
    L += [f"ds_read_b128 {R(96+4*k,4)}, v{vRA+1} offset:{XB + 1024*k} ;@sr{k}" for k in range(8)]
    for i in range(4):
        L.append(W(f"sr{2*i+1}"))
        L += [f"v_add_f32 v{64+8*i+r}, v{64+8*i+r}, v{96+8*i+r}" for r in range(8)]
        L += [f"v_cvt_pk_bf16_f32 v{64+8*i+r}, v{64+8*i+2*r}, v{64+8*i+2*r+1}" for r in range(4)]
        L.append(f"buffer_store_dwordx4 {R(64+8*i,4)}, v{vL16}, {srdt(sWS)}, s{sEXW} offen offset:{1024*i} sc1 ;@xs")
    L += ["s_barrier", W("xr"), "s_mov_b32 s10, 0xffff0000"]
    for i in range(16): L += [f"v_lshlrev_b32 v{XF+2*i}, 16, v{XR+i}", f"v_and_b32 v{XF+2*i+1}, s10, v{XR+i}"]
    streams[i1] = (2, L)
    n = len(PAIRS)
    vm[n - 1] = [[None, f"ds_write_b128 v{vRA+6}, {R(32+4*k,4)} offset:{XB + 1024*k}"] for k in (0, 4)]
    streams[n - 1] = (3, [f"ds_write_b128 v{vRA+6}, {R(32+4*k,4)} offset:{XB + 1024*k}" for k in (1, 5)])
    FP = n - E("FXP", 1)
    if FP < n: pre.setdefault(FP, []).extend([W("xs"), flag_store(sFXW)])
    t_.ext(gemm2(pre, vm, streams))
    if FP == n: t_(W("xs")); t_(flag_store(sFXW))
    for k in (2, 6, 3, 7):
        if k == 3: t_(f"s_mov_b32 s{sT}, 0\ns_nop 0")
        t_(f"ds_write_b128 v{vRA+6}, {R(32+4*k,4)} offset:{XB + 1024*k}")
    t_(f";stamp 6\ns_waitcnt lgkmcnt(0)\ns_barrier")
    for k in range(8): t_(f"ds_read_b128 {R(32+4*k,4)}, v{vRA+1} offset:{XB + 1024*k} ;@y{k}")
    t_(f"buffer_load_dword v{vPD}, off, {srdt(sWS)}, s{sFXR} sc1")
    for i in range(0, 32, 2): t_(f"v_pk_add_f32 {R(i,2)}, {R(i,2)}, {R(XF+i,2)}")
    for k in range(8):
        t_(W(f"y{k}"))
        for r in (0, 2): t_(f"v_pk_add_f32 {R(4*k+r,2)}, {R(4*k+r,2)}, {R(32+4*k+r,2)}")
    t_(f"""s_branch {name}_x1
    {name}_x0:
    buffer_load_dword v{vPD}, off, {srdt(sWS)}, s{sFXR} sc1
    {name}_x1:
    s_add_u32 s{sT}, s{sT}, 1
    s_cmp_lt_u32 s{sT}, 0x8000
    s_waitcnt vmcnt(0)
    v_cmp_ne_u32 vcc, v{vTOK}, v{vPD}
    s_cbranch_scc0 {name}_x2
    s_cbranch_vccnz {name}_x0
    {name}_x2:""")
    for i in range(4): t_(f"buffer_load_dwordx4 {R(Y+4*i,4)}, v{vL16}, {srdt(sWS)}, s{sEXR} offen offset:{1024*i} sc1 ;@z{i}")
    for i in range(4):
        t_(W(f"z{i}"))
        for r in range(4): t_(f"v_lshlrev_b32 v{32+2*r}, 16, v{Y+4*i+r}\nv_and_b32 v{33+2*r}, s10, v{Y+4*i+r}")
        for r in range(0, 8, 2): t_(f"v_pk_add_f32 {R(8*i+r,2)}, {R(8*i+r,2)}, {R(32+r,2)}")
        for r in range(4): t_(f"v_cvt_pk_bf16_f32 v{8*i+r}, v{8*i+2*r}, v{8*i+2*r+1}")
        t_(f"buffer_store_dwordx4 {R(8*i,4)}, v{vOA}, {srdt(sOUT)}, s{sRES + i//2} offen offset:{64*(i%2)}")
    t_(f"{name}_end:\ns_endpgm")
    tail = t_.L
    e = Asm()
    e(poll_slow(f"{name}_ph", sFP, 0, 8)); e(poll_slow(f"{name}_po", sFP, 0, 9))
    M = vO
    kv0 = f"s_and_b32 s{sK}, s{sK}, 0xfffe0000\ns_add_u32 s{sV}, s{sK}, {V_OFF - K_OFF}\ns_mov_b32 s10, 64"
    e(f"{name}_slow:\ns_sub_u32 s{sK}, s{sK}, 4096\n{kv0}\nv_mov_b32 v{M}, 0xff800000\nv_mov_b32 v{M+1}, 0xff800000\n{name}_slow1:")
    e(at_ld(0, "K", 0)); e(at_ld(0, "K", 1))
    e(f"s_add_u32 s{sK}, s{sK}, 2048\ns_sub_u32 s10, s10, 1\ns_waitcnt vmcnt(0)")
    e.ext(at_qk(2) + at_qk(3)); e("s_nop 7\ns_nop 3")
    for qt in range(2):
        for i in range(0, 16, 2): e(f"v_max3_f32 v{M+qt}, v{M+qt}, v{vS+16*qt+i}, v{vS+16*qt+i+1}")
    e(f"""s_cmp_lg_u32 s10, 0
    s_cbranch_scc1 {name}_slow1
    v_mov_b32 v{M+2}, v{M}
    v_mov_b32 v{M+3}, v{M+1}
    s_sub_u32 s{sK}, s{sK}, 4096
    {kv0}
    v_permlane32_swap_b32 v{M}, v{M+2}
    v_permlane32_swap_b32 v{M+1}, v{M+3}
    v_max_f32 v{M}, v{M}, v{M+2}
    v_max_f32 v{M+1}, v{M+1}, v{M+3}""")
    for i in range(32): e(f"v_mov_b32 v{vO+32+i}, 0")
    for i in range(8): e(f"v_mov_b32 v{vLs+8+i}, 0")
    e(f"{name}_slow2:")
    for w in "KV": e(at_ld(0, w, 0)); e(at_ld(0, w, 1))
    e(f"s_add_u32 s{sK}, s{sK}, 2048\ns_add_u32 s{sV}, s{sV}, 2048\ns_sub_u32 s10, s10, 1\ns_waitcnt vmcnt(0)")
    e.ext(at_qk(2) + at_qk(3)); e("s_nop 7\ns_nop 3")
    for qt in range(2):
        s = vS + 16 * qt; p = vP + 8 * qt
        for i in range(16): e(f"v_sub_f32 v{s+i}, v{s+i}, v{M+qt}")
        for i in range(16): e(f"v_exp_f32 v{s+i}, v{s+i}")
        e("s_nop 0")
        for i in range(8): e(f"v_cvt_pk_bf16_f32 v{p+i}, v{s+2*i}, v{s+2*i+1}")
    e("s_nop 1")
    e.ext(at_pv(2) + at_pv(3))
    e(f"s_cmp_lg_u32 s10, 0\ns_cbranch_scc1 {name}_slow2\ns_nop 7\ns_nop 3\ns_branch {name}_fin\nf_last:")
    res = {}
    for typ in "AC": res[typ] = resolve(pro + bodies[typ] + tail)
    def part(typ, lo, L): return emit(L, {i - lo: v for i, v in res[typ].items()})
    nA, nC = len(pro) + len(bodies["A"]), len(pro) + len(bodies["C"])
    rt = {i - nA: mergew(v, res["C"][i - nA + nC]) for i, v in res["A"].items() if i >= nA}
    out = Asm()
    out.L = emit(pro, res['A']) + part("A", len(pro), bodies["A"]) + ool["A"] + ool["C"] + part("C", len(pro), bodies["C"]) + emit(tail, rt) + emit(e.L, {})
    return out, dict(nm=name, vgpr=512, accum=256, lds=163840, grid=256, block=256)
```

```python
from asmlib import *
from sched import *
from k01 import wave_allsum, WS_BYTES, HO_OFF, HO_T16, Q_OFF, K_OFF, V_OFF, QSCALE
import os
E = lambda k, d: int(os.environ.get(k, d))
FLAG_OFF = 40 << 20
FQ, FL, FH, FO = FLAG_OFF, FLAG_OFF + 32768, FLAG_OFF + 65536, FLAG_OFF + 131072
A0 = 256
FSQ, FSH = E('FSQ', 5), E('FSH', 4)
vL16, vGU, vQK, vRA = 128, 129, 130, 131
vST0, vST1, vSTV, vPF, vFL, vTOK, vPOLL, vOST = 139, 140, 141, 142, 143, 144, 145, 146
vDA, vR2, vOA, vPD = 147, 151, 153, 154
vPC = 155
vSEL = 156
sCD = 36
sW1, sW2_ = 32, 28
sWS, sWD, sWO, sX, sOUT = 24, 28, 32, 40, 20
sGU, sQK, sXN = 44, 46, 48
sM1, sREG, sAC, sW2, sK, sV, sQ, sH, sQS, sT = 52, 53, 54, 62, 63, 64, 65, 67, 68, 69
sSC = 70
sFQW, sFQP, sFHW, sFOW, sFP, sPF = 72, 73, 74, 75, 76, 77
sOS, sRES, sWO0, sACD = 4, 6, 8, 9
def srdt(d): return f"s[{d}:{d+3}]"
def M16(d, x, y, z=False): return f"v_mfma_f32_16x16x32_bf16 {R(d,4)}, {R(x,4)}, {R(y,4)}, " + ("0" if z else R(d, 4))
def M32(d, x, y, z=False): return f"v_mfma_f32_32x32x16_bf16 {R(d,16)}, {R(x,4)}, {R(y,4)}, " + ("0" if z else R(d, 16))
CPF = E("CPF", 7)
def code_pf(lbl, d=vOST): return [f"s_mov_b32 s{sT}, {lbl}-f_base", f"buffer_load_dword v{d}, v{vPC}, {srdt(sCD)}, s{sT} offen"]
def flag_store(s): return f"buffer_store_dword v{vTOK}, v{vFL}, {srdt(sWS)}, s{s} offen sc1"
def poll_load(s, off, tag): return f"buffer_load_dword v{vPD}, v{vPOLL}, {srdt(sWS)}, s{s} offen offset:{off} sc1 ;@{tag}"
def poll_check(lbl, tag): return [W(tag), f"v_cmp_ne_u32 vcc, v{vTOK}, v{vPD}", f"s_cbranch_vccnz {lbl}", f"{lbl}_back:"]
def poll_slow(lbl, s, off, st):
    return f"""{lbl}:
    s_mov_b32 s{sT}, 0
    {lbl}_1:
    s_sleep 1
    buffer_load_dword v{vPD}, v{vPOLL}, {srdt(sWS)}, s{s} offen offset:{off} sc1
    s_add_u32 s{sT}, s{sT}, 1
    s_waitcnt vmcnt(0)
    v_cmp_ne_u32 vcc, v{vTOK}, v{vPD}
    s_cmp_lt_u32 s{sT}, 0x8000
    s_cbranch_scc0 {lbl}_back
    s_cbranch_vccnz {lbl}_1
    s_branch {lbl}_back"""

SLOT = 24576; NS = E("NS", 6); REV = E("REV", 1); KEEP = E("KEEP", 7)
WF = 192; TMP = 216
PSET = [A0 + 192, A0 + 208, A0 + 224, A0 + 240, 160, 176, 240]
YSET = [16 * i for i in range(8)]
ORD2 = [0, 4, 2, 6]
def npair(S): return 12 if S < 16 else 8
def pair0(S): return 12 * S if S < 16 else 192 + 8 * (S - 16)
def pairdef(S, i):
    if S < 16: return [(i, 0), (i, 1)]
    if S == 31: return [([0, 1, 4, 5, 2, 3, 6, 7][i], 0), ([0, 1, 4, 5, 2, 3, 6, 7][i], 1)]
    return [(ORD2[i % 4], i // 4), (ORD2[i % 4] + 1, i // 4)]
def g1_reads(S, i):
    gp = pair0(S) + i; d = WF + 8 * (gp % 3); L = []
    for e, (f, kk) in enumerate(pairdef(S, i)):
        for q in range(2):
            L.append(f"ds_read_b64_tr_b16 {R(d+4*e+2*q,2)}, v{vRA + 4*(S % 2) + f % 4} offset:{(f // 4)*8192 + kk*4096 + q*512} ;@w{gp}")
    return L
def g1_dma(typ, S):
    L = []
    for kk in range(2):
        for p in range(3 if S < 16 else 2):
            isq = S < 16 and (typ == "C" or p == 0)
            L.append([f"s_add_u32 m0, s{sM1}, {(S % NS) * SLOT + p * 8192 + kk * 4096}",
                      f"buffer_load_dwordx4 v{vQK if isq else vGU}, {srdt(4 + 4*p if S < 16 else 16 + 4*p)}, s{sQK if isq else sGU} offen lds ;@d{S}"])
        if S == 15 and kk == 1: L[-1].append(f"s_mov_b32 s{sGU}, {31*32*7168 if REV else 0}"); continue
        if S >= 16 or typ == "A": L[-1].append(f"s_{'sub' if REV and S >= 16 else 'add'}_u32 s{sGU}, s{sGU}, {32*7168}")
        if S < 16: L[-1].append(f"s_add_u32 s{sQK}, s{sQK}, {32*6144}")
    return L
XSC = " sc1"
D1, R1, B2, R2, LEAD = E("D1", 4), E("R1", 1), E("B2", 12), E("R2", 2), E("LEAD", 3)
class XAlloc:
    def __init__(s): s.reg = {}; s.busy = {r: 0 for r in PSET + YSET}
    @staticmethod
    def need(n): return n & ~1 if (n < 32 or n >= 62) else n
    @staticmethod
    def rel(n): return (n | 1) + 1 if (n < 32 or n >= 62) else n + 1
    def take(s, n, now):
        kept = 32 - KEEP <= n < 32
        for r in (YSET + PSET if n < 32 - KEEP else PSET):
            if s.busy[r] <= now:
                s.busy[r] = s.rel(63 - n if kept else n); s.reg[n] = r
                if kept: s.reg[63 - n] = r
                return True
        return False
    @staticmethod
    def kb(n): return n if n < 32 else (63 - n if REV else n - 32)
    @staticmethod
    def tag(n): return f"x{63 - n if 32 <= n < 32 + KEEP else n}"
    def loads(s, n):
        L = [[None, f"buffer_load_dwordx4 {R(s.reg[n] + 4*tt, 4)}, v{vL16}, {srdt(sWS)}, s{sXN+tt} offen offset:{(s.kb(n) % 4)*1024}{XSC} ;@x{n}"] for tt in range(4)]
        if n < 63:
            d = s.kb(n + 1 + (KEEP if n == 31 else 0)) // 4 - s.kb(n) // 4
            for tt in range(4):
                if d: L[tt].append(f"s_{'add' if d > 0 else 'sub'}_u32 s{sXN+tt}, s{sXN+tt}, {4096*abs(d)}")
        return L
class Feed:
    def __init__(s, typ): s.typ = typ; s.x = XAlloc(); s.nx = 0; s.nd = 0; s.qx = []; s.qd = []
    def pop(s, h, lax, lad):
        S = h // 2
        if not s.qx and s.nx < 64 and s.x.need(s.nx) - h <= lax and s.x.take(s.nx, h): s.qx = s.x.loads(s.nx); s.lx = s.nx; s.nx += 1 + (KEEP if s.nx == 31 else 0)
        if not s.qd and s.nd < 32 and s.nd - S <= min(lad, NS - 1): s.qd = g1_dma(s.typ, s.nd); s.nd += 1
        if s.qx and (not s.qd or s.x.need(s.lx) < 2 * (s.nd - 1) - 0.5): return s.qx.pop(0)
        if s.qd: return s.qd.pop(0)
        return None
def g1_step(typ, S, fd, pre, vm, stream, first, btags, bpost, ev):
    n = npair(S); mf = []; fill = {g: [] for g in range(-1, 8 * n)}
    for i in range(n):
        r = g1_reads(S, i + 2) if i + 2 < n else (g1_reads(S + 1, i + 2 - n) if S < 31 else [])
        for q, x in enumerate(r): fill[8*i + ((4, 5, 6, 7) if i == n - 2 else (0, 1, 4, 5))[q]].append(x)
    if S < 31: fill[8*(n-2) + 3] += [W(f"d{S+1}", f"w{pair0(S) + n - 1}", *btags), "s_barrier"]
    for x in bpost: fill[8*(n-1) + 2].append(x)
    cap = E("CAP1", 10) if S < 16 else E("CAP2", 7)
    for hf in range(2):
        h = 2 * S + hf
        slots = [8*i + q for i in range(hf * n // 2, (hf + 1) * n // 2) for q in (2, 6) if (i, q) != (n - 2, 6) and not (bpost and (i, q) == (n - 1, 2))]
        ops = [x if isinstance(x, list) else [None, x] for x in vm[hf]]
        while len(ops) < min(cap, len(slots)):
            o = fd.pop(h, E("LAX1", 6) if S < 16 else E("LAX2", 6), min(E("LAD", 5), max(D1 - 1, D1 + (h - LEAD) // R1) - S))
            if o is None: break
            ops.append(o)
        assert len(ops) <= len(slots)
        for k, o in enumerate(ops):
            g = slots[(k * len(slots)) // len(ops)]
            if o[0]: fill[g - 1].append(o[0])
            fill[g].append(o[1])
            if o[2:]: fill[g].append(o[2]); fill[g + 1] += o[3:]
    if 1 <= S < 31:
        dl = (((S + 1) % NS) - ((S - 1) % NS)) * SLOT
        for q in range(4): fill[(0, 4, 8, 12)[q]].append(f"v_add_u32 v{vRA + 4*((S+1) % 2) + q}, 0x{dl & 0xffffffff:x}, v{vRA + 4*((S+1) % 2) + q}")
    for i in range(-1, n - 1):
        need = sorted({fd.x.tag(2*S + kk) for f, kk in pairdef(S, i + 1)})
        fill[8*i + 7].append(W(f"w{pair0(S) + i + 1}", *need))
    fill[-1] += pre
    for g, x in ev.items(): fill[g] += x
    for i in range(n):
        w = WF + 8 * ((pair0(S) + i) % 3); pd = pairdef(S, i)
        for tt, e in ([(q // 2, q % 2) for q in range(8)] if pd[0][0] == pd[1][0] else [(q % 4, q // 4) for q in range(8)]):
            f, kk = pd[e]
            x = fd.x.reg[2*S + kk] + 4 * tt
            c = (A0 if S < 16 else 0) + (f * 4 + tt) * 4
            z = S % 16 == 0 and kk == 0
            mf.append(M16(c, x, w + 4*e, z) if (typ == "C" and S < 16 and f < 8) else M16(c, w + 4*e, x, z))
    return weave2(mf, fill, stream, first=first)

class Tmp:
    n = 0
    @classmethod
    def get(c): c.n += 1; return TMP + 16 + 4 * (c.n % 2)
def pack(srcs, mul, voff, soff, off, tag, pk=False):
    t = TMP; o = Tmp.get(); L = []
    def get(idx, base):
        if idx[0] < A0: return idx
        for j, i in enumerate(idx): L.append(f"v_accvgpr_read_b32 v{base+j}, {R(i)}")
        return [base + j for j in range(8)]
    g = get(srcs[:8], t)
    if mul == "gu":
        u = get(srcs[8:], t + 8)
        if pk:
            for j in range(0, 8, 2): L.append(f"v_pk_mul_f32 {R(t+j,2)}, {R(g[j],2)}, {R(u[j],2)}")
        else:
            for j in range(8): L.append(f"v_mul_f32 v{t+j}, v{g[j]}, v{u[j]}")
        g = [t + j for j in range(8)]
    elif mul:
        for j in range(8): L.append(f"v_mul_f32 v{t+j}, s{sSC}, v{g[j]}")
    for j in range(4): L.append(f"v_cvt_pk_bf16_f32 v{o+j}, v{g[2*j]}, v{g[2*j+1]}")
    L.append(f"buffer_store_dwordx4 {R(o,4)}, v{voff}, {srdt(sWS)}, s{soff} offen offset:{off} sc1 ;@{tag}")
    return L
def quad(base, f0, tt): return [base + ((f0 + e) * 4 + tt) * 4 + r for e in range(2) for r in range(4)]
def epi_qk(f0, mul):
    L = []
    for hh in range(2):
        for tt in range(4): L += pack(quad(A0, f0 + 2*hh, tt), mul, vST0 + tt % 2, sQS, (tt // 2) * 2048, "qkv")
        if hh == 0: L.append(f"s_add_u32 s{sQS}, s{sQS}, 131072")
    return L
def epi_h(base, fg, fu, js, off0, rev=False):
    L = []
    for n in range(4):
        tt = 3 - n if rev else n
        for j in js: L += pack(quad(base, fg + 2*j, tt) + quad(base, fu + 2*j, tt), "gu", vL16, sH, off0 + j * 1024, "hst", rev)
        if n < 3: L.append(f"s_{'sub' if rev else 'add'}_u32 s{sH}, s{sH}, {HO_T16}")
    return L
def epi1(typ):
    if typ == "A":
        return epi_qk(0, True), epi_h(A0, 4, 8, (0, 1), 0) + [f"s_sub_u32 s{sH}, s{sH}, {3*HO_T16 - 2048}"]
    L = epi_qk(8, False) + [f"s_add_u32 s{sQS}, s{sQS}, {V_OFF - K_OFF - 131072}"]
    for hh in range(4):
        for e in range(2):
            for t2 in range(2):
                L += pack([A0 + ((2*hh + e) * 4 + 2*t2 + b) * 4 + r for b in range(2) for r in range(4)], None, vSTV, sQS, t2 * 2048 + e * 256, "qkv")
        if hh < 3: L.append(f"s_add_u32 s{sQS}, s{sQS}, 131072")
    return L, []

aQ, aK, aV = A0, A0 + 32, A0 + 64
vS, vP, vO, vLs = 0, 32, 48, 112
def at_qk(t):
    s = vS + 16 * (t % 2); k = aK + 8 * ((t // 4) % 4); q = aQ + 8 * (t % 4)
    return [M32(s, k, q, True), M32(s, k + 4, q + 4)]
def at_pv(t, z=False):
    p = vP + 8 * (t % 2); v = aV + 8 * ((t // 4) % 4); o = vO + 16 * (t % 4); l = vLs + 4 * (t % 4)
    return [M32(o, v, p, z), M32(o, v + 4, p + 4), M16(l, vSEL, p, z), M16(l, vSEL, p + 4)]
def at_ld(kt, w, kk, off=None):
    d = (aK if w == "K" else aV) + 8 * (kt % 4) + 4 * kk
    if off is None: off = (kt % 2) * 2048
    return f"buffer_load_dwordx4 {R(d,4)}, v{vL16}, {srdt(sWS)}, s{sK if w == 'K' else sV} offen offset:{off + kk*1024} sc1 ;@{w}{kt}"
def at_q(i): return f"buffer_load_dwordx4 {R(aQ+4*i,4)}, v{vL16}, {srdt(sWS)}, s{sQ + i//4} offen offset:{(i%4)*1024} sc1 ;@Q{i//2}"
def at_period(t, mem, pre):
    s = vS + 16 * (t % 2); p = vP + 8 * (t % 2)
    Ex = [f"v_exp_f32 v{s+i}, v{s+i}" for i in range(16)]
    C = [f"v_cvt_pk_bf16_f32 v{p+i}, v{s+2*i}, v{s+2*i+1}" for i in range(8)]
    q = at_qk(t + 1) if t < 127 else [None, None]
    v = at_pv(t - 1, t <= 4) if t > 0 else [None] * 4
    mem = mem + [[]] * (6 - len(mem))
    L = list(pre)
    L += [q[0]] + mem[0] + Ex[0:4]
    L += [q[1]] + mem[1] + [Ex[4], C[0], Ex[5], C[1], Ex[6]]
    L += [v[0]] + mem[2] + [Ex[7], C[2], Ex[8], Ex[9], C[3]]
    L += [v[2]] + mem[4] + [Ex[10], Ex[11], C[4]]
    L += [v[1]] + mem[3] + [Ex[12], Ex[13], C[5], Ex[14], Ex[15]]
    L += [v[3]] + mem[5] + [C[6], C[7]]
    return [x for x in L if x]

REG = 40960; RG = 10; NL = E("NL", 8)
ASET = [A0 + 96 + 16 * i for i in range(10)] + [160 + 16 * i for i in range(6)]
WF2 = A0 + 40
EX_OFF = 48 << 20; FX = FLAG_OFF + 196608
sEXW, sEXR, sFXW, sFXR = sAC + 4, sAC + 5, sAC + 6, sAC + 7
def g2_act(s, t): return f"buffer_load_dwordx4 {R(ASET[s % 16] + 4*t, 4)}, v{vL16}, {srdt(sWS)}, s{sAC+t} offen offset:{(s % 4)*1024} sc1 ;@a{s}"
def g2_aadv(s, t):
    if s % 4 != 3 or s == 35: return []
    return [f"s_add_u32 s{sAC+t}, s{sAC+t}, " + ("4096" if s != 27 else f"s{sACD}")]
def g2_dma(s, i): return [f"s_add_u32 m0, s{sREG}, {(s % RG) * 4096 + i * 1024}",
                          f"buffer_load_dwordx4 v{vDA+i}, {srdt(sWD if s < 28 else sWO)}, s{sW2} offen lds ;@e{s}"]
def g2_dadv(s): return [f"s_add_u32 s{sW2}, s{sW2}, 65536" if s != 27 else f"s_mov_b32 s{sW2}, s{sWO0}"]
PAIRS = [(s, h, q) for s in range(36 - NL) for h in (1, 0) for q in range(2)]
PAIRS += [(s, h, q) for h in (1, 0) for s in range(36 - NL, 36) for q in range(2)]
def g2_rd(i):
    s, h, q = PAIRS[i]
    return [f"ds_read_b64_tr_b16 {R(WF2 + 8*(i % 3) + 4*e + 2*k, 2)}, v{(vRA + 4 if h else vR2) + q} offset:{(s % RG)*4096 + e*8 + k*2048} ;@r{i}" for e in range(2) for k in range(2)]
def gemm2(pre, vm, streams):
    out = []; n = len(PAIRS); stream = []; carry = []
    for i, (s, h, q) in enumerate(PAIRS):
        fill = {g: [] for g in range(-1, 9)}
        fill[-1] = pre.get(i, []); fill[0] = []
        bar = i + 2 < n and PAIRS[i + 2][1:] == (1, 0) and PAIRS[i + 2][0] % 2 == 0
        if i + 2 < n:
            for k, x in enumerate(g2_rd(i + 2)): fill[((4, 5, 6, 7) if bar else (0, 1, 4, 5))[k]].append(x)
        if bar: fill[3] += [W(f"e{PAIRS[i+2][0] + 1}", f"r{i+1}"), "s_barrier"]
        for g in ((2,) if bar else (2, 6)):
            o = vm.get(i, [])
            if o:
                o = o.pop(0)
                if o[0]: fill[g - 1].append(o[0])
                fill[g].append(o[1]); fill[g] += o[2:3]; fill[g + 1] += o[3:]
        assert not vm.get(i), i
        if i + 1 < n: fill[7].append(W(f"r{i+1}", f"a{PAIRS[i+1][0]}"))
        mf = []
        for e in range(2):
            for t in ((2, 3, 0, 1) if s == 35 else range(4)):
                mf.append(M16(64*h + (t*4 + 2*q + e) * 4, WF2 + 8*(i % 3) + 4*e, ASET[s % 16] + 4*t, s == 0))
        first = 0
        if i in streams: assert not stream; first, stream = streams[i]
        out += weave2(mf, fill, stream, first=first)
    return out + stream

def fused(name):
    a = Asm()
    a(f"""s_cmp_ge_u32 s2, 256
    s_cbranch_scc0 {name}_go
    s_endpgm
    {name}_go:
    s_load_dwordx2 s[{sX}:{sX+1}], s[0:1], 0
    s_load_dwordx2 s[{sWS}:{sWS+1}], s[0:1], 72
    s_load_dwordx2 s[54:55], s[0:1], 8
    s_load_dwordx4 s[56:59], s[0:1], 32
    s_getpc_b64 s[{sCD}:{sCD+1}]
    f_base:
    v_lshrrev_b32 v1, 6, v0
    v_and_b32 v9, 15, v0
    v_lshlrev_b32 v{vPF}, 7, v9
    s_mov_b32 s{sCD+2}, f_last-f_base
    s_mov_b32 s{sCD+3}, 0x00020000
    v_lshl_add_u32 v{vPC}, v1, 11, v{vPF}
    v_readfirstlane_b32 s3, v1
    v_and_b32 v2, 63, v0""")
    if CPF & 1: a(f"buffer_load_dword v{vOST}, v{vPC}, {srdt(sCD)}, 0 offen")
    a(f"""v_lshlrev_b32 v{vL16}, 4, v2
    s_lshl_b32 s{sPF}, s2, 2
    s_mov_b32 s{sX+2}, {2048*2048}
    s_add_u32 s{sPF}, s{sPF}, s3
    s_mov_b32 s{sX+3}, s{sCD+3}
    s_lshl_b32 s45, s{sPF}, 12
    s_lshr_b32 s61, s2, 3
    s_and_b32 s62, s61, 3
    s_mov_b32 s70, {name}_lbA-f_base
    s_cmp_eq_u32 s62, 3
    s_cselect_b32 s70, {name}_lbC-f_base, s70
    s_mov_b32 s{sWS+2}, {WS_BYTES}
    s_mov_b32 s{sWS+3}, s{sCD+3}
    s_mov_b32 s47, {FO}
    s_and_b32 s60, s2, 7
    s_lshr_b32 s63, s61, 2
    s_mul_i32 s64, s60, 7
    s_lshl_b32 s65, s62, 1
    s_add_u32 s64, s64, s65
    s_lshl_b32 s65, s64, 7
    s_lshl_b32 s66, s60, 8
    s_waitcnt lgkmcnt(0)""")
    for i in range(4): a(f"buffer_load_dwordx4 v[{16+4*i}:{19+4*i}], v{vL16}, {srdt(sX)}, s45 offen offset:{1024*i} ;@lx{i//2}")
    a(f"buffer_load_dword v{vTOK}, off, {srdt(sWS)}, s47 sc1 ;@ep")
    if CPF & 1: a(f"buffer_load_dword v{vOST}, v{vPC}, {srdt(sCD)}, s70 offen")
    if CPF & 4: a(f"v_and_b32 v3, 1, v2\ns_lshl_b32 s70, s{sPF}, 7\nv_lshlrev_b32 v3, 17, v3\nbuffer_load_dword v{vOST}, v3, {srdt(sCD)}, s70 offen")
    a(f"s_movk_i32 s67, 7168\ns_movk_i32 s68, 6144\ns_cmp_eq_u32 s62, 3\ns_cbranch_scc1 {name}_sC")
    a("s_lshl_b32 s70, s62, 7\ns_cmp_eq_u32 s62, 2\ns_cselect_b32 s70, 2176, s70\ns_add_u32 s70, s70, s66")
    srd(a, 4, 54, 1024*6144, "s70"); srd(a, 8, 56, 1024*7168, "s65"); srd(a, 12, 58, 1024*7168, "s65")
    a(f"s_add_u32 s65, s65, 128\ns_cmp_eq_u32 s3, 0\ns_cselect_b32 s71, s68, s67\ns_branch {name}_sJ\n{name}_sC:")
    for p, o in enumerate((4096, 4224, 2048)):
        a(f"s_add_u32 s70, s66, {o}"); srd(a, 4 + 4*p, 54, 1024*6144, "s70")
    a(f"s_mov_b32 s71, s68\n{name}_sJ:")
    a(f"""s_cmp_eq_u32 s3, 0
    s_cselect_b64 s[{sW1}:{sW1+1}], s[4:5], s[8:9]
    s_cselect_b64 s[{sW1+2}:{sW1+3}], s[6:7], s[10:11]
    s_cmp_ge_u32 s3, 2
    s_cselect_b64 s[{sW1}:{sW1+1}], s[12:13], s[{sW1}:{sW1+1}]
    s_cselect_b64 s[{sW1+2}:{sW1+3}], s[14:15], s[{sW1+2}:{sW1+3}]
    v_lshl_add_u32 v3, s63, 6, v2
    s_cmp_eq_u32 s3, 3
    s_cselect_b32 s70, 8, s63
    v_mul_u32_u24 v{TMP}, s71, v3
    s_lshl_b32 s71, s71, 9
    s_cmp_ge_u32 s70, {D1}
    v_mov_b32 v{TMP+2}, s71
    s_cbranch_scc1 {name}_w0
    buffer_load_dword v{vOST}, v{TMP}, {srdt(sW1)}, 0 offen ;@-
    v_add_u32 v{TMP}, v{TMP+2}, v{TMP}
    {name}_w0:""")
    srd(a, 16, 56, 1024*7168, "s65"); srd(a, 20, 58, 1024*7168, "s65")
    a(f"""s_bitcmp1_b32 s3, 0
    s_cselect_b64 s[{sW2_}:{sW2_+1}], s[20:21], s[16:17]
    s_mov_b64 s[{sW2_+2}:{sW2_+3}], s[18:19]
    s_lshr_b32 s70, s3, 1
    s_lshl1_add_u32 s70, s63, s70
    s_lshl_b32 s70, s70, 6
    s_{'sub' if REV else 'add'}_u32 s70, {960 if REV else 0}, s70
    v_add_u32 v3, s70, v2
    v_mul_u32_u24 v{TMP+1}, s67, v3
    s_lshl_b32 s{sM1}, s3, 10
    v_lshrrev_b32 v3, 3, v2
    v_lshl_add_u32 v3, v1, 3, v3
    v_bfe_u32 v4, v2, 4, 1
    v_and_b32 v5, 1, v1
    v_lshl_or_b32 v4, v5, 1, v4
    v_lshlrev_b32 v4, 1, v4
    v_and_b32 v5, 7, v2
    v_xor_b32 v4, v4, v5
    v_lshlrev_b32 v4, 4, v4
    v_mad_u32_u24 v{vGU}, v3, s67, v4
    v_mad_u32_u24 v{vQK}, v3, s68, v4
    s_lshl_b32 s69, s63, 4
    s_lshl_b32 s70, s3, 2
    s_add_u32 s69, s69, s70
    s_lshl_b32 s{sXN}, s69, 15
    s_add_u32 s{sXN+1}, s{sXN}, 0x8000
    s_add_u32 s{sXN+2}, s{sXN}, 0x10000
    s_add_u32 s{sXN+3}, s{sXN}, 0x18000
    s_mov_b32 s{sGU}, 0
    s_mov_b32 s{sQK}, 0
    s_lshl_b32 s47, s69, 8
    s_add_u32 s47, s47, {FL}""")
    def consts(b):
        b(f"""v_lshrrev_b32 v3, 4, v2
        v_bfe_u32 v4, v2, 2, 2
        v_lshl_add_u32 v5, v3, 3, v4
        v_lshlrev_b32 v5, 7, v5
        v_and_b32 v6, 3, v2
        v_lshl_add_u32 v5, v6, 3, v5
        v_bfe_u32 v7, v2, 3, 2""")
        for cb in range(4): b(f"v_xor_b32 v8, {cb}, v7\nv_lshl_add_u32 v{vRA+cb}, v8, 5, v5\nv_add_u32 v{vRA+4+cb}, {SLOT}, v{vRA+cb}")
        b(f"""s_mul_i32 s{sREG}, s3, {REG}
        v_lshrrev_b32 v5, 2, v2
        v_lshlrev_b32 v5, 7, v5
        v_lshl_add_u32 v5, v6, 4, v5
        s_and_b32 s70, s60, 1
        s_and_b32 s71, s3, 1
        s_lshl1_add_u32 s70, s70, s71
        s_mul_i32 s70, s70, {REG}
        v_add_u32 v5, s70, v5
        v_bfe_u32 v7, v2, 3, 1
        v_lshl_add_u32 v{vR2}, v7, 6, v5
        v_xor_b32 v8, 1, v7
        v_lshl_add_u32 v{vR2+1}, v8, 6, v5
        v_and_b32 v9, 15, v2
        v_lshlrev_b32 v5, 9, v3
        v_lshl_add_u32 v{vSTV}, v9, 4, v5
        v_and_b32 v10, 7, v2
        v_lshl_add_u32 v5, v10, 4, v5
        v_lshl_add_u32 v5, v7, 8, v5
        s_cmp_ge_u32 s62, 2
        s_cselect_b64 vcc, -1, 0
        s_cselect_b32 s70, 1, 2
        s_lshl_b32 s70, s70, 7
        v_cndmask_b32 v{vST0}, v{vSTV}, v5, vcc
        v_add_u32 v{vST1}, s70, v{vST0}
        v_mov_b32 v5, 0x7ffffff0
        v_cmp_eq_u32 vcc, 0, v2
        v_and_b32 v8, 31, v2
        s_nop 0
        v_cndmask_b32 v{vFL}, v5, v2, vcc
        v_lshlrev_b32 v{vPOLL}, {FSQ}, v8
        v_bfe_u32 v11, v2, 4, 1
        v_lshrrev_b32 v5, 3, v2
        v_lshlrev_b32 v8, 2, v11
        v_xor_b32 v8, v8, v10
        v_lshlrev_b32 v8, 4, v8
        v_lshl_add_u32 v{vDA}, v5, 11, v8
        v_add_u32 v{vDA+1}, 0x4000, v{vDA}
        v_add_u32 v{vDA+2}, 0x8000, v{vDA}
        v_add_u32 v{vDA+3}, 0xc000, v{vDA}
        v_lshlrev_b32 v5, 11, v9
        v_lshl_add_u32 v{vOA}, v3, 4, v5
        v_bfe_u32 v5, v2, 2, 1
        v_xor_b32 v5, v5, v11
        v_or_b32 v5, v5, v6
        v_mov_b32 v8, 0x3f803f80
        v_cmp_eq_u32 vcc, 0, v5""")
        b(f"""s_mul_i32 s{sH}, s69, {HO_T16}
        s_lshl_b32 s70, s64, 11
        s_add_u32 s{sH}, s{sH}, s70
        s_add_u32 s{sH}, s{sH}, {HO_OFF}
        v_cndmask_b32 v{vSEL}, 0, v8, vcc
        v_cndmask_b32 v{vSEL+1}, 0, v8, vcc
        v_cndmask_b32 v{vSEL+2}, 0, v8, vcc
        v_cndmask_b32 v{vSEL+3}, 0, v8, vcc
        s_lshl_b32 s{sQS}, s69, 10
        s_lshl_b32 s70, s60, 19
        s_add_u32 s{sQS}, s{sQS}, s70
        s_lshl_b32 s70, s62, 18
        s_add_u32 s70, s70, {Q_OFF}
        s_cmp_eq_u32 s62, 2
        s_cselect_b32 s70, {K_OFF + 2*131072}, s70
        s_cmp_eq_u32 s62, 3
        s_cselect_b32 s70, {K_OFF}, s70
        s_add_u32 s{sQS}, s{sQS}, s70
        s_lshl_b32 s{sFQP}, s60, 12
        s_add_u32 s{sFQP}, s{sFQP}, {FQ}
        s_lshl_b32 s70, s61, {FSQ}
        s_add_u32 s{sFQW}, s{sFQP}, s70
        s_lshl_b32 s54, s60, 2
        s_add_u32 s54, s54, s62
        s_lshr_b32 s55, s3, 1
        s_and_b32 s56, s3, 1
        s_lshl_b32 s57, s63, 1
        s_add_u32 s58, s57, s55
        s_lshl_b32 s58, s58, 10
        s_add_u32 s58, s58, s56
        s_lshl_b32 s59, s54, {FSH-2}
        s_add_u32 s58, s58, s59
        s_lshl_b32 s58, s58, 2
        s_add_u32 s{sFHW}, s58, {FH}
        s_add_u32 s57, s57, s56
        s_lshl_b32 s58, s57, 10
        s_add_u32 s58, s58, s55
        s_add_u32 s58, s58, s59
        s_lshl_b32 s58, s58, 2
        s_add_u32 s{sFOW}, s58, {FO}
        s_cmp_lt_u32 s62, 2
        s_cselect_b32 s{sSC}, {f2h(QSCALE)}, 1.0
        s_mov_b32 s{sSC+1}, s{sSC}
        s_lshl_b32 s58, s54, 17
        s_lshl_b32 s59, s57, 13
        s_add_u32 s59, s59, s58
        s_add_u32 s59, s59, {Q_OFF}
        s_lshl_b32 s69, s55, 12
        s_add_u32 s{sQ+1}, s59, s69
        s_xor_b32 s{sQ}, s{sQ+1}, 4096
        s_lshl_b32 s69, s55, 16
        s_add_u32 s58, s58, s69
        s_add_u32 s{sK}, s58, {K_OFF}
        s_add_u32 s{sV}, s58, {V_OFF}""")
    def layernorm(a):
        X, T, D, LB = 32, 64, 80, NS * SLOT
        a(f"""v_and_b32 v3, 7, v2
        v_lshlrev_b32 v4, 1, v1
        v_xor_b32 v4, v4, v3
        v_xor_b32 v5, 1, v4
        v_lshlrev_b32 v6, 7, v2
        v_add_u32 v6, {LB}, v6
        v_lshl_add_u32 v112, v4, 4, v6
        v_lshl_add_u32 v113, v5, 4, v6
        v_lshrrev_b32 v4, 3, v0
        v_and_b32 v5, 7, v4
        v_xor_b32 v5, v5, v3
        v_lshlrev_b32 v5, 4, v5
        v_lshl_add_u32 v5, v4, 7, v5
        v_add_u32 v114, {LB}, v5
        v_lshlrev_b32 v5, 4, v3
        v_lshl_add_u32 v115, v4, 8, v5
        v_add_u32 v116, 0x2000, v115
        v_add_u32 v117, 0x4000, v115
        v_add_u32 v118, 0x6000, v115
        s_lshr_b32 s71, s2, 1
        s_lshl_b32 s71, s71, 15
        s_and_b32 s45, s2, 1
        s_lshl_b32 s45, s45, 7
        s_add_u32 s71, s71, s45
        s_mov_b32 s45, 0xffff0000
        s_mov_b32 s{sT}, 0x9e3779b1""")
        for row in range(2):
            a(W(f"lx{row}")); a(f"f_lx{row}:")
            for j in range(8): a(f"v_lshlrev_b32 v{X+16*row+2*j}, 16, v{16+8*row+j}\nv_and_b32 v{X+16*row+2*j+1}, s45, v{16+8*row+j}")
            t = T + 8*row
            for j in range(0, 8, 2): a(f"v_pk_add_f32 {R(t+j,2)}, {R(X+16*row+j,2)}, {R(X+16*row+8+j,2)}")
            for st in (4, 2):
                for j in range(0, st, 2): a(f"v_pk_add_f32 {R(t+j,2)}, {R(t+j,2)}, {R(t+j+st,2)}")
            a(f"v_add_f32 v{t}, v{t}, v{t+1}")
        wave_allsum(a, [64, 72], [65, 73])
        a(f"v_mul_f32 v64, {f2h(1.0/1024)}, v64\nv_mul_f32 v72, {f2h(1.0/1024)}, v72")
        for row in range(2):
            for j in range(0, 16, 2): a(f"v_pk_add_f32 {R(D+16*row+j,2)}, {R(X+16*row+j,2)}, {R(64+8*row,2)} op_sel_hi:[1,0] neg_lo:[0,1] neg_hi:[0,1]")
            for j in range(0, 4, 2): a(f"v_pk_mul_f32 {R(66+8*row+j,2)}, {R(D+16*row+j,2)}, {R(D+16*row+j,2)}")
            for j in range(4, 16, 2): a(f"v_pk_fma_f32 {R(66+8*row+j%4,2)}, {R(D+16*row+j,2)}, {R(D+16*row+j,2)}, {R(66+8*row+j%4,2)}")
            a(f"v_add_f32 v{66+8*row}, v{66+8*row}, v{67+8*row}\nv_add_f32 v{68+8*row}, v{68+8*row}, v{69+8*row}\nv_add_f32 v{66+8*row}, v{66+8*row}, v{68+8*row}")
        wave_allsum(a, [66, 74], [67, 75])
        a(f"""v_mul_f32 v66, {f2h(1.0/1024)}, v66
        v_mul_f32 v74, {f2h(1.0/1024)}, v74
        v_cvt_pk_bf16_f32 v64, v64, v72
        v_cvt_pk_bf16_f32 v66, v66, v74
        v_and_b32 v72, s45, v64
        v_lshlrev_b32 v64, 16, v64
        v_and_b32 v74, s45, v66
        v_lshlrev_b32 v66, 16, v66
        v_add_f32 v66, {f2h(1e-5)}, v66
        v_add_f32 v74, {f2h(1e-5)}, v74
        v_cvt_pk_bf16_f32 v66, v66, v74
        v_and_b32 v74, s45, v66
        v_lshlrev_b32 v66, 16, v66
        v_sqrt_f32 v74, v74
        v_sqrt_f32 v66, v66
        s_nop 0
        v_cvt_pk_bf16_f32 v66, v66, v74
        v_and_b32 v74, s45, v66
        v_lshlrev_b32 v66, 16, v66
        v_rcp_f32 v74, v74
        v_rcp_f32 v66, v66""")
        for row in range(2):
            b = X + 16*row
            for j in range(0, 16, 2): a(f"v_pk_add_f32 {R(b+j,2)}, {R(b+j,2)}, {R(64+8*row,2)} op_sel_hi:[1,0] neg_lo:[0,1] neg_hi:[0,1]")
            for j in range(8): a(f"v_cvt_pk_bf16_f32 v{D+16*row+j}, v{b+2*j}, v{b+2*j+1}")
            for j in range(8): a(f"v_lshlrev_b32 v{b+2*j}, 16, v{D+16*row+j}\nv_and_b32 v{b+2*j+1}, s45, v{D+16*row+j}")
            for j in range(0, 16, 2): a(f"v_pk_mul_f32 {R(b+j,2)}, {R(b+j,2)}, {R(66+8*row,2)} op_sel_hi:[1,0]")
            for j in range(8): a(f"v_cvt_pk_bf16_f32 v{D+16*row+8+j}, v{b+2*j}, v{b+2*j+1}")
            a(f"ds_write_b128 v{112+row}, v[{D+16*row+8}:{D+16*row+11}]\nds_write_b128 v{112+row}, v[{D+16*row+12}:{D+16*row+15}] offset:8192 ;@lw")
        a(W("ep", "lw")); a("s_barrier")
        for i in range(4): a(f"ds_read_b128 v[{16+4*i}:{19+4*i}], v114 offset:{4096*i} ;@lr{i}")
        a(f"v_mul_lo_u32 v{vTOK}, v{vTOK}, s{sT}\nv_add_u32 v{vTOK}, 0x7f4a7c15, v{vTOK}")
        for i in range(4):
            a(W(f"lr{i}")); a(f"buffer_store_dwordx4 v[{16+4*i}:{19+4*i}], v{115+i}, {srdt(sWS)}, s71 offen sc1 ;@xst")
    def late():
        L = f"""s_lshl_b32 s{sOS}, s57, 1
        s_add_u32 s{sOS}, s{sOS}, s55
        s_mul_i32 s{sOS}, s{sOS}, {4*HO_T16}
        s_lshl_b32 s{sT}, s54, 10
        s_add_u32 s{sOS}, s{sOS}, s{sT}
        s_add_u32 s{sOS}, s{sOS}, {HO_OFF + 112*1024}
        s_add_u32 s{sOS+1}, s{sOS}, {2*HO_T16}
        s_lshr_b32 s10, s60, 1
        s_lshl_b32 s10, s10, 2
        s_lshr_b32 s11, s61, 3
        s_add_u32 s10, s10, s11
        s_lshl_b32 s{sFP}, s10, 12
        s_add_u32 s{sFP}, s{sFP}, {FH}
        s_and_b32 s11, s61, 7
        s_lshl_b32 s11, s11, 8
        s_and_b32 s13, s60, 1
        s_lshl_b32 s12, s10, 2
        s_add_u32 s12, s12, s3
        s_lshl_b32 s12, s12, 16
        s_add_u32 s12, s12, s11
        s_lshl_b32 s14, s13, 7
        s_add_u32 s{sRES}, s12, s14
        s_add_u32 s{sRES+1}, s{sRES}, 32768
        s_lshl_b32 s14, s55, 7
        s_add_u32 s11, s11, s14
        s_lshl1_add_u32 s13, s13, s56
        s_mul_i32 s{sW2}, s13, {28*65536}
        s_add_u32 s{sW2}, s{sW2}, s11
        s_lshl_b32 s{sWO0}, s13, 19
        s_add_u32 s{sWO0}, s{sWO0}, s11
        s_mul_i32 s{sACD}, s13, {20*1024}
        s_sub_u32 s{sACD}, {88*1024}, s{sACD}
        s_lshl1_add_u32 s10, s10, s55
        s_mul_i32 s10, s10, {4*HO_T16}
        s_mul_i32 s11, s13, {28*1024}
        s_add_u32 s10, s10, s11
        s_add_u32 s10, s10, {HO_OFF}
        s_mul_i32 s11, s56, {2*HO_T16}
        s_sub_u32 s12, {2*HO_T16}, s11
        s_add_u32 s{sAC}, s10, s11
        s_add_u32 s{sAC+1}, s{sAC}, {HO_T16}
        s_add_u32 s{sAC+2}, s10, s12
        s_add_u32 s{sAC+3}, s{sAC+2}, {HO_T16}
        s_lshl2_add_u32 s10, s2, s3
        s_lshl_b32 s11, s10, 12
        s_add_u32 s{sEXW}, s11, {EX_OFF}
        s_xor_b32 s{sEXR}, s{sEXW}, 16384
        s_lshl_b32 s11, s10, 7
        s_add_u32 s{sFXW}, s11, {FX}
        s_xor_b32 s{sFXR}, s{sFXW}, 512""".split("\n")
        L = [x.strip() for x in L]
        return L
    consts(a)
    a("v_and_b32 v3, 7, v2\nv_lshlrev_b32 v119, 7, v3\nv_bfe_u32 v3, v2, 3, 2\nv_lshl_add_u32 v119, v3, 2, v119")
    layernorm(a)
    a(f"s_lshl_b32 s45, s2, 5\ns_add_u32 s45, s45, s3\ns_lshl_b32 s45, s45, 2\ns_add_u32 s45, s45, {FL}\ns_lshl_b32 s{sPF}, s{sPF}, 11\ns_mov_b32 s{sT}, 0")
    a(f"s_and_b32 s71, s61, 3\ns_cmp_eq_u32 s71, 3\n{name}_la:")
    a(W("xst")); a(flag_store(45)); a(f"s_cbranch_scc1 {name}_lbC")
    pro = a.L
    bodies = {}; ool = {}
    for typ in "AC":
        b = Asm()
        fd = Feed(typ)
        def dmas(n):
            L = []
            for k in range(n): o = fd.pop(0, -1, 5); L.append([o[0], "s_nop 0"] + o[1:])
            return L
        b(f"{name}_lb{typ}:")
        b.ext(sum(dmas(E("PD2", 12)), []))
        b(f"""s_lshr_b32 s71, s61, 2
        s_cmp_eq_u32 s3, 3
        s_cselect_b32 s45, 0, 0x101
        s_lshl_b32 s45, s45, s71
        s_lshr_b32 s45, s45, {D1}
        s_add_u32 s71, s71, 16
        s_bitset1_b32 s45, s71
        s_and_b32 s71, s61, 3
        s_lshl_b32 s71, s71, 15
        s_add_u32 s71, s71, s{sXN}
        ;stamp 0
        s_branch {name}_pm{typ}
        {name}_pl{typ}:
        s_sleep {E("SLP", 2)}
        {name}_pm{typ}:
        buffer_load_dword v{vPD}, v119, {srdt(sWS)}, s47 offen sc1
        s_add_u32 s{sT}, s{sT}, 1
        s_cmp_lt_u32 s{sT}, 0x8000
        s_waitcnt vmcnt(0)
        v_cmp_ne_u32 vcc, v{vTOK}, v{vPD}
        s_cbranch_scc0 {name}_pk{typ}
        s_cbranch_vccnz {name}_pl{typ}
        {name}_pk{typ}:
        ;stamp 1""")
        xw = [[int(y) for y in x.split(":")] for x in os.environ.get("XW", "").split(",") if x]
        xev = {}
        for k, (h, e) in enumerate(xw):
            d = xw[k + 1][1] - e if k + 1 < len(xw) else 0
            xev[h] = [None, f"buffer_load_dword v{vOST}, v{vPD}, {srdt(sWS)}, s47 offen sc1"] + ([f"s_add_u32 s47, s47, {(d * 8192) & 0xffffffff}"] if d else [])
        if xw: b(f"v_lshlrev_b32 v{vPD}, 3, v{vL16}\ns_add_u32 s47, s71, {xw[0][1] * 8192}")
        if -1 in xev: b.ext(xev[-1][1:])
        for k in range(4 * E("PX", 4)):
            b.ext(fd.pop(0, 9, -1)[1:])
            if k == 7: b("s_barrier"); b.ext(g1_reads(0, 0) + g1_reads(0, 1))
        e_qkv, e_h = epi1(typ)
        def groups(L):
            G = [[]]
            for x in L:
                if G[-1] and any("buffer_store" in y for y in G[-1]) and cls(x) == "valu": G.append([])
                G[-1].append(x)
            return G if L else []
        gq, gh = groups(e_qkv), groups(e_h)
        NQ, NH = E("NQ" + typ, 6), E("NH", 7)
        plan = {16 + k: sum(gq[(k * len(gq)) // NQ:((k + 1) * len(gq)) // NQ], []) for k in range(NQ)}
        plan[16 + NQ - 1].append(";qdone")
        for k in range(NH): plan[16 + NQ + k] = sum(gh[(k * len(gh)) // NH:((k + 1) * len(gh)) // NH], [])
        stream = []; qdone = None; HP = E("HP", 56)
        for S in range(32):
            btags = []; bpost = []; post = []; vm = [[], []]; first = 0
            if qdone is not None and S == qdone + E("QD", 2): btags.append("qkv"); bpost.append(flag_store(sFQW))
            ev = {}
            for hf in range(2):
                h = 2 * S + hf; k = None
                if h in xev: vm[hf].append(xev[h])
                if E("NOEV", 0): continue
                if h % R1 == 0 and h // R1 + D1 < 16: k = h // R1; ld = [f"buffer_load_dword v{vOST}, v{TMP}, {srdt(sW1)}, 0 offen ;@-", f"v_add_u32 v{TMP}, v{TMP+2}, v{TMP}"]
                if k is not None: ev[48*hf + 11] = [f"s_bitcmp1_b32 s45, {k}", f"s_cbranch_scc0 {name}_w{typ}{k}"] + ld + [f"{name}_w{typ}{k}:"]
                if h >= B2 and (h - B2) % R2 == 0 and (h - B2) // R2 < 8:
                    k = 16 + (h - B2) // R2; assert h < 32
                    ev[48*hf + 27] = [f"s_bitcmp1_b32 s45, {k}", f"s_cbranch_scc0 {name}_w{typ}{k}", f"buffer_load_dword v{vOST}, v{TMP+1}, {srdt(sW2_)}, 0 offen ;@-", f"{name}_w{typ}{k}:"]
            post.append(f"{name}_{typ}{S}:")
            if CPF & 2 and S % 4 == 1:
                c = code_pf(f"{name}_{typ}{S+3}" if S < 29 else f"{name}_att"); post.append(c[0]); vm[0].append(c[1])
            if S == 14: stream += late()
            if S == 16: first = 3; post.append(";stamp 2")
            stream += plan.get(S, [])
            if S == HP // 2: vm[HP % 2].insert(0, poll_load(sFQP, 0, "pq"))
            if S == 30:
                assert not stream
                post += poll_check(f"{name}_pq{typ}", "pq")
                vm[0] += [at_ld(0, "K", 0), at_ld(0, "K", 1)] + [at_q(i) for i in range(6)]
                vm[1] += [at_ld(0, "V", 0), at_ld(0, "V", 1), at_q(6), at_q(7), at_ld(1, "K", 0), at_ld(1, "K", 1)]
            if S == 31:
                post += [f"s_add_u32 s{sK}, s{sK}, 4096"]
                vm[0] += [at_ld(1, "V", 0), at_ld(1, "V", 1) + f"\ns_add_u32 s{sV}, s{sV}, 4096"] + [at_ld(2, w, kk) for w in "KV" for kk in range(2)]
                stream += epi_h(0, 0, 4, (0,), 0); first = 35
            L = g1_step(typ, S, fd, post, vm, stream, first, btags, bpost, ev)
            if ";qdone" in L: qdone = S
            if os.environ.get("V"): print(typ, S, "x", fd.nx - 2*S, "d", fd.nd - S, "vm", sum(cls(x) == "vm" for x in L), "left", len(stream))
            if E("NOST", 0) and 17 < S < 30: L = [x for x in L if "buffer_store_dwordx4" not in x]
            if E("NOX", 0) and 17 < S < 30: L = [x.replace("s[24:27], s48", "s[24:27], s71").replace("s[24:27], s49", "s[24:27], s71").replace("s[24:27], s50", "s[24:27], s71").replace("s[24:27], s51", "s[24:27], s71") for x in L]
            b.ext(L)
        assert fd.nx == 64 and fd.nd == 32 and not fd.qx and not fd.qd
        b.ext(stream)
        if typ == "A": b(f"s_branch {name}_att")
        bodies[typ] = b.L
        o = Asm(); o(poll_slow(f"{name}_pq{typ}", sFQP, 0, 7)); ool[typ] = o.L
    t_ = Asm()
    t_(f"{name}_att:\n;stamp 3")
    t_(W("K0", "Q0")); t_.ext(at_qk(0))
    t_(f"v_lshrrev_b32 v{vPOLL}, 9, v{vL16}\nv_bfe_u32 v{vGU}, v{vL16}, 4, 5\nv_lshlrev_b32 v{vGU}, {FSH}, v{vGU}\nv_lshl_add_u32 v{vPOLL}, v{vPOLL}, 2, v{vGU}\ns_load_dwordx2 s[{sOUT}:{sOUT+1}], s[0:1], 56\ns_mov_b32 s{sOUT+2}, {2048*2048}\ns_mov_b32 s{sOUT+3}, 0x00020000")
    t_(f"s_load_dwordx2 s[{sWD}:{sWD+1}], s[0:1], 48\ns_load_dwordx2 s[{sWO}:{sWO+1}], s[0:1], 16\ns_mov_b32 s{sWD+2}, {3584*2048}\ns_mov_b32 s{sWO+2}, {1024*2048}")
    t_(f"""s_xor_b32 s10, s3, 2
    s_mul_i32 s10, s10, {REG}
    v_add_u32 v{vRA}, s10, v{vL16}
    v_add_u32 v{vRA+1}, s{sREG}, v{vL16}
    v_lshrrev_b32 v{vRA+3}, 1, v{vL16}
    v_add_u32 v{vRA+3}, 0x7000, v{vRA+3}
    v_add_u32 v{vRA+2}, s10, v{vRA+3}
    v_add_u32 v{vRA+3}, s{sREG}, v{vRA+3}""")
    t_(f"""v_bfe_u32 v{vGU}, v{vL16}, 8, 1
    v_lshrrev_b32 v{vQK}, 9, v{vL16}
    v_and_b32 v{vOST}, 0xf0, v{vL16}
    v_lshl_add_u32 v{vOST}, v{vQK}, 8, v{vOST}
    s_mov_b32 s10, {HO_T16}
    v_mad_u32_u24 v{vOST}, v{vGU}, s10, v{vOST}""")
    t_(f"""s_mov_b32 s10, {2*REG}
    s_bitcmp1_b32 s2, 0
    s_cselect_b32 s10, {-2*REG & 0xffffffff}, s10
    s_xor_b32 s11, s3, 1
    s_mul_i32 s11, s11, {REG}
    v_add_u32 v{vRA+4}, s10, v{vR2}
    v_add_u32 v{vRA+5}, s10, v{vR2+1}
    v_add_u32 v{vRA+6}, s11, v{vL16}""")
    t_.ext(epi_h(0, 0, 4, (1,), 0, rev=True))
    TF, TP, T0 = E("TF", 16), E("TP", 48), E("T0", 60)
    pl = []
    for s in range(8):
        if s < 7:
            for i in range(4): pl.append(g2_dma(s, i) + (g2_dadv(s) if i == 3 else []))
        for t in range(8): pl.append([None, g2_act(2*s + t//4, t % 4)] + g2_aadv(2*s + t//4, t % 4))
    npl = len(pl); T1 = E("T1", 120)
    pts = [int(x) for x in os.environ.get("PTS", "3,11,19,27,35").split(",")]
    il = lambda k, d: [int(x) for x in os.environ.get(k, d).split(",") if x]
    wwt, awt = il("WWT", ""), il("AWT", "")
    wsc = f"""s_lshr_b32 s45, s2, 3
    s_lshl2_add_u32 s45, s45, s3
    s_lshr_b32 s44, s45, 6
    s_and_b32 s47, s2, 1
    s_lshl1_add_u32 s44, s47, s44
    s_mul_i32 s44, s44, {28*65536}
    s_and_b32 s46, s45, 63
    s_add_u32 s46, s46, {32*E("WS0", 8)}
    s_lshl_b32 s46, s46, 11
    s_add_u32 s44, s44, s46
    s_sub_u32 s46, s{sFP}, {FH}
    s_lshr_b32 s46, s46, 9
    s_bfe_u32 s45, s2, 0x30003
    s_add_u32 s46, s46, s45
    s_mul_i32 s46, s46, {HO_T16}
    s_and_b32 s45, s3, 1
    s_lshl1_add_u32 s47, s47, s45
    s_mul_i32 s47, s47, {28*1024}
    s_add_u32 s46, s46, s47
    s_and_b32 s47, s3, 2
    s_lshl_b32 s47, s47, 10
    s_add_u32 s46, s46, s47
    s_add_u32 s46, s46, {HO_OFF + 16*1024}""".split("\n")
    wsc = [x.strip() for x in wsc]
    for t in range(128):
        kt, qt = t // 4, t % 4
        mem = [[] for _ in range(6)]; pre = []
        if kt + 3 < 32:
            mem[0].append(at_ld(kt + 3, "KKVV"[qt], qt % 2))
            if kt % 2 == 0 and qt % 2 == 1: mem[4].append(f"s_add_u32 s{sK if qt == 1 else sV}, s{sK if qt == 1 else sV}, 4096")
        if t < 3: pre.append(W(f"Q{t+1}"))
        if t == 1: pre += [W("V0"), "s_waitcnt lgkmcnt(0)"]
        if qt == 3 and kt < 31: pre.append(W(f"K{kt+1}", f"V{kt+1}"))
        if t in pts:
            i = pts.index(t)
            mem[1].append(f"buffer_load_dword v{vGU}, v{vPF}, {srdt(sWD if i < 4 else sWO)}, s{sPF} offen")
            if i < 4: mem[5].append(f"s_add_u32 s{sPF}, s{sPF}, 0x200000" if i < 3 else f"s_and_b32 s{sPF}, s{sPF}, 0x1fffff")
        if 36 <= t < 36 + len(wsc): mem[5].append(wsc[t - 36])
        if t in wwt: mem[1].append(f"buffer_load_dword v{vGU}, v{vPF}, {srdt(sWD)}, s44 offen"); mem[5].append("s_add_u32 s44, s44, 0x20000")
        if t in awt: mem[1].append(f"buffer_load_dword v{vGU}, v{vPF}, {srdt(sWS)}, s46 offen sc1"); mem[5].append("s_add_u32 s46, s46, 4096")
        if t == TF: pre.append(W("hst")); mem[1].append(flag_store(sFHW))
        if t == TP: mem[1].append(poll_load(sFP, 0, "ph"))
        if t == T0 - 1: pre += poll_check(f"{name}_ph", "ph") + ["s_waitcnt lgkmcnt(0)", "s_barrier"]
        pre.append(f"{name}_t{t}:")
        if CPF & 2 and t % 32 == 10:
            c = code_pf(f"{name}_t{t+20}" if t < 106 else f"{name}_t126", vGU); pre.append(c[0]); mem[1].append(c[1])
        if t >= T0:
            want = min(npl, ((t - T0 + 1) * npl + (T1 - T0) - 1) // (T1 - T0))
            for sl, prev in ((2, 1), (3, 4)):
                if npl - len(pl) < want:
                    x = pl.pop(0)
                    if x[0]: mem[prev].append(x[0])
                    mem[sl].append(x[1]); mem[5] += x[2:]
        if t in (126, 127):
            for q in range(4): mem[[2, 4, 3, 5][q]].append(f"ds_write_b128 v{vRA}, {R(vO + 16*(t-126) + 4*q, 4)} offset:{32768 + 4096*(t-126) + 1024*q}")
        t_.ext(at_period(t, mem, pre))
    assert not pl
    pv = at_pv(127)
    t_(f"ds_write2_b32 v{vRA+2}, v{vLs}, v{vLs+4} offset0:0 offset1:1")
    t_.ext([pv[0], pv[2], pv[1], pv[3]])
    t_(";stamp 4"); t_(W("e1")); t_("s_waitcnt lgkmcnt(0)\ns_barrier")
    t_(f"ds_read_b64 {R(vLs,2)}, v{vRA+3} ;@xl")
    for i in range(8): t_(f"ds_read_b128 {R(vO+4*i,4)}, v{vRA+1} offset:{32768 + 1024*i} ;@xo{i}")
    t_(f"s_mov_b32 s10, {f2h(2.0**-64)}\ns_mov_b32 s11, {f2h(2.0**64)}")
    t_(W("xl"))
    for i in range(4):
        m, ld = g2_dma(7, i); t_(m)
        t_([f"v_add_f32 v{vLs+8}, v{vLs+8}, v{vLs}", f"v_add_f32 v{vLs+12}, v{vLs+12}, v{vLs+1}",
            f"v_cmp_le_f32 s[12:13], s10, v{vLs+8}", f"v_cmp_le_f32 s[14:15], s10, v{vLs+12}"][i])
        t_(ld)
    t_.ext(g2_dadv(7))
    t_(f"""v_cmp_ge_f32 s[16:17], s11, v{vLs+8}
    v_cmp_ge_f32 s[18:19], s11, v{vLs+12}""")
    for i in range(8):
        t_(W(f"xo{i}"))
        for r in (0, 2): t_(f"v_pk_add_f32 {R(vO+32+4*i+r,2)}, {R(vO+32+4*i+r,2)}, {R(vO+4*i+r,2)}")
    t_(f"""s_and_b64 s[12:13], s[12:13], s[14:15]
    s_and_b64 s[16:17], s[16:17], s[18:19]
    s_and_b64 s[12:13], s[12:13], s[16:17]
    s_cmp_eq_u64 s[12:13], -1
    s_cbranch_scc0 {name}_slow
    {name}_fin:
    v_rcp_f32 v{vLs+8}, v{vLs+8}
    v_rcp_f32 v{vLs+12}, v{vLs+12}""")
    t_.ext(g2_rd(0) + g2_rd(1))
    for qt in range(2):
        o = vO + 32 + 16 * qt
        for i in range(0, 16, 2): t_(f"v_pk_mul_f32 {R(o+i,2)}, {R(o+i,2)}, {R(vLs+8+4*qt,2)} op_sel_hi:[1,0]")
        for h in range(2):
            d = vP + 8 * qt + 4 * h
            idx = [4*h, 4*h+1, 4*h+2, 4*h+3, 8+4*h, 9+4*h, 10+4*h, 11+4*h]
            for j in range(4): t_(f"v_cvt_pk_bf16_f32 v{d+j}, v{o+idx[2*j]}, v{o+idx[2*j+1]}")
            t_(f"buffer_store_dwordx4 {R(d,4)}, v{vOST}, {srdt(sWS)}, s{sOS+qt} offen offset:{512*h} sc1 ;@ost")
    t_(";stamp 5")
    XR, XF, Y = 176, 96, 160
    SO, SP2, SC2 = E("SO", 5), E("SP2", 12), E("SC2", 16)
    pre = {0: [W("r0", "a0")]}; vm = {}; streams = {}
    aq = [[None, g2_act(s, t)] + g2_aadv(s, t) for s in range(16, 36) for t in range(4)]; na = 0
    for s in range(28):
        ex = []; p = pre.setdefault(4*s, [])
        if s == SO: p.append(W("ost")); ex.append([None, flag_store(sFOW), f"s_add_u32 s{sFP}, s{sFP}, {FO - FH}"])
        p.append(f"{name}_g{s}:")
        if CPF & 2 and s in (E("CP2", 6), 14): c = code_pf(f"{name}_g{13 if s < 14 else 25}", vGU); ex.append(c)
        if s == SP2: ex.append([None, poll_load(sFP, 0, "po")])
        if s == SC2: p += poll_check(f"{name}_po", "po")
        dm = [g2_dma(s + 8, i) + (g2_dadv(s + 8) if i == 3 and s < 27 else []) for i in range(4)]
        ns = 7 if s % 2 else 8
        want = -(-48 * s // (SC2 - 1)) if s < SC2 else 48 - (-32 * (s - SC2 + 1) // (E("AE", 27) - SC2))
        while len(ex) < ns - 4 and na < min(want, 80, 4 * s): ex.append(aq[na]); na += 1
        ops = []
        for k in range(4): ops += [dm[k]] + ex[k:k+1]
        sl = [4*s + k for k in range(4) for r in range(1 if s % 2 and k == 2 else 2)]
        for k, o in enumerate(ops): vm.setdefault(sl[(k * len(sl)) // len(ops)], []).append(o)
    assert na == 80
    i1 = 4 * (36 - NL) + 2 * NL; XB = 6 * 4096
    for i in range(4): vm.setdefault(114 + i, []).append([None, f"buffer_load_dwordx4 {R(XR+4*i,4)}, v{vOA}, {srdt(sX)}, s{sRES + i//2} offen offset:{64*(i%2)} ;@xr"])
    pre.setdefault(i1, []).append(f"{name}_own:")
    L = [f"ds_write_b128 v{vRA+6}, {R(96+4*k,4)} offset:{XB + 1024*k} ;@sw" for k in (0, 1, 4, 5, 2, 6, 3, 7)] + [W("sw"), "s_barrier"]
    L += [f"ds_read_b128 {R(96+4*k,4)}, v{vRA+1} offset:{XB + 1024*k} ;@sr{k}" for k in range(8)]
    for i in range(4):
        L.append(W(f"sr{2*i+1}"))
        L += [f"v_add_f32 v{64+8*i+r}, v{64+8*i+r}, v{96+8*i+r}" for r in range(8)]
        L += [f"v_cvt_pk_bf16_f32 v{64+8*i+r}, v{64+8*i+2*r}, v{64+8*i+2*r+1}" for r in range(4)]
        L.append(f"buffer_store_dwordx4 {R(64+8*i,4)}, v{vL16}, {srdt(sWS)}, s{sEXW} offen offset:{1024*i} sc1 ;@xs")
    L += ["s_barrier", W("xr"), "s_mov_b32 s10, 0xffff0000"]
    for i in range(16): L += [f"v_lshlrev_b32 v{XF+2*i}, 16, v{XR+i}", f"v_and_b32 v{XF+2*i+1}, s10, v{XR+i}"]
    streams[i1] = (2, L)
    n = len(PAIRS)
    vm[n - 1] = [[None, f"ds_write_b128 v{vRA+6}, {R(32+4*k,4)} offset:{XB + 1024*k}"] for k in (0, 4)]
    streams[n - 1] = (3, [f"ds_write_b128 v{vRA+6}, {R(32+4*k,4)} offset:{XB + 1024*k}" for k in (1, 5)])
    FP = n - E("FXP", 1)
    if FP < n: pre.setdefault(FP, []).extend([W("xs"), flag_store(sFXW)])
    t_.ext(gemm2(pre, vm, streams))
    if FP == n: t_(W("xs")); t_(flag_store(sFXW))
    for k in (2, 6, 3, 7):
        if k == 3: t_(f"s_mov_b32 s{sT}, 0\ns_nop 0")
        t_(f"ds_write_b128 v{vRA+6}, {R(32+4*k,4)} offset:{XB + 1024*k}")
    t_(f";stamp 6\ns_waitcnt lgkmcnt(0)\ns_barrier")
    for k in range(8): t_(f"ds_read_b128 {R(32+4*k,4)}, v{vRA+1} offset:{XB + 1024*k} ;@y{k}")
    t_(f"buffer_load_dword v{vPD}, off, {srdt(sWS)}, s{sFXR} sc1")
    for i in range(0, 32, 2): t_(f"v_pk_add_f32 {R(i,2)}, {R(i,2)}, {R(XF+i,2)}")
    for k in range(8):
        t_(W(f"y{k}"))
        for r in (0, 2): t_(f"v_pk_add_f32 {R(4*k+r,2)}, {R(4*k+r,2)}, {R(32+4*k+r,2)}")
    t_(f"""s_branch {name}_x1
    {name}_x0:
    buffer_load_dword v{vPD}, off, {srdt(sWS)}, s{sFXR} sc1
    {name}_x1:
    s_add_u32 s{sT}, s{sT}, 1
    s_cmp_lt_u32 s{sT}, 0x8000
    s_waitcnt vmcnt(0)
    v_cmp_ne_u32 vcc, v{vTOK}, v{vPD}
    s_cbranch_scc0 {name}_x2
    s_cbranch_vccnz {name}_x0
    {name}_x2:""")
    for i in range(4): t_(f"buffer_load_dwordx4 {R(Y+4*i,4)}, v{vL16}, {srdt(sWS)}, s{sEXR} offen offset:{1024*i} sc1 ;@z{i}")
    for i in range(4):
        t_(W(f"z{i}"))
        for r in range(4): t_(f"v_lshlrev_b32 v{32+2*r}, 16, v{Y+4*i+r}\nv_and_b32 v{33+2*r}, s10, v{Y+4*i+r}")
        for r in range(0, 8, 2): t_(f"v_pk_add_f32 {R(8*i+r,2)}, {R(8*i+r,2)}, {R(32+r,2)}")
        for r in range(4): t_(f"v_cvt_pk_bf16_f32 v{8*i+r}, v{8*i+2*r}, v{8*i+2*r+1}")
        t_(f"buffer_store_dwordx4 {R(8*i,4)}, v{vOA}, {srdt(sOUT)}, s{sRES + i//2} offen offset:{64*(i%2)}")
    t_(f"{name}_end:\ns_endpgm")
    tail = t_.L
    e = Asm()
    e(poll_slow(f"{name}_ph", sFP, 0, 8)); e(poll_slow(f"{name}_po", sFP, 0, 9))
    M = vO
    kv0 = f"s_and_b32 s{sK}, s{sK}, 0xfffe0000\ns_add_u32 s{sV}, s{sK}, {V_OFF - K_OFF}\ns_mov_b32 s10, 64"
    e(f"{name}_slow:\ns_sub_u32 s{sK}, s{sK}, 4096\n{kv0}\nv_mov_b32 v{M}, 0xff800000\nv_mov_b32 v{M+1}, 0xff800000\n{name}_slow1:")
    e(at_ld(0, "K", 0)); e(at_ld(0, "K", 1))
    e(f"s_add_u32 s{sK}, s{sK}, 2048\ns_sub_u32 s10, s10, 1\ns_waitcnt vmcnt(0)")
    e.ext(at_qk(2) + at_qk(3)); e("s_nop 7\ns_nop 3")
    for qt in range(2):
        for i in range(0, 16, 2): e(f"v_max3_f32 v{M+qt}, v{M+qt}, v{vS+16*qt+i}, v{vS+16*qt+i+1}")
    e(f"""s_cmp_lg_u32 s10, 0
    s_cbranch_scc1 {name}_slow1
    v_mov_b32 v{M+2}, v{M}
    v_mov_b32 v{M+3}, v{M+1}
    s_sub_u32 s{sK}, s{sK}, 4096
    {kv0}
    v_permlane32_swap_b32 v{M}, v{M+2}
    v_permlane32_swap_b32 v{M+1}, v{M+3}
    v_max_f32 v{M}, v{M}, v{M+2}
    v_max_f32 v{M+1}, v{M+1}, v{M+3}""")
    for i in range(32): e(f"v_mov_b32 v{vO+32+i}, 0")
    for i in range(8): e(f"v_mov_b32 v{vLs+8+i}, 0")
    e(f"{name}_slow2:")
    for w in "KV": e(at_ld(0, w, 0)); e(at_ld(0, w, 1))
    e(f"s_add_u32 s{sK}, s{sK}, 2048\ns_add_u32 s{sV}, s{sV}, 2048\ns_sub_u32 s10, s10, 1\ns_waitcnt vmcnt(0)")
    e.ext(at_qk(2) + at_qk(3)); e("s_nop 7\ns_nop 3")
    for qt in range(2):
        s = vS + 16 * qt; p = vP + 8 * qt
        for i in range(16): e(f"v_sub_f32 v{s+i}, v{s+i}, v{M+qt}")
        for i in range(16): e(f"v_exp_f32 v{s+i}, v{s+i}")
        e("s_nop 0")
        for i in range(8): e(f"v_cvt_pk_bf16_f32 v{p+i}, v{s+2*i}, v{s+2*i+1}")
    e("s_nop 1")
    e.ext(at_pv(2) + at_pv(3))
    e(f"s_cmp_lg_u32 s10, 0\ns_cbranch_scc1 {name}_slow2\ns_nop 7\ns_nop 3\ns_branch {name}_fin\nf_last:")
    res = {}
    for typ in "AC": res[typ] = resolve(pro + bodies[typ] + tail)
    def part(typ, lo, L): return emit(L, {i - lo: v for i, v in res[typ].items()})
    nA, nC = len(pro) + len(bodies["A"]), len(pro) + len(bodies["C"])
    rt = {i - nA: mergew(v, res["C"][i - nA + nC]) for i, v in res["A"].items() if i >= nA}
    out = Asm()
    out.L = emit(pro, res['A']) + part("A", len(pro), bodies["A"]) + ool["A"] + ool["C"] + part("C", len(pro), bodies["C"]) + emit(tail, rt) + emit(e.L, {})
    return out, dict(nm=name, vgpr=512, accum=256, lds=163840, grid=256, block=256)
```

```python
from asmlib import *
from sched import *
from k01 import wave_allsum, WS_BYTES, HO_OFF, HO_T16, Q_OFF, K_OFF, V_OFF, QSCALE
import os
E = lambda k, d: int(os.environ.get(k, d))
FLAG_OFF = 40 << 20
FQ, FL, FH, FO = FLAG_OFF, FLAG_OFF + 32768, FLAG_OFF + 65536, FLAG_OFF + 131072
A0 = 256
FSQ, FSH = E('FSQ', 5), E('FSH', 4)
vL16, vGU, vQK, vRA = 128, 129, 130, 131
vST0, vST1, vSTV, vPF, vFL, vTOK, vPOLL, vOST = 139, 140, 141, 142, 143, 144, 145, 146
vDA, vR2, vOA, vPD = 147, 151, 153, 154
vPC = 155
vSEL = 156
sCD = 36
sW1, sW2_ = 32, 28
sWS, sWD, sWO, sX, sOUT = 24, 28, 32, 40, 20
sGU, sQK, sXN = 44, 46, 48
sM1, sREG, sAC, sW2, sK, sV, sQ, sH, sQS, sT = 52, 53, 54, 62, 63, 64, 65, 67, 68, 69
sSC = 70
sFQW, sFQP, sFHW, sFOW, sFP, sPF = 72, 73, 74, 75, 76, 77
sOS, sRES, sWO0, sACD = 4, 6, 8, 9
def srdt(d): return f"s[{d}:{d+3}]"
def M16(d, x, y, z=False): return f"v_mfma_f32_16x16x32_bf16 {R(d,4)}, {R(x,4)}, {R(y,4)}, " + ("0" if z else R(d, 4))
def M32(d, x, y, z=False): return f"v_mfma_f32_32x32x16_bf16 {R(d,16)}, {R(x,4)}, {R(y,4)}, " + ("0" if z else R(d, 16))
CPF = E("CPF", 7)
def code_pf(lbl, d=vOST): return [f"s_mov_b32 s{sT}, {lbl}-f_base", f"buffer_load_dword v{d}, v{vPC}, {srdt(sCD)}, s{sT} offen"]
def flag_store(s): return f"buffer_store_dword v{vTOK}, v{vFL}, {srdt(sWS)}, s{s} offen sc1"
def poll_load(s, off, tag): return f"buffer_load_dword v{vPD}, v{vPOLL}, {srdt(sWS)}, s{s} offen offset:{off} sc1 ;@{tag}"
def poll_check(lbl, tag): return [W(tag), f"v_cmp_ne_u32 vcc, v{vTOK}, v{vPD}", f"s_cbranch_vccnz {lbl}", f"{lbl}_back:"]
def poll_slow(lbl, s, off, st):
    return f"""{lbl}:
    s_mov_b32 s{sT}, 0
    {lbl}_1:
    s_sleep 1
    buffer_load_dword v{vPD}, v{vPOLL}, {srdt(sWS)}, s{s} offen offset:{off} sc1
    s_add_u32 s{sT}, s{sT}, 1
    s_waitcnt vmcnt(0)
    v_cmp_ne_u32 vcc, v{vTOK}, v{vPD}
    s_cmp_lt_u32 s{sT}, 0x8000
    s_cbranch_scc0 {lbl}_back
    s_cbranch_vccnz {lbl}_1
    s_branch {lbl}_back"""

SLOT = 24576; NS = E("NS", 6); REV = E("REV", 1); KEEP = E("KEEP", 7)
WF = 192; TMP = 216
PSET = [A0 + 192, A0 + 208, A0 + 224, A0 + 240, 160, 176, 240]
YSET = [16 * i for i in range(8)]
ORD2 = [0, 4, 2, 6]
def npair(S): return 12 if S < 16 else 8
def pair0(S): return 12 * S if S < 16 else 192 + 8 * (S - 16)
def pairdef(S, i):
    if S < 16: return [(i, 0), (i, 1)]
    if S == 31: return [([0, 1, 4, 5, 2, 3, 6, 7][i], 0), ([0, 1, 4, 5, 2, 3, 6, 7][i], 1)]
    return [(ORD2[i % 4], i // 4), (ORD2[i % 4] + 1, i // 4)]
def g1_reads(S, i):
    gp = pair0(S) + i; d = WF + 8 * (gp % 3); L = []
    for e, (f, kk) in enumerate(pairdef(S, i)):
        for q in range(2):
            L.append(f"ds_read_b64_tr_b16 {R(d+4*e+2*q,2)}, v{vRA + 4*(S % 2) + f % 4} offset:{(f // 4)*8192 + kk*4096 + q*512} ;@w{gp}")
    return L
def g1_dma(typ, S):
    L = []
    for kk in range(2):
        for p in range(3 if S < 16 else 2):
            isq = S < 16 and (typ == "C" or p == 0)
            L.append([f"s_add_u32 m0, s{sM1}, {(S % NS) * SLOT + p * 8192 + kk * 4096}",
                      f"buffer_load_dwordx4 v{vQK if isq else vGU}, {srdt(4 + 4*p if S < 16 else 16 + 4*p)}, s{sQK if isq else sGU} offen lds ;@d{S}"])
        if S == 15 and kk == 1: L[-1].append(f"s_mov_b32 s{sGU}, {31*32*7168 if REV else 0}"); continue
        if S >= 16 or typ == "A": L[-1].append(f"s_{'sub' if REV and S >= 16 else 'add'}_u32 s{sGU}, s{sGU}, {32*7168}")
        if S < 16: L[-1].append(f"s_add_u32 s{sQK}, s{sQK}, {32*6144}")
    return L
XSC = " sc1"
D1, R1, B2, R2, LEAD = E("D1", 4), E("R1", 1), E("B2", 12), E("R2", 2), E("LEAD", 3)
class XAlloc:
    def __init__(s): s.reg = {}; s.busy = {r: 0 for r in PSET + YSET}
    @staticmethod
    def need(n): return n & ~1 if (n < 32 or n >= 62) else n
    @staticmethod
    def rel(n): return (n | 1) + 1 if (n < 32 or n >= 62) else n + 1
    def take(s, n, now):
        kept = 32 - KEEP <= n < 32
        for r in (YSET + PSET if n < 32 - KEEP else PSET):
            if s.busy[r] <= now:
                s.busy[r] = s.rel(63 - n if kept else n); s.reg[n] = r
                if kept: s.reg[63 - n] = r
                return True
        return False
    @staticmethod
    def kb(n): return n if n < 32 else (63 - n if REV else n - 32)
    @staticmethod
    def tag(n): return f"x{63 - n if 32 <= n < 32 + KEEP else n}"
    def loads(s, n):
        L = [[None, f"buffer_load_dwordx4 {R(s.reg[n] + 4*tt, 4)}, v{vL16}, {srdt(sWS)}, s{sXN+tt} offen offset:{(s.kb(n) % 4)*1024}{XSC} ;@x{n}"] for tt in range(4)]
        if n < 63:
            d = s.kb(n + 1 + (KEEP if n == 31 else 0)) // 4 - s.kb(n) // 4
            for tt in range(4):
                if d: L[tt].append(f"s_{'add' if d > 0 else 'sub'}_u32 s{sXN+tt}, s{sXN+tt}, {4096*abs(d)}")
        return L
class Feed:
    def __init__(s, typ): s.typ = typ; s.x = XAlloc(); s.nx = 0; s.nd = 0; s.qx = []; s.qd = []
    def pop(s, h, lax, lad):
        S = h // 2
        if not s.qx and s.nx < 64 and s.x.need(s.nx) - h <= lax and s.x.take(s.nx, h): s.qx = s.x.loads(s.nx); s.lx = s.nx; s.nx += 1 + (KEEP if s.nx == 31 else 0)
        if not s.qd and s.nd < 32 and s.nd - S <= min(lad, NS - 1): s.qd = g1_dma(s.typ, s.nd); s.nd += 1
        if s.qx and (not s.qd or s.x.need(s.lx) < 2 * (s.nd - 1) - 0.5): return s.qx.pop(0)
        if s.qd: return s.qd.pop(0)
        return None
def g1_step(typ, S, fd, pre, vm, stream, first, btags, bpost, ev):
    n = npair(S); mf = []; fill = {g: [] for g in range(-1, 8 * n)}
    for i in range(n):
        r = g1_reads(S, i + 2) if i + 2 < n else (g1_reads(S + 1, i + 2 - n) if S < 31 else [])
        for q, x in enumerate(r): fill[8*i + ((4, 5, 6, 7) if i == n - 2 else (0, 1, 4, 5))[q]].append(x)
    if S < 31: fill[8*(n-2) + 3] += [W(f"d{S+1}", f"w{pair0(S) + n - 1}", *btags), "s_barrier"]
    for x in bpost: fill[8*(n-1) + 2].append(x)
    cap = E("CAP1", 10) if S < 16 else E("CAP2", 7)
    for hf in range(2):
        h = 2 * S + hf
        slots = [8*i + q for i in range(hf * n // 2, (hf + 1) * n // 2) for q in (2, 6) if (i, q) != (n - 2, 6) and not (bpost and (i, q) == (n - 1, 2))]
        ops = [x if isinstance(x, list) else [None, x] for x in vm[hf]]
        while len(ops) < min(cap, len(slots)):
            o = fd.pop(h, E("LAX1", 6) if S < 16 else E("LAX2", 6), min(E("LAD", 5), max(D1 - 1, D1 + (h - LEAD) // R1) - S))
            if o is None: break
            ops.append(o)
        assert len(ops) <= len(slots)
        for k, o in enumerate(ops):
            g = slots[(k * len(slots)) // len(ops)]
            if o[0]: fill[g - 1].append(o[0])
            fill[g].append(o[1])
            if o[2:]: fill[g].append(o[2]); fill[g + 1] += o[3:]
    if 1 <= S < 31:
        dl = (((S + 1) % NS) - ((S - 1) % NS)) * SLOT
        for q in range(4): fill[(0, 4, 8, 12)[q]].append(f"v_add_u32 v{vRA + 4*((S+1) % 2) + q}, 0x{dl & 0xffffffff:x}, v{vRA + 4*((S+1) % 2) + q}")
    for i in range(-1, n - 1):
        need = sorted({fd.x.tag(2*S + kk) for f, kk in pairdef(S, i + 1)})
        fill[8*i + 7].append(W(f"w{pair0(S) + i + 1}", *need))
    fill[-1] += pre
    for g, x in ev.items(): fill[g] += x
    for i in range(n):
        w = WF + 8 * ((pair0(S) + i) % 3); pd = pairdef(S, i)
        for tt, e in ([(q // 2, q % 2) for q in range(8)] if pd[0][0] == pd[1][0] else [(q % 4, q // 4) for q in range(8)]):
            f, kk = pd[e]
            x = fd.x.reg[2*S + kk] + 4 * tt
            c = (A0 if S < 16 else 0) + (f * 4 + tt) * 4
            z = S % 16 == 0 and kk == 0
            mf.append(M16(c, x, w + 4*e, z) if (typ == "C" and S < 16 and f < 8) else M16(c, w + 4*e, x, z))
    return weave2(mf, fill, stream, first=first)

class Tmp:
    n = 0
    @classmethod
    def get(c): c.n += 1; return TMP + 16 + 4 * (c.n % 2)
def pack(srcs, mul, voff, soff, off, tag, pk=False):
    t = TMP; o = Tmp.get(); L = []
    def get(idx, base):
        if idx[0] < A0: return idx
        for j, i in enumerate(idx): L.append(f"v_accvgpr_read_b32 v{base+j}, {R(i)}")
        return [base + j for j in range(8)]
    g = get(srcs[:8], t)
    if mul == "gu":
        u = get(srcs[8:], t + 8)
        if pk:
            for j in range(0, 8, 2): L.append(f"v_pk_mul_f32 {R(t+j,2)}, {R(g[j],2)}, {R(u[j],2)}")
        else:
            for j in range(8): L.append(f"v_mul_f32 v{t+j}, v{g[j]}, v{u[j]}")
        g = [t + j for j in range(8)]
    elif mul:
        for j in range(8): L.append(f"v_mul_f32 v{t+j}, s{sSC}, v{g[j]}")
    for j in range(4): L.append(f"v_cvt_pk_bf16_f32 v{o+j}, v{g[2*j]}, v{g[2*j+1]}")
    L.append(f"buffer_store_dwordx4 {R(o,4)}, v{voff}, {srdt(sWS)}, s{soff} offen offset:{off} sc1 ;@{tag}")
    return L
def quad(base, f0, tt): return [base + ((f0 + e) * 4 + tt) * 4 + r for e in range(2) for r in range(4)]
def epi_qk(f0, mul):
    L = []
    for hh in range(2):
        for tt in range(4): L += pack(quad(A0, f0 + 2*hh, tt), mul, vST0 + tt % 2, sQS, (tt // 2) * 2048, "qkv")
        if hh == 0: L.append(f"s_add_u32 s{sQS}, s{sQS}, 131072")
    return L
def epi_h(base, fg, fu, js, off0, rev=False):
    L = []
    for n in range(4):
        tt = 3 - n if rev else n
        for j in js: L += pack(quad(base, fg + 2*j, tt) + quad(base, fu + 2*j, tt), "gu", vL16, sH, off0 + j * 1024, "hst", rev)
        if n < 3: L.append(f"s_{'sub' if rev else 'add'}_u32 s{sH}, s{sH}, {HO_T16}")
    return L
def epi1(typ):
    if typ == "A":
        return epi_qk(0, True), epi_h(A0, 4, 8, (0, 1), 0) + [f"s_sub_u32 s{sH}, s{sH}, {3*HO_T16 - 2048}"]
    L = epi_qk(8, False) + [f"s_add_u32 s{sQS}, s{sQS}, {V_OFF - K_OFF - 131072}"]
    for hh in range(4):
        for e in range(2):
            for t2 in range(2):
                L += pack([A0 + ((2*hh + e) * 4 + 2*t2 + b) * 4 + r for b in range(2) for r in range(4)], None, vSTV, sQS, t2 * 2048 + e * 256, "qkv")
        if hh < 3: L.append(f"s_add_u32 s{sQS}, s{sQS}, 131072")
    return L, []

aQ, aK, aV = A0, A0 + 32, A0 + 64
vS, vP, vO, vLs = 0, 32, 48, 112
def at_qk(t):
    s = vS + 16 * (t % 2); k = aK + 8 * ((t // 4) % 4); q = aQ + 8 * (t % 4)
    return [M32(s, k, q, True), M32(s, k + 4, q + 4)]
def at_pv(t, z=False):
    p = vP + 8 * (t % 2); v = aV + 8 * ((t // 4) % 4); o = vO + 16 * (t % 4); l = vLs + 4 * (t % 4)
    return [M32(o, v, p, z), M32(o, v + 4, p + 4), M16(l, vSEL, p, z), M16(l, vSEL, p + 4)]
def at_ld(kt, w, kk, off=None):
    d = (aK if w == "K" else aV) + 8 * (kt % 4) + 4 * kk
    if off is None: off = (kt % 2) * 2048
    return f"buffer_load_dwordx4 {R(d,4)}, v{vL16}, {srdt(sWS)}, s{sK if w == 'K' else sV} offen offset:{off + kk*1024} sc1 ;@{w}{kt}"
def at_q(i): return f"buffer_load_dwordx4 {R(aQ+4*i,4)}, v{vL16}, {srdt(sWS)}, s{sQ + i//4} offen offset:{(i%4)*1024} sc1 ;@Q{i//2}"
def at_period(t, mem, pre):
    s = vS + 16 * (t % 2); p = vP + 8 * (t % 2)
    Ex = [f"v_exp_f32 v{s+i}, v{s+i}" for i in range(16)]
    C = [f"v_cvt_pk_bf16_f32 v{p+i}, v{s+2*i}, v{s+2*i+1}" for i in range(8)]
    q = at_qk(t + 1) if t < 127 else [None, None]
    v = at_pv(t - 1, t <= 4) if t > 0 else [None] * 4
    mem = mem + [[]] * (6 - len(mem))
    L = list(pre)
    L += [q[0]] + mem[0] + Ex[0:4]
    L += [q[1]] + mem[1] + [Ex[4], C[0], Ex[5], C[1], Ex[6]]
    L += [v[0]] + mem[2] + [Ex[7], C[2], Ex[8], Ex[9], C[3]]
    L += [v[2]] + mem[4] + [Ex[10], Ex[11], C[4]]
    L += [v[1]] + mem[3] + [Ex[12], Ex[13], C[5], Ex[14], Ex[15]]
    L += [v[3]] + mem[5] + [C[6], C[7]]
    return [x for x in L if x]

REG = 40960; RG = 10; NL = 8
VPOS = [0, 3, 5, 8, 11, 13]
ASET = []
for i in range(16): ASET.append(160 + 16 * VPOS.index(i) if i in VPOS else A0 + 96 + 16 * (i - sum(v < i for v in VPOS)))
WF2 = A0 + 40
EX_OFF = 48 << 20; FX = FLAG_OFF + 196608
sEXW, sEXR = sAC + 4, sAC + 6
sD4, sD2, sE4, sE2, sRC = 44, 45, 46, 47, 48
DL = E("DL", 6)
RD2 = [[vR2, vR2 + 1, vSTV, vQK], [vRA + 4, vRA + 5, vRA + 7, vST1]]
class G2:
    def __init__(s, NH):
        s.NH = NH; s.n = n = NH + 8
        s.P = [(k, h, q) for k in range(n - NL) for h in (1, 0) for q in range(2)]
        s.P += [(k, 1, q) for k in range(n - NL, n) for q in range(2)] + [(k, 0, q) for q in range(2) for k in range(n - NL, n)]
    def act(s, k, t): return f"buffer_load_dwordx4 {R(ASET[k % 16] + 4*t, 4)}, v{vL16}, {srdt(sWS)}, s{sAC+t} offen offset:{((k if k < s.NH else k - s.NH) % 4)*1024} sc1 ;@a{k}"
    def aadv(s, k, t):
        if k == s.NH - 1: d = f"s{sACD}"
        elif k == s.NH + 3: d = "4096"
        elif k < s.NH and k % 4 == 3: d = f"s{sD4 if s.NH - k > 3 else sD2}"
        else: return []
        return [f"s_add_u32 s{sAC+t}, s{sAC+t}, {d}"]
    def dma(s, k, i): return [f"s_add_u32 m0, s{sREG}, {(k % RG) * 4096 + i * 1024}",
                              f"buffer_load_dwordx4 v{vDA+i}, {srdt(sWD if k < s.NH else sWO)}, s{sW2} offen lds ;@e{k}"]
    def dadv(s, k):
        if k == s.NH - 1: return [f"s_mov_b32 s{sW2}, s{sWO0}"]
        return [f"s_add_u32 s{sW2}, s{sW2}, " + (f"s{sE4 if s.NH - k > 3 else sE2}" if k < s.NH and k % 4 == 3 else "65536")]
    def rd(s, i):
        k, h, q = s.P[i]
        return [f"ds_read_b64_tr_b16 {R(WF2 + 8*(i % 3) + 4*e + 2*c, 2)}, v{RD2[h][2*q + e]} offset:{(k % RG)*4096 + c*2048} ;@r{i}" for e in range(2) for c in range(2)]
    def loop(z, pre, vm, streams, bud):
        out = []; P = z.P; n = len(P); stream = []
        for i, (s, h, q) in enumerate(P):
            fill = {g: [] for g in range(-1, 9)}
            fill[-1] = pre.get(i, []); fill[0] = []
            bar = i + 2 < n and P[i + 2][1:] == (1, 0) and P[i + 2][0] % 2 == 0
            if i + 2 < n:
                for k, x in enumerate(z.rd(i + 2)): fill[((4, 5, 6, 7) if bar else (0, 1, 4, 5))[k]].append(x)
            if bar: fill[3] += [W(f"e{P[i+2][0] + 1}", f"r{i+1}"), "s_barrier"]
            for g in ((2,) if bar else (2, 6)):
                o = vm.get(i, [])
                if o:
                    o = o.pop(0)
                    if o[0]: fill[g - 1].append(o[0])
                    fill[g].append(o[1]); fill[g] += o[2:3]; fill[g + 1] += o[3:]
            assert not vm.get(i), i
            if i + 1 < n: fill[7].append(W(f"r{i+1}", f"a{P[i+1][0]}"))
            mf = []
            for e in range(2):
                for t in ((2, 3, 0, 1) if s == z.n - 1 else range(4)):
                    mf.append(M16(64*h + (t*4 + 2*q + e) * 4, WF2 + 8*(i % 3) + 4*e, ASET[s % 16] + 4*t, s == 0))
            first = 0
            if i in streams: assert not stream; first, stream = streams[i]
            out += weave2(mf, fill, stream, first=first, budget=bud.get(i, 16))
        return out + stream
    def code(z, name, SO, SP2, SC2, AE):
        t_ = Asm(); NH, n = z.NH, z.n
        free = [ASET[k % 16] for k in range(n - 16, n - 8) if k % 16 in VPOS]
        XR, XF = free[0], 96
        Y = [free[1] + 4*c for c in range(4)] + [free[2], free[2] + 4]
        pre = {0: [W("r0", "a0")]}; vm = {}; streams = {}
        streams[0] = (2, [f"s_mul_i32 s10, s{sD4}, {NH//4 - 1}", f"s_sub_u32 s{sACD}, s{sACD}, s10"] + ([f"s_sub_u32 s{sACD}, s{sACD}, s{sD2}"] if NH % 4 else []))
        aq = [[None, z.act(s, t)] + z.aadv(s, t) for s in range(16, n) for t in range(4)]; na = 0; nh = 4 * (NH - 16)
        cps = {E("CP2", 6): 12, 13: 24, 25: 36}
        for s in range(NH):
            ex = []; p = pre.setdefault(4*s, [])
            if s == SO: p.append(W("ost")); ex.append([None, flag_store(sFOW), f"s_add_u32 s{sFP}, s{sFP}, {FO - FH}"])
            p.append(f"{name}g{s}:")
            if CPF & 2 and s in cps and cps[s] < n - 4: ex.append(code_pf(f"{name}p{4*cps[s]}", vGU))
            if s == SP2: ex.append([None, poll_load(sFP, 0, "po")])
            if s == SC2: p += poll_check(f"{name}po", "po")
            dm = [z.dma(s + 8, i) + (z.dadv(s + 8) if i == 3 and s < NH - 1 else []) for i in range(4)]
            ns = 7 if s % 2 else 8
            want = -(-nh * s // (SC2 - 1)) if s < SC2 else nh - (-32 * (s - SC2 + 1) // (AE - SC2))
            while len(ex) < ns - 4 and na < min(want, nh + 32, 4 * s): ex.append(aq[na]); na += 1
            assert na >= min(4 * (s - 16 + 6), nh + 32), (NH, s, na)
            ops = []
            for k in range(4): ops += [dm[k]] + ex[k:k+1]
            sl = [4*s + k for k in range(4) for r in range(1 if s % 2 and k == 2 else 2)]
            for k, o in enumerate(ops): vm.setdefault(sl[(k * len(sl)) // len(ops)], []).append(o)
        assert na == nh + 32, (NH, na)
        for k in cps.values(): pre.setdefault(4*k, []).append(f"{name}p{4*k}:")
        i1 = 4 * NH + 2 * NL; XB = (n % RG) * 4096; m = len(z.P)
        for i in range(4): vm.setdefault(4*NH + 2 + i, []).append([None, f"buffer_load_dwordx4 {R(XR+4*i,4)}, v{vOA}, {srdt(sX)}, s{sRES + i//2} offen offset:{64*(i%2)} ;@xr"])
        pre.setdefault(i1, []).append(f"{name}own:")
        for k in range(-16, 16): pre.setdefault(i1 + k, []).append(f"{name}o{k+16}:")
        L = [f"ds_write_b128 v{vRA+6}, {R(96+4*k,4)} offset:{XB + 1024*k} ;@sw" for k in (0, 4, 1, 5, 2, 6, 3, 7)] + [W("sw"), "s_barrier"]
        streams[i1 - 1] = (2, L[:4]); L = L[4:]
        streams[i1 - 3] = (0, [W("xr"), "s_mov_b32 s10, 0xffff0000"] + [f"v_permlane16_swap_b32 v{XR+4*i+r}, v{XR+4*i+2+r}" for i in range(4) for r in range(2)])
        L += [f"ds_read_b128 {R(96+4*k,4)}, v{vRA+1} offset:{XB + 1024*k} ;@sr{k}" for k in range(8)]
        xm = lambda op, r, c, sb: f"buffer_{op}_dwordx{4 if c < 5 else 2} {R(r, 4 if c < 5 else 2)}, v{vL16}, {srdt(sWS)}, s{sb + c//4} offen offset:{1024*(c%4)} sc1"
        for d in range(16):
            if d % 2 == 0: L.append(W(f"sr{d//2}"))
            L += [f"v_add_f32 v{64+2*d+r}, v{64+2*d+r}, v{96+2*d+r}" for r in range(2)]
            c = d // 3
            if d % 3 == 2 or d == 15: L.append(f"v_mov_b32 v{64 + 4*c + d%3 + 1}, v{vTOK}")
            L.append(f"v_cvt_pk_bf16_f32 v{64 + 4*c + d%3}, v{64+2*d}, v{64+2*d+1}")
            if d % 3 == 2 or d == 15: L.append(xm("store", 64 + 4*c, c, sEXW))
        L += ["s_barrier"] + [x for i in range(16) for x in (f"v_lshlrev_b32 v{XF+2*i}, 16, v{XR+i}", f"v_and_b32 v{XF+2*i+1}, s10, v{XR+i}")]
        streams[i1] = (1, L); bud = {i: E("BA", 24) for i in range(i1, i1 + E("NA", 4))}
        wr = lambda k: f"ds_write_b128 v{vRA+6}, {R(32+4*k,4)} offset:{XB + 1024*k} ;@ow"
        rd = lambda k: f"ds_read_b128 {R(32+4*k,4)}, v{vRA+1} offset:{XB + 1024*k} ;@y{k}"
        L = [wr(k) for k in (0, 4, 1, 5)]
        for k in (0, 1, 4, 5): L += [f"v_add_f32 v{4*k+r}, v{4*k+r}, v{XF+4*k+r}" for r in range(4)]
        L = L[:12] + [W("ow"), "s_barrier"] + [rd(k) for k in (0, 1, 4, 5)] + L[12:]
        for k in (0, 1, 4, 5): L += [W(f"y{k}")] + [f"v_add_f32 v{4*k+r}, v{4*k+r}, v{32+4*k+r}" for r in range(4)]
        streams[i1 + NL] = (2, L)
        for i in range(i1 + NL, m - 1): bud[i] = E("BB", 16)
        for c in range(6): vm.setdefault(m - E("RP", 4) + c // 2, []).append([None, xm("load", Y[c], c, sEXR) + " ;@z"])
        t_.ext(z.loop(pre, vm, streams, bud))
        for k in (2, 6, 3, 7):
            if k in (2, 3): t_(f"s_mov_b32 s{sT}, 0" if k == 2 else "s_nop 2")
            t_(wr(k))
        t_(f"{name}lm:\n;stamp 6")
        for k in (2, 6, 3, 7):
            for r in (0, 2): t_(f"v_pk_add_f32 {R(4*k+r,2)}, {R(4*k+r,2)}, {R(XF+4*k+r,2)}")
        t_("s_waitcnt lgkmcnt(0)\ns_barrier")
        for k in (2, 3, 6, 7): t_(rd(k))
        tg = [Y[c] + 3 for c in range(5)] + [Y[5] + 1]
        t_(f"{name}xa:\n{name}x1:\ns_waitcnt vmcnt(0)")
        for op, r in (("min", 64), ("max", 65)): t_(f"v_{op}3_u32 v{r}, v{tg[0]}, v{tg[1]}, v{vTOK}")
        for k in (2, 4):
            for op, r in (("min", 64), ("max", 65)): t_(f"v_{op}3_u32 v{r}, v{tg[k]}, v{tg[k+1]}, v{r}")
        t_(f"v_cmp_ne_u32 vcc, v64, v65\ns_cbranch_vccnz {name}x0\n{name}x2:")
        for i in (0, 2, 1, 3):
            for r in range(4): y = Y[(4*i+r) // 3] + (4*i+r) % 3; t_(f"v_lshlrev_b32 v{64+2*r}, 16, v{y}\nv_and_b32 v{65+2*r}, s10, v{y}")
            for r in range(0, 8, 2): t_(f"v_pk_add_f32 {R(8*i+r,2)}, {R(8*i+r,2)}, {R(64+r,2)}")
            if i % 2:
                t_(W(f"y{2*i+1}"))
                for r in range(0, 8, 2): t_(f"v_pk_add_f32 {R(8*i+r,2)}, {R(8*i+r,2)}, {R(32+8*i+r,2)}")
            for r in (0, 2, 1, 3): t_(f"v_cvt_pk_bf16_f32 v{72+4*i+r}, v{8*i+2*r}, v{8*i+2*r+1}")
            t_(f"v_permlane16_swap_b32 v{72+4*i}, v{72+4*i+2}\ns_nop 0\nv_permlane16_swap_b32 v{72+4*i+1}, v{72+4*i+3}")
            t_(f"buffer_store_dwordx4 {R(72+4*i,4)}, v{vOA}, {srdt(sOUT)}, s{sRES + i//2} offen offset:{64*(i%2)}")
        t_(f"{name}end:\ns_endpgm")
        e = Asm()
        e(f"{name}x0:\ns_add_u32 s{sT}, s{sT}, 1\ns_cmp_lt_u32 s{sT}, 0x8000\ns_cbranch_scc0 {name}x2")
        if E("XP", 0):
            e(xm("load", Y[5], 5, sEXR)); e(f"s_waitcnt vmcnt(0)\nv_cmp_ne_u32 vcc, v{vTOK}, v{tg[5]}\ns_cbranch_vccnz {name}x0")
            for c in range(5): e(xm("load", Y[c], c, sEXR))
        else:
            for c in range(6): e(xm("load", Y[c], c, sEXR))
        e(f"s_branch {name}x1")
        e(poll_slow(f"{name}po", sFP, 0, 9))
        return t_.L, e.L

def fused(name):
    a = Asm()
    a(f"""s_cmp_ge_u32 s2, 256
    s_cbranch_scc0 {name}_go
    s_endpgm
    {name}_go:
    s_load_dwordx2 s[{sX}:{sX+1}], s[0:1], 0
    s_load_dwordx2 s[{sWS}:{sWS+1}], s[0:1], 72
    s_load_dwordx2 s[54:55], s[0:1], 8
    s_load_dwordx4 s[56:59], s[0:1], 32
    s_getpc_b64 s[{sCD}:{sCD+1}]
    f_base:
    v_lshrrev_b32 v1, 6, v0
    v_and_b32 v9, 15, v0
    v_lshlrev_b32 v{vPF}, 7, v9
    s_mov_b32 s{sCD+2}, f_last-f_base
    s_mov_b32 s{sCD+3}, 0x00020000
    v_lshl_add_u32 v{vPC}, v1, 11, v{vPF}
    v_readfirstlane_b32 s3, v1
    v_and_b32 v2, 63, v0""")
    if CPF & 1: a(f"buffer_load_dword v{vOST}, v{vPC}, {srdt(sCD)}, 0 offen")
    a(f"""v_lshlrev_b32 v{vL16}, 4, v2
    s_lshl_b32 s{sPF}, s2, 2
    s_mov_b32 s{sX+2}, {2048*2048}
    s_add_u32 s{sPF}, s{sPF}, s3
    s_mov_b32 s{sX+3}, s{sCD+3}
    s_lshl_b32 s45, s{sPF}, 12
    s_lshr_b32 s61, s2, 3
    s_and_b32 s62, s61, 3
    s_mov_b32 s70, {name}_lbA-f_base
    s_cmp_eq_u32 s62, 3
    s_cselect_b32 s70, {name}_lbC-f_base, s70
    s_mov_b32 s{sWS+2}, {WS_BYTES}
    s_mov_b32 s{sWS+3}, s{sCD+3}
    s_mov_b32 s47, {FO}
    s_and_b32 s60, s2, 7
    s_lshr_b32 s63, s61, 2
    s_mul_i32 s64, s60, 7
    s_lshl_b32 s65, s62, 1
    s_add_u32 s64, s64, s65
    s_lshl_b32 s65, s64, 7
    s_lshl_b32 s66, s60, 8
    s_waitcnt lgkmcnt(0)""")
    for i in range(4): a(f"buffer_load_dwordx4 v[{16+4*i}:{19+4*i}], v{vL16}, {srdt(sX)}, s45 offen offset:{1024*i} ;@lx{i//2}")
    a(f"buffer_load_dword v{vTOK}, off, {srdt(sWS)}, s47 sc1 ;@ep")
    if CPF & 1: a(f"buffer_load_dword v{vOST}, v{vPC}, {srdt(sCD)}, s70 offen")
    if CPF & 4: a(f"v_and_b32 v3, 1, v2\ns_lshl_b32 s70, s{sPF}, 7\nv_lshlrev_b32 v3, 17, v3\nbuffer_load_dword v{vOST}, v3, {srdt(sCD)}, s70 offen")
    a(f"s_movk_i32 s67, 7168\ns_movk_i32 s68, 6144\ns_cmp_eq_u32 s62, 3\ns_cbranch_scc1 {name}_sC")
    a("s_lshl_b32 s70, s62, 7\ns_cmp_eq_u32 s62, 2\ns_cselect_b32 s70, 2176, s70\ns_add_u32 s70, s70, s66")
    srd(a, 4, 54, 1024*6144, "s70"); srd(a, 8, 56, 1024*7168, "s65"); srd(a, 12, 58, 1024*7168, "s65")
    a(f"s_add_u32 s65, s65, 128\ns_cmp_eq_u32 s3, 0\ns_cselect_b32 s71, s68, s67\ns_branch {name}_sJ\n{name}_sC:")
    for p, o in enumerate((4096, 4224, 2048)):
        a(f"s_add_u32 s70, s66, {o}"); srd(a, 4 + 4*p, 54, 1024*6144, "s70")
    a(f"s_mov_b32 s71, s68\n{name}_sJ:")
    a(f"""s_cmp_eq_u32 s3, 0
    s_cselect_b64 s[{sW1}:{sW1+1}], s[4:5], s[8:9]
    s_cselect_b64 s[{sW1+2}:{sW1+3}], s[6:7], s[10:11]
    s_cmp_ge_u32 s3, 2
    s_cselect_b64 s[{sW1}:{sW1+1}], s[12:13], s[{sW1}:{sW1+1}]
    s_cselect_b64 s[{sW1+2}:{sW1+3}], s[14:15], s[{sW1+2}:{sW1+3}]
    v_lshl_add_u32 v3, s63, 6, v2
    s_cmp_eq_u32 s3, 3
    s_cselect_b32 s70, 8, s63
    v_mul_u32_u24 v{TMP}, s71, v3
    s_lshl_b32 s71, s71, 9
    s_cmp_ge_u32 s70, {D1}
    v_mov_b32 v{TMP+2}, s71
    s_cbranch_scc1 {name}_w0
    buffer_load_dword v{vOST}, v{TMP}, {srdt(sW1)}, 0 offen ;@-
    v_add_u32 v{TMP}, v{TMP+2}, v{TMP}
    {name}_w0:""")
    srd(a, 16, 56, 1024*7168, "s65"); srd(a, 20, 58, 1024*7168, "s65")
    a(f"""s_bitcmp1_b32 s3, 0
    s_cselect_b64 s[{sW2_}:{sW2_+1}], s[20:21], s[16:17]
    s_mov_b64 s[{sW2_+2}:{sW2_+3}], s[18:19]
    s_lshr_b32 s70, s3, 1
    s_lshl1_add_u32 s70, s63, s70
    s_lshl_b32 s70, s70, 6
    s_{'sub' if REV else 'add'}_u32 s70, {960 if REV else 0}, s70
    v_add_u32 v3, s70, v2
    v_mul_u32_u24 v{TMP+1}, s67, v3
    s_lshl_b32 s{sM1}, s3, 10
    v_lshrrev_b32 v3, 3, v2
    v_lshl_add_u32 v3, v1, 3, v3
    v_bfe_u32 v4, v2, 4, 1
    v_and_b32 v5, 1, v1
    v_lshl_or_b32 v4, v5, 1, v4
    v_lshlrev_b32 v4, 1, v4
    v_and_b32 v5, 7, v2
    v_xor_b32 v4, v4, v5
    v_lshlrev_b32 v4, 4, v4
    v_mad_u32_u24 v{vGU}, v3, s67, v4
    v_mad_u32_u24 v{vQK}, v3, s68, v4
    s_lshl_b32 s69, s63, 4
    s_lshl_b32 s70, s3, 2
    s_add_u32 s69, s69, s70
    s_lshl_b32 s{sXN}, s69, 15
    s_add_u32 s{sXN+1}, s{sXN}, 0x8000
    s_add_u32 s{sXN+2}, s{sXN}, 0x10000
    s_add_u32 s{sXN+3}, s{sXN}, 0x18000
    s_mov_b32 s{sGU}, 0
    s_mov_b32 s{sQK}, 0
    s_lshl_b32 s47, s69, 8
    s_add_u32 s47, s47, {FL}""")
    def consts(b):
        b(f"""v_lshrrev_b32 v3, 4, v2
        v_bfe_u32 v4, v2, 2, 2
        v_lshl_add_u32 v5, v3, 3, v4
        v_lshlrev_b32 v5, 7, v5
        v_and_b32 v6, 3, v2
        v_lshl_add_u32 v5, v6, 3, v5
        v_bfe_u32 v7, v2, 3, 2""")
        for cb in range(4): b(f"v_xor_b32 v8, {cb}, v7\nv_lshl_add_u32 v{vRA+cb}, v8, 5, v5\nv_add_u32 v{vRA+4+cb}, {SLOT}, v{vRA+cb}")
        b(f"""s_mul_i32 s{sREG}, s3, {REG}
        v_lshrrev_b32 v5, 2, v2
        v_lshlrev_b32 v5, 7, v5
        v_lshl_add_u32 v5, v6, 3, v5
        s_and_b32 s70, s60, 1
        s_and_b32 s71, s3, 1
        s_lshl1_add_u32 s70, s70, s71
        s_mul_i32 s70, s70, {REG}
        v_add_u32 v5, s70, v5
        v_lshl_add_u32 v{vR2}, v7, 5, v5
        v_bfe_u32 v7, v2, 3, 1
        v_and_b32 v9, 15, v2
        v_lshlrev_b32 v5, 9, v3
        v_lshl_add_u32 v{vSTV}, v9, 4, v5
        v_and_b32 v10, 7, v2
        v_lshl_add_u32 v5, v10, 4, v5
        v_lshl_add_u32 v5, v7, 8, v5
        s_cmp_ge_u32 s62, 2
        s_cselect_b64 vcc, -1, 0
        s_cselect_b32 s70, 1, 2
        s_lshl_b32 s70, s70, 7
        v_cndmask_b32 v{vST0}, v{vSTV}, v5, vcc
        v_add_u32 v{vST1}, s70, v{vST0}
        v_mov_b32 v5, 0x7ffffff0
        v_cmp_eq_u32 vcc, 0, v2
        v_and_b32 v8, 31, v2
        s_nop 0
        v_cndmask_b32 v{vFL}, v5, v2, vcc
        v_lshlrev_b32 v{vPOLL}, {FSQ}, v8
        v_bfe_u32 v11, v2, 4, 1
        v_lshrrev_b32 v5, 3, v2
        v_lshlrev_b32 v8, 1, v3
        v_xor_b32 v8, v8, v10
        v_lshlrev_b32 v8, 4, v8
        v_lshl_add_u32 v{vDA}, v5, 11, v8
        v_add_u32 v{vDA+1}, 0x4000, v{vDA}
        v_add_u32 v{vDA+2}, 0x8000, v{vDA}
        v_add_u32 v{vDA+3}, 0xc000, v{vDA}
        v_lshlrev_b32 v5, 11, v9
        v_lshl_add_u32 v5, v11, 5, v5
        v_lshrrev_b32 v8, 5, v2
        v_lshl_add_u32 v{vOA}, v8, 4, v5
        v_bfe_u32 v5, v2, 2, 1
        v_xor_b32 v5, v5, v11
        v_or_b32 v5, v5, v6
        v_mov_b32 v8, 0x3f803f80
        v_cmp_eq_u32 vcc, 0, v5""")
        b(f"""s_mul_i32 s{sH}, s69, {HO_T16}
        s_lshl_b32 s70, s64, 11
        s_add_u32 s{sH}, s{sH}, s70
        s_add_u32 s{sH}, s{sH}, {HO_OFF}
        v_cndmask_b32 v{vSEL}, 0, v8, vcc
        v_cndmask_b32 v{vSEL+1}, 0, v8, vcc
        v_cndmask_b32 v{vSEL+2}, 0, v8, vcc
        v_cndmask_b32 v{vSEL+3}, 0, v8, vcc
        s_lshl_b32 s{sQS}, s69, 10
        s_lshl_b32 s70, s60, 19
        s_add_u32 s{sQS}, s{sQS}, s70
        s_lshl_b32 s70, s62, 18
        s_add_u32 s70, s70, {Q_OFF}
        s_cmp_eq_u32 s62, 2
        s_cselect_b32 s70, {K_OFF + 2*131072}, s70
        s_cmp_eq_u32 s62, 3
        s_cselect_b32 s70, {K_OFF}, s70
        s_add_u32 s{sQS}, s{sQS}, s70
        s_lshl_b32 s{sFQP}, s60, 12
        s_add_u32 s{sFQP}, s{sFQP}, {FQ}
        s_lshl_b32 s70, s61, {FSQ}
        s_add_u32 s{sFQW}, s{sFQP}, s70
        s_lshl_b32 s54, s60, 2
        s_add_u32 s54, s54, s62
        s_lshr_b32 s55, s3, 1
        s_and_b32 s56, s3, 1
        s_lshl_b32 s57, s63, 1
        s_add_u32 s58, s57, s55
        s_lshl_b32 s58, s58, 10
        s_add_u32 s58, s58, s56
        s_lshl_b32 s59, s54, {FSH-2}
        s_add_u32 s58, s58, s59
        s_lshl_b32 s58, s58, 2
        s_add_u32 s{sFHW}, s58, {FH}
        s_add_u32 s57, s57, s56
        s_lshl_b32 s58, s57, 10
        s_add_u32 s58, s58, s55
        s_add_u32 s58, s58, s59
        s_lshl_b32 s58, s58, 2
        s_add_u32 s{sFOW}, s58, {FO}
        s_cmp_lt_u32 s62, 2
        s_cselect_b32 s{sSC}, {f2h(QSCALE)}, 1.0
        s_mov_b32 s{sSC+1}, s{sSC}
        s_lshl_b32 s58, s54, 17
        s_lshl_b32 s59, s57, 13
        s_add_u32 s59, s59, s58
        s_add_u32 s59, s59, {Q_OFF}
        s_lshl_b32 s69, s55, 12
        s_add_u32 s{sQ+1}, s59, s69
        s_xor_b32 s{sQ}, s{sQ+1}, 4096
        s_lshl_b32 s69, s55, 16
        s_add_u32 s58, s58, s69
        s_add_u32 s{sK}, s58, {K_OFF}
        s_add_u32 s{sV}, s58, {V_OFF}""")
    def layernorm(a):
        X, T, D, LB = 32, 64, 80, NS * SLOT
        a(f"""v_and_b32 v3, 7, v2
        v_lshlrev_b32 v4, 1, v1
        v_xor_b32 v4, v4, v3
        v_xor_b32 v5, 1, v4
        v_lshlrev_b32 v6, 7, v2
        v_add_u32 v6, {LB}, v6
        v_lshl_add_u32 v112, v4, 4, v6
        v_lshl_add_u32 v113, v5, 4, v6
        v_lshrrev_b32 v4, 3, v0
        v_and_b32 v5, 7, v4
        v_xor_b32 v5, v5, v3
        v_lshlrev_b32 v5, 4, v5
        v_lshl_add_u32 v5, v4, 7, v5
        v_add_u32 v114, {LB}, v5
        v_lshlrev_b32 v5, 4, v3
        v_lshl_add_u32 v115, v4, 8, v5
        v_add_u32 v116, 0x2000, v115
        v_add_u32 v117, 0x4000, v115
        v_add_u32 v118, 0x6000, v115
        s_lshr_b32 s71, s2, 1
        s_lshl_b32 s71, s71, 15
        s_and_b32 s45, s2, 1
        s_lshl_b32 s45, s45, 7
        s_add_u32 s71, s71, s45
        s_mov_b32 s45, 0xffff0000
        s_mov_b32 s{sT}, 0x9e3779b1""")
        for row in range(2):
            a(W(f"lx{row}")); a(f"f_lx{row}:")
            for j in range(8): a(f"v_lshlrev_b32 v{X+16*row+2*j}, 16, v{16+8*row+j}\nv_and_b32 v{X+16*row+2*j+1}, s45, v{16+8*row+j}")
            t = T + 8*row
            for j in range(0, 8, 2): a(f"v_pk_add_f32 {R(t+j,2)}, {R(X+16*row+j,2)}, {R(X+16*row+8+j,2)}")
            for st in (4, 2):
                for j in range(0, st, 2): a(f"v_pk_add_f32 {R(t+j,2)}, {R(t+j,2)}, {R(t+j+st,2)}")
            a(f"v_add_f32 v{t}, v{t}, v{t+1}")
        wave_allsum(a, [64, 72], [65, 73])
        a(f"v_mul_f32 v64, {f2h(1.0/1024)}, v64\nv_mul_f32 v72, {f2h(1.0/1024)}, v72")
        for row in range(2):
            for j in range(0, 16, 2): a(f"v_pk_add_f32 {R(D+16*row+j,2)}, {R(X+16*row+j,2)}, {R(64+8*row,2)} op_sel_hi:[1,0] neg_lo:[0,1] neg_hi:[0,1]")
            for j in range(0, 4, 2): a(f"v_pk_mul_f32 {R(66+8*row+j,2)}, {R(D+16*row+j,2)}, {R(D+16*row+j,2)}")
            for j in range(4, 16, 2): a(f"v_pk_fma_f32 {R(66+8*row+j%4,2)}, {R(D+16*row+j,2)}, {R(D+16*row+j,2)}, {R(66+8*row+j%4,2)}")
            a(f"v_add_f32 v{66+8*row}, v{66+8*row}, v{67+8*row}\nv_add_f32 v{68+8*row}, v{68+8*row}, v{69+8*row}\nv_add_f32 v{66+8*row}, v{66+8*row}, v{68+8*row}")
        wave_allsum(a, [66, 74], [67, 75])
        a(f"""v_mul_f32 v66, {f2h(1.0/1024)}, v66
        v_mul_f32 v74, {f2h(1.0/1024)}, v74
        v_cvt_pk_bf16_f32 v64, v64, v72
        v_cvt_pk_bf16_f32 v66, v66, v74
        v_and_b32 v72, s45, v64
        v_lshlrev_b32 v64, 16, v64
        v_and_b32 v74, s45, v66
        v_lshlrev_b32 v66, 16, v66
        v_add_f32 v66, {f2h(1e-5)}, v66
        v_add_f32 v74, {f2h(1e-5)}, v74
        v_cvt_pk_bf16_f32 v66, v66, v74
        v_and_b32 v74, s45, v66
        v_lshlrev_b32 v66, 16, v66
        v_sqrt_f32 v74, v74
        v_sqrt_f32 v66, v66
        s_nop 0
        v_cvt_pk_bf16_f32 v66, v66, v74
        v_and_b32 v74, s45, v66
        v_lshlrev_b32 v66, 16, v66
        v_rcp_f32 v74, v74
        v_rcp_f32 v66, v66""")
        for row in range(2):
            b = X + 16*row
            for j in range(0, 16, 2): a(f"v_pk_add_f32 {R(b+j,2)}, {R(b+j,2)}, {R(64+8*row,2)} op_sel_hi:[1,0] neg_lo:[0,1] neg_hi:[0,1]")
            for j in range(8): a(f"v_cvt_pk_bf16_f32 v{D+16*row+j}, v{b+2*j}, v{b+2*j+1}")
            for j in range(8): a(f"v_lshlrev_b32 v{b+2*j}, 16, v{D+16*row+j}\nv_and_b32 v{b+2*j+1}, s45, v{D+16*row+j}")
            for j in range(0, 16, 2): a(f"v_pk_mul_f32 {R(b+j,2)}, {R(b+j,2)}, {R(66+8*row,2)} op_sel_hi:[1,0]")
            for j in range(8): a(f"v_cvt_pk_bf16_f32 v{D+16*row+8+j}, v{b+2*j}, v{b+2*j+1}")
            a(f"ds_write_b128 v{112+row}, v[{D+16*row+8}:{D+16*row+11}]\nds_write_b128 v{112+row}, v[{D+16*row+12}:{D+16*row+15}] offset:8192 ;@lw")
        a(W("ep", "lw")); a("s_barrier")
        for i in range(4): a(f"ds_read_b128 v[{16+4*i}:{19+4*i}], v114 offset:{4096*i} ;@lr{i}")
        a(f"v_mul_lo_u32 v{vTOK}, v{vTOK}, s{sT}\nv_add_u32 v{vTOK}, 0x7f4a7c15, v{vTOK}")
        for i in range(4):
            a(W(f"lr{i}")); a(f"buffer_store_dwordx4 v[{16+4*i}:{19+4*i}], v{115+i}, {srdt(sWS)}, s71 offen sc1 ;@xst")
    def late():
        L = f"""s_lshl_b32 s{sOS}, s57, 1
        s_add_u32 s{sOS}, s{sOS}, s55
        s_mul_i32 s{sOS}, s{sOS}, {4*HO_T16}
        s_lshl_b32 s{sT}, s54, 10
        s_add_u32 s{sOS}, s{sOS}, s{sT}
        s_add_u32 s{sOS}, s{sOS}, {HO_OFF + 112*1024}
        s_add_u32 s{sOS+1}, s{sOS}, {2*HO_T16}
        s_lshr_b32 s10, s60, 1
        s_lshl_b32 s10, s10, 2
        s_lshr_b32 s11, s61, 3
        s_add_u32 s10, s10, s11
        s_lshl_b32 s{sFP}, s10, 12
        s_add_u32 s{sFP}, s{sFP}, {FH}
        s_and_b32 s11, s61, 7
        s_lshl_b32 s11, s11, 8
        s_and_b32 s13, s60, 1
        s_lshl_b32 s12, s10, 2
        s_add_u32 s12, s12, s3
        s_lshl_b32 s12, s12, 16
        s_add_u32 s12, s12, s11
        s_lshl_b32 s14, s13, 7
        s_add_u32 s{sRES}, s12, s14
        s_add_u32 s{sRES+1}, s{sRES}, 32768
        s_lshl_b32 s14, s55, 7
        s_add_u32 s11, s11, s14
        s_mul_i32 s14, s13, 52
        s_mul_i32 s15, s56, 56
        s_add_u32 s14, s14, s15
        s_lshl1_add_u32 s13, s13, s56
        s_lshl_b32 s{sW2}, s14, 16
        s_add_u32 s{sW2}, s{sW2}, s11
        s_lshl_b32 s{sWO0}, s13, 19
        s_add_u32 s{sWO0}, s{sWO0}, s11
        s_lshl3_add_u32 s{sACD}, s13, 112
        s_sub_u32 s{sACD}, s{sACD}, s14
        s_lshl_b32 s{sACD}, s{sACD}, 10
        s_lshl1_add_u32 s10, s10, s55
        s_mul_i32 s10, s10, {4*HO_T16}
        s_lshl_b32 s11, s14, 10
        s_add_u32 s10, s10, s11
        s_add_u32 s10, s10, {HO_OFF}
        s_mul_i32 s11, s56, {2*HO_T16}
        s_sub_u32 s12, {2*HO_T16}, s11
        s_add_u32 s{sAC}, s10, s11
        s_add_u32 s{sAC+1}, s{sAC}, {HO_T16}
        s_add_u32 s{sAC+2}, s10, s12
        s_add_u32 s{sAC+3}, s{sAC+2}, {HO_T16}
        s_lshl2_add_u32 s10, s2, s3
        s_lshl_b32 s11, s10, 13
        s_add_u32 s{sEXW}, s11, {EX_OFF}
        s_add_u32 s{sEXW+1}, s{sEXW}, 4096
        s_xor_b32 s{sEXR}, s{sEXW}, 32768
        s_add_u32 s{sEXR+1}, s{sEXR}, 4096""".split("\n")
        L = [x.strip() for x in L]
        return L
    consts(a)
    a("v_and_b32 v3, 7, v2\nv_lshlrev_b32 v119, 7, v3\nv_bfe_u32 v3, v2, 3, 2\nv_lshl_add_u32 v119, v3, 2, v119")
    layernorm(a)
    a(f"s_lshl_b32 s45, s2, 5\ns_add_u32 s45, s45, s3\ns_lshl_b32 s45, s45, 2\ns_add_u32 s45, s45, {FL}\ns_lshl_b32 s{sPF}, s{sPF}, 11\ns_mov_b32 s{sT}, 0")
    a(f"s_and_b32 s71, s61, 3\ns_cmp_eq_u32 s71, 3\n{name}_la:")
    a(W("xst")); a(flag_store(45)); a(f"s_cbranch_scc1 {name}_lbC")
    pro = a.L
    bodies = {}; ool = {}
    for typ in "AC":
        b = Asm()
        fd = Feed(typ)
        def dmas(n):
            L = []
            for k in range(n): o = fd.pop(0, -1, 5); L.append([o[0], "s_nop 0"] + o[1:])
            return L
        b(f"{name}_lb{typ}:")
        b.ext(sum(dmas(E("PD2", 12)), []))
        b(f"""s_lshr_b32 s71, s61, 2
        s_cmp_eq_u32 s3, 3
        s_cselect_b32 s45, 0, 0x101
        s_lshl_b32 s45, s45, s71
        s_lshr_b32 s45, s45, {D1}
        s_add_u32 s71, s71, 16
        s_bitset1_b32 s45, s71
        s_and_b32 s71, s61, 3
        s_lshl_b32 s71, s71, 15
        s_add_u32 s71, s71, s{sXN}
        ;stamp 0
        s_branch {name}_pm{typ}
        {name}_pl{typ}:
        s_sleep {E("SLP", 2)}
        {name}_pm{typ}:
        buffer_load_dword v{vPD}, v119, {srdt(sWS)}, s47 offen sc1
        s_add_u32 s{sT}, s{sT}, 1
        s_cmp_lt_u32 s{sT}, 0x8000
        s_waitcnt vmcnt(0)
        v_cmp_ne_u32 vcc, v{vTOK}, v{vPD}
        s_cbranch_scc0 {name}_pk{typ}
        s_cbranch_vccnz {name}_pl{typ}
        {name}_pk{typ}:
        ;stamp 1""")
        xw = [[int(y) for y in x.split(":")] for x in os.environ.get("XW", "").split(",") if x]
        xev = {}
        for k, (h, e) in enumerate(xw):
            d = xw[k + 1][1] - e if k + 1 < len(xw) else 0
            xev[h] = [None, f"buffer_load_dword v{vOST}, v{vPD}, {srdt(sWS)}, s47 offen sc1"] + ([f"s_add_u32 s47, s47, {(d * 8192) & 0xffffffff}"] if d else [])
        if xw: b(f"v_lshlrev_b32 v{vPD}, 3, v{vL16}\ns_add_u32 s47, s71, {xw[0][1] * 8192}")
        if -1 in xev: b.ext(xev[-1][1:])
        for k in range(4 * E("PX", 4)):
            b.ext(fd.pop(0, 9, -1)[1:])
            if k == 7: b("s_barrier"); b.ext(g1_reads(0, 0) + g1_reads(0, 1))
        e_qkv, e_h = epi1(typ)
        def groups(L):
            G = [[]]
            for x in L:
                if G[-1] and any("buffer_store" in y for y in G[-1]) and cls(x) == "valu": G.append([])
                G[-1].append(x)
            return G if L else []
        gq, gh = groups(e_qkv), groups(e_h)
        NQ, NH = E("NQ" + typ, 6), E("NH", 7)
        plan = {16 + k: sum(gq[(k * len(gq)) // NQ:((k + 1) * len(gq)) // NQ], []) for k in range(NQ)}
        plan[16 + NQ - 1].append(";qdone")
        for k in range(NH): plan[16 + NQ + k] = sum(gh[(k * len(gh)) // NH:((k + 1) * len(gh)) // NH], [])
        stream = []; qdone = None; HP = E("HP", 56)
        for S in range(32):
            btags = []; bpost = []; post = []; vm = [[], []]; first = 0
            if qdone is not None and S == qdone + E("QD", 2): btags.append("qkv"); bpost.append(flag_store(sFQW))
            ev = {}
            for hf in range(2):
                h = 2 * S + hf; k = None
                if h in xev: vm[hf].append(xev[h])
                if E("NOEV", 0): continue
                if h % R1 == 0 and h // R1 + D1 < 16: k = h // R1; ld = [f"buffer_load_dword v{vOST}, v{TMP}, {srdt(sW1)}, 0 offen ;@-", f"v_add_u32 v{TMP}, v{TMP+2}, v{TMP}"]
                if k is not None: ev[48*hf + 11] = [f"s_bitcmp1_b32 s45, {k}", f"s_cbranch_scc0 {name}_w{typ}{k}"] + ld + [f"{name}_w{typ}{k}:"]
                if h >= B2 and (h - B2) % R2 == 0 and (h - B2) // R2 < 8:
                    k = 16 + (h - B2) // R2; assert h < 32
                    ev[48*hf + 27] = [f"s_bitcmp1_b32 s45, {k}", f"s_cbranch_scc0 {name}_w{typ}{k}", f"buffer_load_dword v{vOST}, v{TMP+1}, {srdt(sW2_)}, 0 offen ;@-", f"{name}_w{typ}{k}:"]
            post.append(f"{name}_{typ}{S}:")
            if CPF & 2 and S % 4 == 1:
                c = code_pf(f"{name}_{typ}{S+3}" if S < 29 else f"{name}_att"); post.append(c[0]); vm[0].append(c[1])
            if S == 14: stream += late()
            if S == 16: first = 3; post.append(";stamp 2")
            stream += plan.get(S, [])
            if S == HP // 2: vm[HP % 2].insert(0, poll_load(sFQP, 0, "pq"))
            if S == 30:
                assert not stream
                post += poll_check(f"{name}_pq{typ}", "pq")
                vm[0] += [at_ld(0, "K", 0), at_ld(0, "K", 1)] + [at_q(i) for i in range(6)]
                vm[1] += [at_ld(0, "V", 0), at_ld(0, "V", 1), at_q(6), at_q(7), at_ld(1, "K", 0), at_ld(1, "K", 1)]
            if S == 31:
                post += [f"s_add_u32 s{sK}, s{sK}, 4096"]
                vm[0] += [at_ld(1, "V", 0), at_ld(1, "V", 1) + f"\ns_add_u32 s{sV}, s{sV}, 4096"] + [at_ld(2, w, kk) for w in "KV" for kk in range(2)]
                stream += epi_h(0, 0, 4, (0,), 0); first = 35
            L = g1_step(typ, S, fd, post, vm, stream, first, btags, bpost, ev)
            if ";qdone" in L: qdone = S
            if os.environ.get("V"): print(typ, S, "x", fd.nx - 2*S, "d", fd.nd - S, "vm", sum(cls(x) == "vm" for x in L), "left", len(stream))
            if E("NOST", 0) and 17 < S < 30: L = [x for x in L if "buffer_store_dwordx4" not in x]
            if E("NOX", 0) and 17 < S < 30: L = [x.replace("s[24:27], s48", "s[24:27], s71").replace("s[24:27], s49", "s[24:27], s71").replace("s[24:27], s50", "s[24:27], s71").replace("s[24:27], s51", "s[24:27], s71") for x in L]
            b.ext(L)
        assert fd.nx == 64 and fd.nd == 32 and not fd.qx and not fd.qd
        b.ext(stream)
        if typ == "A": b(f"s_branch {name}_att")
        bodies[typ] = b.L
        o = Asm(); o(poll_slow(f"{name}_pq{typ}", sFQP, 0, 7)); ool[typ] = o.L
    t_ = Asm()
    t_(f"{name}_att:\n;stamp 3")
    t_(W("K0", "Q0")); t_.ext(at_qk(0))
    t_(f"v_lshrrev_b32 v{vPOLL}, 9, v{vL16}\nv_bfe_u32 v{vGU}, v{vL16}, 4, 5\nv_lshlrev_b32 v{vGU}, {FSH}, v{vGU}\nv_lshl_add_u32 v{vPOLL}, v{vPOLL}, 2, v{vGU}\ns_load_dwordx2 s[{sOUT}:{sOUT+1}], s[0:1], 56\ns_mov_b32 s{sOUT+2}, {2048*2048}\ns_mov_b32 s{sOUT+3}, 0x00020000")
    t_(f"s_load_dwordx2 s[{sWD}:{sWD+1}], s[0:1], 48\ns_load_dwordx2 s[{sWO}:{sWO+1}], s[0:1], 16\ns_mov_b32 s{sWD+2}, {3584*2048}\ns_mov_b32 s{sWO+2}, {1024*2048}")
    t_(f"""s_xor_b32 s10, s3, 2
    s_mul_i32 s10, s10, {REG}
    v_add_u32 v{vRA}, s10, v{vL16}
    v_add_u32 v{vRA+1}, s{sREG}, v{vL16}
    v_lshrrev_b32 v{vRA+3}, 1, v{vL16}
    v_add_u32 v{vRA+3}, 0x7000, v{vRA+3}
    v_add_u32 v{vRA+2}, s10, v{vRA+3}
    v_add_u32 v{vRA+3}, s{sREG}, v{vRA+3}""")
    t_(f"""v_bfe_u32 v{vGU}, v{vL16}, 8, 1
    v_lshrrev_b32 v{vQK}, 9, v{vL16}
    v_and_b32 v{vOST}, 0xf0, v{vL16}
    v_lshl_add_u32 v{vOST}, v{vQK}, 8, v{vOST}
    s_mov_b32 s10, {HO_T16}
    v_mad_u32_u24 v{vOST}, v{vGU}, s10, v{vOST}""")
    t_(f"""s_mov_b32 s10, {2*REG}
    s_bitcmp1_b32 s2, 0
    s_cselect_b32 s10, {-2*REG & 0xffffffff}, s10
    s_xor_b32 s11, s3, 1
    s_mul_i32 s11, s11, {REG}
    v_add_u32 v{vRA+4}, s10, v{vR2}
    v_add_u32 v{vRA+6}, s11, v{vL16}""")
    for h in range(2):
        for cb in range(1, 4): t_(f"v_xor_b32 v{RD2[h][cb]}, {cb << 5}, v{RD2[h][0]}")
    t_.ext(epi_h(0, 0, 4, (1,), 0, rev=True))
    TF, TP, T0 = E("TF", 16), E("TP", 48), E("T0", 60)
    pl = []; g2 = G2(28)
    for s in range(8):
        if s < 7:
            for i in range(4): pl.append(g2.dma(s, i) + (g2.dadv(s) if i == 3 else []))
        for t in range(8): pl.append([None, g2.act(2*s + t//4, t % 4)] + g2.aadv(2*s + t//4, t % 4))
    npl = len(pl); T1 = E("T1", 120)
    pts = [int(x) for x in os.environ.get("PTS", "3,11,19,27,35").split(",")]
    wsc = f"""s_and_b32 s{sRC}, s2, 1
    s_mul_i32 s{sD4}, s{sRC}, {-8192 & 0xffffffff}
    s_add_u32 s{sD4}, s{sD4}, 4096
    s_mul_i32 s{sD2}, s{sRC}, {-6144 & 0xffffffff}
    s_add_u32 s{sD2}, s{sD2}, 4096
    s_mul_i32 s{sE4}, s{sRC}, {-8*65536 & 0xffffffff}
    s_add_u32 s{sE4}, s{sE4}, 65536
    s_mul_i32 s{sE2}, s{sRC}, {-6*65536 & 0xffffffff}
    s_add_u32 s{sE2}, s{sE2}, 65536
    s_lshl_b32 s{sRC}, s2, 7
    s_add_u32 s{sRC}, s{sRC}, {FX}
    s_xor_b32 s{sRC+1}, s{sRC}, 128""".split("\n")
    wsc = [x.strip() for x in wsc]
    TA, TB = E("TA", 88), E("TB", 100); TC = TB + E("TC", 14)
    def w0(k, L): return [f"s_cmp_lg_u32 s3, 0", f"s_cbranch_scc1 {name}_rc{k}"] + L + [f"{name}_rc{k}:"]
    for t in range(128):
        kt, qt = t // 4, t % 4
        mem = [[] for _ in range(6)]; pre = []
        if kt + 3 < 32:
            mem[0].append(at_ld(kt + 3, "KKVV"[qt], qt % 2))
            if kt % 2 == 0 and qt % 2 == 1: mem[4].append(f"s_add_u32 s{sK if qt == 1 else sV}, s{sK if qt == 1 else sV}, 4096")
        if t < 3: pre.append(W(f"Q{t+1}"))
        if t == 1: pre += [W("V0"), "s_waitcnt lgkmcnt(0)"]
        if qt == 3 and kt < 31: pre.append(W(f"K{kt+1}", f"V{kt+1}"))
        if t in pts:
            i = pts.index(t)
            mem[1].append(f"buffer_load_dword v{vGU}, v{vPF}, {srdt(sWD if i < 4 else sWO)}, s{sPF} offen")
            if i < 4: mem[5].append(f"s_add_u32 s{sPF}, s{sPF}, 0x200000" if i < 3 else f"s_and_b32 s{sPF}, s{sPF}, 0x1fffff")
        if 36 <= t < 36 + len(wsc): mem[5].append(wsc[t - 36])
        if DL and t in (TA, TB):
            v = vST0 if t == TA else vPF
            pre += w0(t, [f"v_mov_b32 v{v}, v{vTOK}", f"buffer_atomic_swap v{v}, v{vFL}, {srdt(sWS)}, s{sRC + (t == TA)} offen sc0 sc1 ;@-"])
        if DL and t == TC:
            assert TC // 4 > (TB - 1) // 4 + 3
            pre += w0(t, """v_cmp_eq_u32 vcc, v{vST0}, v{vTOK}
            s_and_b32 s10, vcc_lo, 1
            v_cmp_ne_u32 vcc, v{vST1}, v{vTOK}
            s_and_b32 s11, vcc_lo, 1
            v_bfe_u32 v{vST1}, v{vL16}, 4, 2
            s_lshl1_add_u32 s10, s11, s10
            v_mul_u32_u24 v{vST1}, {REG}, v{vST1}
            v_mov_b32 v{vST0}, s10
            ds_write_b32 v{vST1}, v{vST0} offset:{o} ;@-""".format(vST0=vST0, vST1=vPF, vTOK=vTOK, vL16=vL16, REG=REG, o=0x7200).replace("            ", "").split("\n"))
        if DL and CPF & 2 and t in (110, 114):
            c = code_pf(f"{name}_{'SL'[t == 114]}g0", vGU); pre.append(c[0]); mem[1].append(c[1])
        if t == TF: pre.append(W("hst")); mem[1].append(flag_store(sFHW))
        if t == TP: mem[1].append(poll_load(sFP, 0, "ph"))
        if t == T0 - 1: pre += poll_check(f"{name}_ph", "ph") + ["s_waitcnt lgkmcnt(0)", "s_barrier"]
        pre.append(f"{name}_t{t}:")
        if CPF & 2 and t % 32 == 10:
            c = code_pf(f"{name}_t{t+20}" if t < 106 else f"{name}_t126", vGU); pre.append(c[0]); mem[1].append(c[1])
        if t >= T0:
            want = min(npl, ((t - T0 + 1) * npl + (T1 - T0) - 1) // (T1 - T0))
            for sl, prev in ((2, 1), (3, 4)):
                if npl - len(pl) < want:
                    x = pl.pop(0)
                    if x[0]: mem[prev].append(x[0])
                    mem[sl].append(x[1]); mem[5] += x[2:]
        if t in (126, 127):
            for q in range(4): mem[[2, 4, 3, 5][q]].append(f"ds_write_b128 v{vRA}, {R(vO + 16*(t-126) + 4*q, 4)} offset:{32768 + 4096*(t-126) + 1024*q}")
        t_.ext(at_period(t, mem, pre))
    assert not pl
    pv = at_pv(127)
    t_(f"ds_write2_b32 v{vRA+2}, v{vLs}, v{vLs+4} offset0:0 offset1:1")
    t_.ext([pv[0], pv[2], pv[1], pv[3]])
    t_(";stamp 4"); t_(W("e1")); t_("s_waitcnt lgkmcnt(0)\ns_barrier")
    if DL: t_(f"v_mov_b32 v{vPF}, s{sREG}\nds_read_b32 v{vST0}, v{vPF} offset:{0x7200}")
    t_(f"ds_read_b64 {R(vLs,2)}, v{vRA+3} ;@xl")
    for i in range(8): t_(f"ds_read_b128 {R(vO+4*i,4)}, v{vRA+1} offset:{32768 + 1024*i} ;@xo{i}")
    t_(f"s_mov_b32 s10, {f2h(2.0**-64)}\ns_mov_b32 s11, {f2h(2.0**64)}")
    t_(W("xl"))
    for i in range(4):
        m, ld = g2.dma(7, i); t_(m)
        t_([f"v_add_f32 v{vLs+8}, v{vLs+8}, v{vLs}", f"v_add_f32 v{vLs+12}, v{vLs+12}, v{vLs+1}",
            f"v_cmp_le_f32 s[12:13], s10, v{vLs+8}", f"v_cmp_le_f32 s[14:15], s10, v{vLs+12}"][i])
        t_(ld)
    t_.ext(g2.dadv(7))
    t_(f"""v_cmp_ge_f32 s[16:17], s11, v{vLs+8}
    v_cmp_ge_f32 s[18:19], s11, v{vLs+12}""")
    for i in range(8):
        t_(W(f"xo{i}"))
        for r in (0, 2): t_(f"v_pk_add_f32 {R(vO+32+4*i+r,2)}, {R(vO+32+4*i+r,2)}, {R(vO+4*i+r,2)}")
    t_(f"""s_and_b64 s[12:13], s[12:13], s[14:15]
    s_and_b64 s[16:17], s[16:17], s[18:19]
    s_and_b64 s[12:13], s[12:13], s[16:17]
    s_cmp_eq_u64 s[12:13], -1
    s_cbranch_scc0 {name}_slow
    {name}_fin:
    v_rcp_f32 v{vLs+8}, v{vLs+8}
    v_rcp_f32 v{vLs+12}, v{vLs+12}""")
    t_.ext(g2.rd(0) + g2.rd(1))
    if DL: t_(f"v_readfirstlane_b32 s{sRC}, v{vST0}")
    for qt in range(2):
        o = vO + 32 + 16 * qt
        for i in range(0, 16, 2): t_(f"v_pk_mul_f32 {R(o+i,2)}, {R(o+i,2)}, {R(vLs+8+4*qt,2)} op_sel_hi:[1,0]")
        for h in range(2):
            d = vP + 8 * qt + 4 * h
            idx = [4*h, 4*h+1, 4*h+2, 4*h+3, 8+4*h, 9+4*h, 10+4*h, 11+4*h]
            for j in range(4): t_(f"v_cvt_pk_bf16_f32 v{d+j}, v{o+idx[2*j]}, v{o+idx[2*j+1]}")
            t_(f"buffer_store_dwordx4 {R(d,4)}, v{vOST}, {srdt(sWS)}, s{sOS+qt} offen offset:{512*h} sc1 ;@ost")
    t_(";stamp 5")
    if E("FV", -1) >= 0: t_(f"s_and_b32 s{sRC}, s2, 1\ns_xor_b32 s{sRC}, s{sRC}, {E('FV', 0)}\ns_add_u32 s{sRC}, s{sRC}, 1")
    if DL: t_(f"s_cmp_eq_u32 s{sRC}, 1\ns_cbranch_scc1 {name}_Sg\ns_cmp_eq_u32 s{sRC}, 2\ns_cbranch_scc1 {name}_Lg")
    tail = t_.L
    il = lambda k, d: [int(x) for x in os.environ.get(k, d).split(",")]
    var = [([";var 0"],) + g2.code(f"{name}_", *il("PB", "5,12,16,27"))]
    if DL:
        var.append(([f"{name}_Sg:", ";var 1"],) + G2(28 - DL).code(f"{name}_S", *il("PS", "5,9,11,21")))
        var.append(([f"{name}_Lg:", ";var 2"],) + G2(28 + DL).code(f"{name}_L", *il("PL", "5,19,22,33")))
    e = Asm()
    e(poll_slow(f"{name}_ph", sFP, 0, 8))
    M = vO
    kv0 = f"s_and_b32 s{sK}, s{sK}, 0xfffe0000\ns_add_u32 s{sV}, s{sK}, {V_OFF - K_OFF}\ns_mov_b32 s10, 64"
    e(f"{name}_slow:\ns_sub_u32 s{sK}, s{sK}, 4096\n{kv0}\nv_mov_b32 v{M}, 0xff800000\nv_mov_b32 v{M+1}, 0xff800000\n{name}_slow1:")
    e(at_ld(0, "K", 0)); e(at_ld(0, "K", 1))
    e(f"s_add_u32 s{sK}, s{sK}, 2048\ns_sub_u32 s10, s10, 1\ns_waitcnt vmcnt(0)")
    e.ext(at_qk(2) + at_qk(3)); e("s_nop 7\ns_nop 3")
    for qt in range(2):
        for i in range(0, 16, 2): e(f"v_max3_f32 v{M+qt}, v{M+qt}, v{vS+16*qt+i}, v{vS+16*qt+i+1}")
    e(f"""s_cmp_lg_u32 s10, 0
    s_cbranch_scc1 {name}_slow1
    v_mov_b32 v{M+2}, v{M}
    v_mov_b32 v{M+3}, v{M+1}
    s_sub_u32 s{sK}, s{sK}, 4096
    {kv0}
    v_permlane32_swap_b32 v{M}, v{M+2}
    v_permlane32_swap_b32 v{M+1}, v{M+3}
    v_max_f32 v{M}, v{M}, v{M+2}
    v_max_f32 v{M+1}, v{M+1}, v{M+3}""")
    for i in range(32): e(f"v_mov_b32 v{vO+32+i}, 0")
    for i in range(8): e(f"v_mov_b32 v{vLs+8+i}, 0")
    e(f"{name}_slow2:")
    for w in "KV": e(at_ld(0, w, 0)); e(at_ld(0, w, 1))
    e(f"s_add_u32 s{sK}, s{sK}, 2048\ns_add_u32 s{sV}, s{sV}, 2048\ns_sub_u32 s10, s10, 1\ns_waitcnt vmcnt(0)")
    e.ext(at_qk(2) + at_qk(3)); e("s_nop 7\ns_nop 3")
    for qt in range(2):
        s = vS + 16 * qt; p = vP + 8 * qt
        for i in range(16): e(f"v_sub_f32 v{s+i}, v{s+i}, v{M+qt}")
        for i in range(16): e(f"v_exp_f32 v{s+i}, v{s+i}")
        e("s_nop 0")
        for i in range(8): e(f"v_cvt_pk_bf16_f32 v{p+i}, v{s+2*i}, v{s+2*i+1}")
    e("s_nop 1")
    e.ext(at_pv(2) + at_pv(3))
    e(f"s_cmp_lg_u32 s10, 0\ns_cbranch_scc1 {name}_slow2\ns_nop 7\ns_nop 3\ns_branch {name}_fin\nf_last:")
    def both(L0, L):
        r = [{i - len(pro + bodies[typ] + L0): v for i, v in resolve(pro + bodies[typ] + L0 + L).items()} for typ in "AC"]
        return emit(L, {i: mergew(v, r[1][i]) for i, v in r[0].items() if i >= 0})
    res = {typ: resolve(pro + bodies[typ]) for typ in "AC"}
    def part(typ, lo, L): return emit(L, {i - lo: v for i, v in res[typ].items()})
    out = Asm()
    out.L = emit(pro, res['A']) + part("A", len(pro), bodies["A"]) + ool["A"] + ool["C"] + part("C", len(pro), bodies["C"]) + both([], tail)
    for h, L, o in var: out.L += h + both(tail, L) + emit(o, {})
    out.L += emit(e.L, {})
    return out, dict(nm=name, vgpr=512, accum=256, lds=163840, grid=256, block=256)
```
